```python
import torch

def _softmax(x, axis=-1):
    return torch.softmax(x, dim=axis)
def _gelu(x):
    return torch.nn.functional.gelu(x, approximate="tanh")
def _silu(x):
    return torch.nn.functional.silu(x)
def _sigmoid(x):
    return torch.sigmoid(x)
def _layernorm(x, axis=-1, eps=1e-5):
    m = x.mean(dim=axis, keepdim=True)
    v = x.var(dim=axis, keepdim=True, unbiased=False)
    return (x - m) / torch.sqrt(v + eps)
def _scatter_add(tgt, idx, src, axis=0):
    return tgt.clone().index_add_(axis, idx, src)
def _segment_sum(src, seg, n):
    out = torch.zeros((n,) + src.shape[1:], dtype=src.dtype)
    return out.index_add_(0, seg, src)
def _pad(x, pw):
    flat = tuple(v for pair in reversed(pw) for v in pair)
    return torch.nn.functional.pad(x, flat)

kernel_name = 'parallel_sum__linear_kernel_hedgehog__glu_gated_swiglu__prompt'

def setup_inputs():

    _w = (lambda a: (lambda t: t.to(torch.bfloat16) if t.is_floating_point() else t)(torch.as_tensor(a)))
    def _A_setup():
        B, S, D, H = 1, 2048, 512, 32
        Dh = D // H
        return {
            "x": _w((lambda *s: torch.randn(*s, dtype=torch.bfloat16) * 0.05)(B, S, D)),
            "wqkv": _w((lambda *s: torch.randn(*s, dtype=torch.bfloat16) * 0.2)(D, 3 * D)),
            "w_phi": _w((lambda *s: torch.randn(*s, dtype=torch.bfloat16) * 0.2)(H, Dh, Dh) * (Dh ** -0.5)),
            "wo": _w((lambda *s: torch.randn(*s, dtype=torch.bfloat16) * 0.05)(D, D)),
        }
    _A_in = _A_setup()

    def _B_setup():
        B, S, D, F = 1, 2048, 512, 1376
        return {
            "x": _w((lambda *s: torch.randn(*s, dtype=torch.bfloat16) * 0.05)(B, S, D)),
            "w1": _w((lambda *s: torch.randn(*s, dtype=torch.bfloat16) * 0.4)(D, F) * (2.0 / D) ** 0.5),
            "w3": _w((lambda *s: torch.randn(*s, dtype=torch.bfloat16) * 0.4)(D, F) * (2.0 / D) ** 0.5),
            "w2": _w((lambda *s: torch.randn(*s, dtype=torch.bfloat16) * 0.4)(F, D) * (2.0 / F) ** 0.5),
        }
    _B_in = _B_setup()

    return {
        "A_x": _A_in["x"],
        "A_wqkv": _A_in["wqkv"],
        "A_w_phi": _A_in["w_phi"],
        "A_wo": _A_in["wo"],
        "B_x": _B_in["x"],
        "B_w1": _B_in["w1"],
        "B_w3": _B_in["w3"],
        "B_w2": _B_in["w2"],
    }

def reference(A_x, A_wqkv, A_w_phi, A_wo, B_x, B_w1, B_w3, B_w2):
    def _A_ref(x, wqkv, w_phi, wo):
        B, S, D = x.shape
        H = 32; Dh = D // H
        qkv = (lambda x, *d: x.permute(*d))((x @ wqkv).reshape(B, S, 3, H, Dh), 2, 0, 3, 1, 4)
        q, k, v = qkv[0], qkv[1], qkv[2]
        pq = torch.einsum("bhsd,hdf->bhsf", q, w_phi)
        pk = torch.einsum("bhsd,hdf->bhsf", k, w_phi)
        phi_q = torch.concatenate([_softmax(pq, axis=-1), _softmax(-pq, axis=-1)], axis=-1)
        phi_k = torch.concatenate([_softmax(pk, axis=-1), _softmax(-pk, axis=-1)], axis=-1)
        kv = torch.einsum("bhsf,bhsd->bhfd", phi_k, v)
        z  = torch.einsum("bhsf->bhf", phi_k)
        num = torch.einsum("bhqf,bhfd->bhqd", phi_q, kv)
        den = torch.einsum("bhqf,bhf->bhq", phi_q, z)[..., None] + 1e-6
        o = num / den
        return (lambda x, *d: x.permute(*d))(o, 0, 2, 1, 3).reshape(B, S, D) @ wo

    def _B_ref(x, w1, w3, w2):
        gate = torch.einsum("bsd,df->bsf", x, w1)
        up = torch.einsum("bsd,df->bsf", x, w3)
        h = _silu(gate) * up
        out = torch.einsum("bsf,fd->bsd", h, w2)
        return out

    x = A_x
    xn = _layernorm(x, axis=-1)
    return x + _A_ref(xn, A_wqkv, A_w_phi, A_wo) + _B_ref(xn, B_w1, B_w3, B_w2)
```

```python
import re

REG_RE = re.compile(r'^(-|abs\(|\|)?([vsa])(\d+)\)?\|?$')
RNG_RE = re.compile(r'^(-|abs\(|\|)?([vsa])\[(\d+):(\d+)\]\)?\|?$')

def regs_of(tok):
    tok = tok.strip()
    m = REG_RE.match(tok)
    if m:
        return [m.group(2) + m.group(3)]
    m = RNG_RE.match(tok)
    if m:
        return [m.group(2) + str(i) for i in range(int(m.group(3)), int(m.group(4)) + 1)]
    if tok == 'vcc':
        return ['vcc']
    if tok == 'exec':
        return ['exec']
    if tok == 'm0':
        return ['m0']
    return []

def split_ops(s):
    out, depth, cur = [], 0, ''
    for ch in s:
        if ch in '[(':
            depth += 1
        if ch in '])':
            depth -= 1
        if ch == ',' and depth == 0:
            out.append(cur.strip()); cur = ''
        else:
            cur += ch
    if cur.strip():
        out.append(cur.strip())
    return out

TRANS = ('v_exp_f32', 'v_log_f32', 'v_rcp_f32', 'v_rsq_f32', 'v_sqrt_f32', 'v_sin_f32', 'v_cos_f32')
NO_DEF_SALU = ('s_cmp', 's_cbranch', 's_branch', 's_waitcnt', 's_barrier', 's_nop', 's_endpgm', 's_setprio', 's_sleep', 's_bitcmp')

class Ins:
    def __init__(self, text, tag=None, comment=None):
        self.text = text.strip()
        self.tag = tag
        self.comment = comment
        self.pre_vm = None
        self.pre_lg = None
        self.pre_nop = 0
        parts = self.text.split(None, 1)
        self.op = parts[0]
        rest = parts[1] if len(parts) > 1 else ''
        ops = split_ops(rest)
        mods = ''
        if ops:
            lp = ops[-1].split(None, 1)
            ops[-1] = lp[0]
            mods = lp[1] if len(lp) > 1 else ''
        self.ops = ops
        self.mods = mods
        op = self.op
        R = [regs_of(o) for o in ops]
        flat = lambda l: [r for x in l for r in x]
        self.defs, self.uses = [], []
        self.kind = 'other'
        self.srcc = []
        if op.startswith('v_mfma'):
            self.kind = 'mfma'
            self.defs = R[0]; self.uses = flat(R[1:]); self.srcab = R[1] + R[2]; self.srcc = R[3]
            self.passes = 8 if '32x32' in op else 4
        elif op.startswith('v_cmp'):
            self.kind = 'valu'; self.defs = R[0]; self.uses = flat(R[1:])
        elif op.startswith('v_readfirstlane') or op.startswith('v_readlane'):
            self.kind = 'valu'; self.defs = R[0]; self.uses = flat(R[1:])
        elif op.startswith('v_permlane') and 'swap' in op:
            self.kind = 'valu'; self.defs = R[0] + R[1]; self.uses = R[0] + R[1]
        elif op.startswith('v_dot2c') or op.startswith('v_dot2_'):
            self.kind = 'dot'; self.defs = R[0]; self.uses = flat(R[1:]) + (R[0] if op.startswith('v_dot2c') else [])
        elif op.startswith('v_fmac') or op.startswith('v_pk_fmac'):
            self.kind = 'valu'; self.defs = R[0]; self.uses = flat(R)
        elif op.startswith('v_add_co') or op.startswith('v_addc_co') or op.startswith('v_sub_co'):
            self.kind = 'valu'; self.defs = R[0] + R[1]; self.uses = flat(R[2:])
        elif op.startswith('v_nop'):
            self.kind = 'valu'
        elif op.startswith('v_'):
            self.kind = 'trans' if op.replace('_e32', '').replace('_e64', '') in TRANS else 'valu'
            self.defs = R[0]; self.uses = flat(R[1:])
        elif op.startswith('ds_read') or op.startswith('ds_bpermute') or op.startswith('ds_permute') or op.startswith('ds_swizzle'):
            self.kind = 'dsr'; self.defs = R[0]; self.uses = flat(R[1:])
        elif op.startswith('ds_'):
            self.kind = 'dsw'; self.uses = flat(R)
        elif op.startswith('buffer_load') or op.startswith('global_load'):
            if ' lds' in (' ' + mods) or op.startswith('global_load_lds'):
                self.kind = 'dma'; self.uses = flat(R) + ['m0']
            else:
                self.kind = 'vload'; self.defs = R[0]; self.uses = flat(R[1:])
                if 'd16' in op:
                    self.uses += R[0]
        elif op.startswith('buffer_store') or op.startswith('global_store'):
            self.kind = 'vstore'; self.uses = flat(R)
            self.wide = op.endswith('x4') or op.endswith('x3')
            self.sdata = R[0] if op.startswith('buffer') else R[1]
        elif op.startswith('buffer_atomic') or op.startswith('global_atomic'):
            self.kind = 'vstore'; self.uses = flat(R); self.wide = False
            if 'sc0' in mods:
                self.kind = 'vload'; self.defs = R[0]
        elif op.startswith('buffer_wbl2') or op.startswith('buffer_inv'):
            self.kind = 'vstore'; self.wide = False
        elif op.startswith('s_load') or op.startswith('s_memtime') or op.startswith('s_memrealtime'):
            self.kind = 'smem'; self.defs = R[0]; self.uses = flat(R[1:])
        elif op.startswith('s_'):
            self.kind = 'salu'
            if op.startswith(NO_DEF_SALU):
                self.uses = flat(R)
            else:
                self.defs = R[0]; self.uses = flat(R[1:])
                if 'saveexec' in op:
                    self.defs = self.defs + ['exec']
            if op == 's_barrier':
                self.kind = 'barrier'
        self.isvalu = self.kind in ('valu', 'trans', 'dot')
        self.states = 1
        if op == 's_nop':
            self.states = int(ops[0], 0) + 1

    def lines(self):
        out = []
        w = []
        if self.pre_vm is not None:
            w.append(f'vmcnt({min(self.pre_vm,63)})')
        if self.pre_lg is not None:
            w.append(f'lgkmcnt({min(self.pre_lg,15)})')
        if w:
            out.append('  s_waitcnt ' + ' '.join(w))
        n = self.pre_nop
        while n > 0:
            k = min(n, 16)
            out.append(f'  s_nop {k-1}')
            n -= k
        if self.text:
            out.append('  ' + self.text + (f'  ; {self.comment}' if self.comment else ''))
        return out

class Wait(Ins):
    def __init__(self, vm=None, lg_all=False, vm_all=False):
        super().__init__('s_nop 0')
        self.text = ''
        self.kind = 'wait'; self.states = 0
        self.vm_tags = vm or []
        self.lg_all = lg_all
        self.vm_all = vm_all

class Label:
    def __init__(self, name): self.name = name

class Loop:
    def __init__(self, items, n, first=0): self.items, self.n, self.first = items, n, first

class Cond:
    def __init__(self, pred, items): self.pred, self.items = pred, items

class Prog:
    def __init__(self, prefix=''):
        self.stack = [[]]
        self.nlab = 0
        self.prefix = prefix
    @property
    def cur(self): return self.stack[-1]
    def I(self, text, tag=None, comment=None):
        for t in text.strip().split('\n'):
            t = t.split(';')[0].strip()
            if not t: continue
            self.cur.append(Ins(t, tag, comment))
    def wait(self, vm=None, lg_all=False, vm_all=False):
        self.cur.append(Wait(vm, lg_all, vm_all))
    def label(self, name): self.cur.append(Label(name))
    def newlabel(self, p='L'):
        self.nlab += 1
        return f'{self.prefix}{p}_{self.nlab}'
    def begin(self): self.stack.append([])
    def end(self): return self.stack.pop()
    def add(self, item): self.cur.append(item)
    def extend(self, items): self.cur.extend(items)
    def loop(self, n, body, label, close, first=0):
        self.begin(); self.label(label); body(); self.I(close); items = self.end()
        self.add(Loop(items, n, first))
    def cond(self, pred, skip_branch, body):
        lab = self.newlabel('Lskip')
        self.I(f'{skip_branch} {lab}')
        self.begin(); body(); items = self.end()
        self.add(Cond(pred, items)); self.label(lab)
    def ifelse(self, pred, else_branch, body1, body2):
        l_else = self.newlabel('Lelse'); l_end = self.newlabel('Lend')
        self.I(f'{else_branch} {l_else}')
        self.begin(); body1(); self.I(f's_branch {l_end}'); a = self.end()
        self.add(Cond(pred, a)); self.label(l_else)
        self.begin(); body2(); b = self.end()
        self.add(Cond(lambda r, it: not pred(r, it), b)); self.label(l_end)

def trace(items, role, it=None, out=None):
    if out is None: out = []
    for x in items:
        if isinstance(x, Ins): out.append((x, it))
        elif isinstance(x, Loop):
            for k in range(x.first, x.first + x.n):
                trace(x.items, role, k, out)
        elif isinstance(x, Cond):
            if x.pred(role, it): trace(x.items, role, it, out)
    return out

def flat(items, out=None):
    if out is None: out = []
    for x in items:
        if isinstance(x, Ins): out.extend(x.lines())
        elif isinstance(x, Label): out.append(f'{x.name}:')
        else: flat(x.items, out)
    return out

def ev(tag, it):
    return tag(it) if callable(tag) else tag

def upd(cur, new):
    return new if cur is None else min(cur, new)

def resolve_waits(items, roles):
    for role in roles:
        tr = trace(items, role)
        vmq = []
        lgq = []
        vm_done = 0; lg_done = 0
        pend = {}
        smem_out = False
        for ins, it in tr:
            need_vm = None; need_lg = None
            if ins.kind == 'wait':
                for t in ins.vm_tags:
                    tv = ev(t, it)
                    idx = [i for i, x in enumerate(vmq) if x == tv]
                    if idx and idx[-1] >= vm_done:
                        need_vm = upd(need_vm, len(vmq) - 1 - idx[-1])
                if ins.vm_all and vm_done < len(vmq): need_vm = 0
                if ins.lg_all and lg_done < len(lgq): need_lg = 0
            for r in set(ins.uses) | set(ins.defs):
                if r in pend:
                    k, i = pend[r]
                    if k == 'vm' and i >= vm_done:
                        if ins.kind == 'vload' and r in ins.defs: continue
                        need_vm = upd(need_vm, len(vmq) - 1 - i)
                    if k == 'lg' and i >= lg_done:
                        n = len(lgq) - 1 - i
                        if any(x == 'smem' for x in lgq[lg_done:]): n = 0
                        need_lg = upd(need_lg, n)
            if need_vm is not None:
                ins.pre_vm = upd(ins.pre_vm, need_vm); vm_done = max(vm_done, len(vmq) - min(need_vm, 63))
            if need_lg is not None:
                ins.pre_lg = upd(ins.pre_lg, need_lg); lg_done = max(lg_done, len(lgq) - min(need_lg, 15))
            if ins.op == 's_waitcnt':
                m = re.search(r'vmcnt\((\d+)\)', ins.text)
                if m: vm_done = max(vm_done, len(vmq) - int(m.group(1)))
                m = re.search(r'lgkmcnt\((\d+)\)', ins.text)
                if m: lg_done = max(lg_done, len(lgq) - int(m.group(1)))
            if ins.kind in ('vload', 'vstore', 'dma'):
                vmq.append(ev(ins.tag, it))
                if ins.kind == 'vload':
                    for r in ins.defs: pend[r] = ('vm', len(vmq) - 1)
                if len(vmq) - vm_done > 63:
                    pass
                    raise RuntimeError(f'more than 63 vm ops outstanding at {ins.text} role {role}')
            elif ins.kind in ('dsr', 'dsw', 'smem'):
                lgq.append(ins.kind)
                if ins.kind == 'smem' and not ins.op.startswith('s_load_dword '): lgq.append('smem')
                for r in ins.defs: pend[r] = ('lg', len(lgq) - 1)
            else:
                for r in ins.defs: pend.pop(r, None)

MFMA_RD = {4: 8, 8: 12}
MFMA_OVL = {4: 6, 8: 10}
MFMA_WAR = {4: 3, 8: 7}

def need_states(p, c):
    n = 0
    pd, cd, cu = set(p.defs), set(c.defs), set(c.uses)
    vdefs = {r for r in pd if r[0] in 'va' and r != 'vcc'}
    sdefs = pd - vdefs
    if p.kind == 'mfma':
        if c.kind == 'mfma':
            if pd & set(c.srcab): n = max(n, MFMA_RD[p.passes])
            if pd & set(c.srcc):
                if not (p.defs == c.srcc and p.passes == c.passes): n = max(n, MFMA_OVL[p.passes])
            elif pd & cd: n = max(n, MFMA_OVL[p.passes])
        elif c.kind not in ('salu', 'barrier', 'wait', 'smem', 'other'):
            if pd & (cu | cd): n = max(n, MFMA_RD[p.passes])
        if c.isvalu and set(p.srcc) & cd: n = max(n, MFMA_WAR[p.passes])
    if p.isvalu:
        if c.kind == 'mfma' and vdefs & cu: n = max(n, 3 if p.kind == 'dot' else 2)
        if p.kind == 'trans' and c.isvalu and c.kind != 'trans' and vdefs & cu: n = max(n, 1)
        if p.kind == 'trans' and c.kind == 'mfma' and vdefs & cu: n = max(n, 2)
        if p.kind == 'dot':
            if c.kind == 'dot' and c.op == p.op:
                srcab = set(r for o in c.ops[1:3] for r in regs_of(o))
                if vdefs & srcab: n = max(n, 3)
            elif vdefs & (cu | cd) and c.kind not in ('salu', 'barrier', 'wait'): n = max(n, 3)
        if c.op.startswith('v_permlane') and vdefs & cu: n = max(n, 2)
        if (c.op.startswith('v_readfirstlane') or c.op.startswith('v_readlane')) and vdefs & cu: n = max(n, 1)
        if 'dpp' in c.op or 'row_' in c.mods or 'quad_perm' in c.mods:
            if vdefs & cu: n = max(n, 2)
        if sdefs:
            if c.isvalu and sdefs & cu: n = max(n, 2)
            if c.kind in ('vload', 'vstore', 'dma') and sdefs & cu: n = max(n, 5)
            if c.kind == 'salu' and sdefs & cu: n = max(n, 1)
        if 'sdwa' in p.op or 'op_sel' in p.mods and not p.op.startswith('v_pk'):
            if c.isvalu and vdefs & (cu | cd): n = max(n, 1)
    if p.kind == 'salu' and 'm0' in pd and (c.kind == 'dma' or 'addtid' in c.op): n = max(n, 1)
    if p.kind == 'vstore' and getattr(p, 'wide', False) and set(p.sdata) & cd:
        n = max(n, 2 if c.isvalu else 1)
    return n

def pad_hazards(items, roles):
    changed = True
    while changed:
        changed = False
        for role in roles:
            tr = [x for x, _ in trace(items, role)]
            for j, c in enumerate(tr):
                if c.kind == 'wait': continue
                dist = c.pre_nop + (1 if (c.pre_vm is not None or c.pre_lg is not None) else 0)
                for i in range(j - 1, max(-1, j - 24), -1):
                    p = tr[i]
                    n = need_states(p, c)
                    if n > dist:
                        c.pre_nop += n - dist
                        dist = n
                        changed = True
                    dist += p.states + p.pre_nop + (1 if (p.pre_vm is not None or p.pre_lg is not None) else 0)
                    if dist >= 13: break

def finalize(items, roles):
    resolve_waits(items, roles)
    pad_hazards(items, roles)
    return flat(items)

class Regs:
    def __init__(self, kind, start, limit):
        self.kind, self.next, self.limit = kind, start, limit
        self.names = {}
    def alloc(self, n=1, align=1, name=None):
        b = (self.next + align - 1) // align * align
        self.next = b + n
        assert self.next <= self.limit, f'out of {self.kind} regs at {name}'
        if name: self.names[name] = (b, n)
        return b

def vr(b, n=1):
    return f'v{b}' if n == 1 else f'v[{b}:{b+n-1}]'
def sr(b, n=1):
    return f's{b}' if n == 1 else f's[{b}:{b+n-1}]'
```

```python
from asmlib import *
import os

HO_OFF   = 0
HO_RU    = 118 * 1024
QF_OFF   = 8 << 20
PART_OFF = 10 << 20
KVZ_OFF  = 12 << 20
STAMP_OFF = 13 << 20
WS_BYTES = 16 << 20
LOG2E = 0x3fb8aa3b

def srd(p, s, base, nbytes):
    p.I(f"""s_mov_b32 s{s}, s{base}
            s_mov_b32 s{s+1}, s{base+1}
            s_mov_b32 s{s+2}, {nbytes}
            s_mov_b32 s{s+3}, 0x20000""")

def load_args(p):
    p.I("""s_load_dwordx16 s[4:19], s[0:1], 0
           s_load_dwordx4 s[20:23], s[0:1], 64
           s_load_dwordx2 s[24:25], s[0:1], 80""")
X_P, WQKV_P, WPHI_P, WO_P, W1_P, W3_P, W2_P, OUT_P, DBG_P, WS_P = 4, 6, 8, 10, 14, 16, 18, 20, 22, 24

def softmax_pm(p, P, M, sc, T):
    a, b, c, c2 = T, T+1, T+2, T+3
    p.I(f"""v_max3_f32 v{a}, v{P}, v{P+1}, v{P+2}
            v_max3_f32 v{b}, -v{P}, -v{P+1}, -v{P+2}
            v_max3_f32 v{c}, v{P+3}, v{P+4}, v{P+5}
            v_max3_f32 v{c2}, -v{P+3}, -v{P+4}, -v{P+5}
            v_max3_f32 v{a}, v{a}, v{P+6}, v{P+7}
            v_max3_f32 v{b}, v{b}, -v{P+6}, -v{P+7}
            v_max_f32 v{a}, v{a}, v{c}
            v_max_f32 v{b}, v{b}, v{c2}
            v_permlane32_swap_b32 v{a}, v{b}
            v_max_f32 v{c}, v{a}, v{b}
            v_mul_f32 v{c}, {sc}, v{c}
            v_mov_b32 v{c2}, v{c}
            v_permlane32_swap_b32 v{c}, v{c2}""")
    for i in range(8):
        p.I(f"v_fma_f32 v{M+i}, -v{P+i}, {sc}, -v{c2}")
        p.I(f"v_fma_f32 v{P+i}, v{P+i}, {sc}, -v{c}")
    for i in range(8):
        p.I(f"v_exp_f32 v{M+i}, v{M+i}")
        p.I(f"v_exp_f32 v{P+i}, v{P+i}")
    p.I(f"""v_add_f32 v{a}, v{P}, v{P+1}
            v_add_f32 v{b}, v{M}, v{M+1}
            v_add_f32 v{c}, v{P+2}, v{P+3}
            v_add_f32 v{c2}, v{M+2}, v{M+3}
            v_add_f32 v{a}, v{a}, v{P+4}
            v_add_f32 v{b}, v{b}, v{M+4}
            v_add_f32 v{c}, v{c}, v{P+5}
            v_add_f32 v{c2}, v{c2}, v{M+5}
            v_add_f32 v{a}, v{a}, v{P+6}
            v_add_f32 v{b}, v{b}, v{M+6}
            v_add_f32 v{c}, v{c}, v{P+7}
            v_add_f32 v{c2}, v{c2}, v{M+7}
            v_add_f32 v{a}, v{a}, v{c}
            v_add_f32 v{b}, v{b}, v{c2}
            v_permlane32_swap_b32 v{a}, v{b}
            v_add_f32 v{c}, v{a}, v{b}
            v_rcp_f32 v{c}, v{c}
            v_mov_b32 v{c2}, v{c}
            v_permlane32_swap_b32 v{c}, v{c2}""")
    for i in range(8):
        p.I(f"v_mul_f32 v{P+i}, v{P+i}, v{c}")
        p.I(f"v_mul_f32 v{M+i}, v{M+i}, v{c2}")
    for i in range(4):
        p.I(f"v_cvt_pk_bf16_f32 v{P+i}, v{P+2*i}, v{P+2*i+1}")
        p.I(f"v_cvt_pk_bf16_f32 v{M+i}, v{M+2*i}, v{M+2*i+1}")

class Stamper:
    def __init__(self, on, sbase, kid, vreg=255):
        self.on, self.sbase, self.n, self.kid, self.v = on, sbase, 0, kid, vreg
        self.names = []
    def stamp(self, p, name):
        if not self.on: return
        s = self.sbase
        p.I(f"{os.environ.get('STAMPOP','s_memrealtime')} s[{s}:{s+1}]")
        p.I("s_waitcnt lgkmcnt(0)")
        p.I(f"v_writelane_b32 v{self.v}, s{s}, {self.n}")
        self.n += 1; self.names.append(name)
        assert self.n <= 16
    def flush(self, p, ws_srd, vt, wave_s):
        if not self.on: return
        p.I(f"""s_lshl_b32 s3, s2, 3
                s_add_u32 s3, s3, s{wave_s}
                s_lshl_b32 s3, s3, 6
                s_add_u32 s3, s3, {STAMP_OFF + self.kid * (1<<19)}
                v_and_b32 v{vt}, 63, v0
                v_lshlrev_b32 v{vt}, 2, v{vt}
                s_mov_b64 exec, 0xffff
                buffer_store_dword v{self.v}, v{vt}, s[{ws_srd}:{ws_srd+3}], s3 offen""")

def kernel_desc(name, vgpr, sgpr=102):
    return f""".section .rodata,"a"
.p2align 6
.amdhsa_kernel {name}
  .amdhsa_next_free_vgpr {vgpr}
  .amdhsa_next_free_sgpr {sgpr}
  .amdhsa_accum_offset {(vgpr+3)//4*4}
  .amdhsa_group_segment_fixed_size 0
  .amdhsa_kernarg_size 88
  .amdhsa_user_sgpr_count 2
  .amdhsa_user_sgpr_kernarg_segment_ptr 1
  .amdhsa_system_sgpr_workgroup_id_x 1
.end_amdhsa_kernel
"""
def kernel_head(name):
    return f""".text
.globl {name}
.p2align 8
.type {name},@function
{name}:
"""

def spin_wait(p, vpoll, vzero, S_DBG, s_off, target, s_a, s_b):
    p.I(f"v_readfirstlane_b32 s{s_b}, v{vpoll}")
    p.I(f"s_cmp_ge_u32 s{s_b}, {target}")
    def slow():
        lab = p.newlabel('Lspin'); done = p.newlabel('Lspind')
        p.I(f"s_mov_b32 s{s_a}, 0")
        p.label(lab)
        p.I(f"buffer_load_dword v{vpoll}, v{vzero}, s[{S_DBG}:{S_DBG+3}], s{s_off} offen sc1")
        p.I("s_waitcnt vmcnt(0)")
        p.I(f"v_readfirstlane_b32 s{s_b}, v{vpoll}")
        p.I(f"""s_add_u32 s{s_a}, s{s_a}, 1
                s_cmp_ge_u32 s{s_a}, 0x40000
                s_cbranch_scc1 {done}
                s_cmp_lt_u32 s{s_b}, {target}
                s_cbranch_scc1 {lab}""")
        p.label(done)
    p.cond(lambda r, it: r.get('slow', False), "s_cbranch_scc1", slow)
```

```python
from common import *
import os

MF = "v_mfma_f32_32x32x16_bf16"
ONES = 0x3f803f80

def interleave(p, mains, fills):
    n, k = len(mains), 0
    for i, m in enumerate(mains):
        m()
        upto = (len(fills) * (i + 1) + n - 1) // n
        while k < upto:
            fills[k](); k += 1

def gen_k1(name, stamps=False):
    OPT = os.environ.get('K1OPT', '').split(',')
    p = Prog('A')
    st = Stamper(stamps, 100, 0, 7)
    S_WS, S_X, S_W1, S_W3, S_WM, S_QKV, S_PHI, S_DBG = 28, 32, 36, 40, 44, 48, 52, 56
    (s_w, s_i, s_g, s_rb, s_grp, s_rot, s_t0, s_t1, s_t2, s_t3, s_ones, s_kc, s_xoff, s_woff, s_mslot, s_it,
     s_mA, s_mB, s_rd, s_hoff, s_ds, s_qoff, s_poff, s_flag, s_koff, s_voff, s_rslot) = range(60, 87)
    VB = Regs('v', 1, 256)
    lane = VB.alloc(); t0 = VB.alloc(); t1 = VB.alloc(); t2 = VB.alloc(); t3 = VB.alloc()
    l16 = VB.alloc()
    VB.alloc()
    p.I("s_cmp_ge_u32 s2, 256")
    p.I(f"s_cbranch_scc1 {name}_end")
    st.stamp(p, 'start')
    load_args(p)
    p.I(f"""v_and_b32 v{lane}, 63, v0
            v_lshrrev_b32 v{t0}, 6, v0
            s_and_b32 s{s_t0}, s2, 7
            s_lshr_b32 s{s_t1}, s2, 3
            v_readfirstlane_b32 s{s_w}, v{t0}
            s_and_b32 s{s_t2}, s{s_t1}, 7
            s_lshr_b32 s{s_t1}, s{s_t1}, 3
            s_and_b32 s{s_rb}, s{s_t0}, 1
            s_lshl_b32 s{s_rb}, s{s_rb}, 3
            s_add_u32 s{s_rb}, s{s_rb}, s{s_t2}
            s_and_b32 s{s_grp}, s{s_t0}, 6
            s_and_b32 s{s_t3}, s{s_t1}, 1
            s_add_u32 s{s_grp}, s{s_grp}, s{s_t3}
            s_lshl_b32 s{s_rot}, s{s_t1}, 1
            s_add_u32 s{s_rot}, s{s_rot}, s{s_t2}
            s_and_b32 s{s_rot}, s{s_rot}, {0 if 'norot' in OPT else 7}
            s_and_b32 s{s_i}, s{s_w}, 3
            s_lshr_b32 s{s_g}, s{s_w}, 2
            s_mov_b32 s{s_ones}, {ONES}
            v_lshlrev_b32 v{l16}, 4, v{lane}
            s_cmp_lt_u32 s{s_t1}, 2""")
    base_next = VB.next
    base_names = list(st.names)
    info = {}

    def xaddr_calc(xa, rowbase_s):
        p.I(f"""v_and_b32 v{t0}, 31, v{lane}
                v_lshlrev_b32 v{t1}, 7, v{t0}
                s_lshl_b32 s{s_t0}, s{s_i}, 12
                v_add_u32 v{t1}, s{s_t0}, v{t1}
                v_bfe_u32 v{t0}, v{lane}, 1, 3
                v_lshrrev_b32 v{t2}, 5, v{lane}
                v_xor_b32 v{t0}, v{t0}, v{t2}
                v_lshl_add_u32 v{t1}, v{t0}, 4, v{t1}""")
        for t in range(4):
            p.I(f"""s_add_u32 s{s_t0}, s{s_i}, {t}
                    s_and_b32 s{s_t0}, s{s_t0}, 3
                    s_lshl_b32 s{s_t0}, s{s_t0}, 5
                    v_xor_b32 v{xa+t}, s{s_t0}, v{t1}""")
    def per_t(dst, src, ks_stride):
        for t in range(4):
            p.I(f"""s_add_u32 s{s_t0}, s{s_i}, {t}
                    s_and_b32 s{s_t0}, s{s_t0}, 3
                    s_mul_i32 s{s_t0}, s{s_t0}, {ks_stride}
                    v_add_u32 v{dst+t}, s{s_t0}, v{src}""")
    def halves(sS, sQ):
        p.I(f"""v_add_f32 v{sS}, v{sS}, v{sS+1}
                v_add_f32 v{sS+1}, v{sQ}, v{sQ+1}
                v_permlane32_swap_b32 v{sS}, v{sS+1}
                v_add_f32 v{sS}, v{sS}, v{sS+1}
                v_mov_b32 v{sS+1}, v{sS}
                v_permlane32_swap_b32 v{sS}, v{sS+1}""")
    def stats_final(S, unused, E, M, rstd, c1, irs2, T):
        if E is not None:
            p.I(f"""v_add_f32 v{E}, v{E}, v{E+2}
                    v_add_f32 v{E+1}, v{E+1}, v{E+3}
                    v_add_f32 v{E+4}, v{E+4}, v{E+6}
                    v_add_f32 v{E+5}, v{E+5}, v{E+7}
                    v_add_f32 v{E}, v{E}, v{E+4}
                    v_add_f32 v{E+1}, v{E+1}, v{E+5}
                    v_add_f32 v{S}, v{E}, v{S}
                    v_add_f32 v{S+1}, v{E+1}, v{S+1}""")
        E = S
        p.I(f"""v_mul_f32 v{E}, 0x3b000000, v{E}
                v_mul_f32 v{E+1}, 0x3b000000, v{E+1}
                v_fma_f32 v{E+1}, -v{E}, v{E}, v{E+1}
                v_cvt_pk_bf16_f32 v{M}, -v{E}, -v{E}
                v_max_f32 v{E+1}, 0, v{E+1}
                v_cvt_pk_bf16_f32 v{T}, v{E+1}, v{E+1}
                v_and_b32 v{T}, 0xffff0000, v{T}
                v_add_f32 v{T}, 0x3727c5ac, v{T}
                v_cvt_pk_bf16_f32 v{T}, v{T}, v{T}
                v_and_b32 v{T}, 0xffff0000, v{T}
                v_sqrt_f32 v{T}, v{T}
                v_cvt_pk_bf16_f32 v{T}, v{T}, v{T}
                v_and_b32 v{T}, 0xffff0000, v{T}
                v_rcp_f32 v{rstd}, v{T}
                v_mul_f32 v{irs2}, v{T}, v{T}
                v_mul_f32 v{c1}, {0x80000000 | LOG2E}, v{rstd}""")
    def corr(acc, E, own, C, M, T):
        p.I(f"""v_add_f32 v{E}, v{E}, v{E+1}
                v_add_f32 v{E+2}, v{E+2}, v{E+3}
                v_add_f32 v{E}, v{E}, v{E+2}""")
        if own is not None: p.I(f"v_add_f32 v{E}, v{E}, v{own}")
        p.I(f"""v_cvt_pk_bf16_f32 v{T}, v{E}, v{E}
                v_and_b32 v{T}, 0xffff0000, v{T}
                v_sub_f32 v{T}, v{E}, v{T}
                v_cvt_pk_bf16_f32 v{C}, v{E}, v{T}""")
        p.I(f"{MF} {vr(acc,16)}, {vr(C,4)}, {vr(M,4)}, {vr(acc,16)}")
    def f_epilogue(acc, c1, irs2, T, soff):
        for i in range(8): p.I(f"v_mul_f32 v{T+i}, v{acc+i}, v{c1}")
        for i in range(8): p.I(f"v_exp_f32 v{T+i}, v{T+i}")
        for i in range(8): p.I(f"v_mul_f32 v{acc+i}, v{acc+i}, v{acc+8+i}")
        for i in range(8): p.I(f"v_fma_f32 v{T+i}, v{T+i}, v{irs2}, v{irs2}")
        for i in range(8): p.I(f"v_rcp_f32 v{T+i}, v{T+i}")
        for i in range(8): p.I(f"v_mul_f32 v{acc+i}, v{acc+i}, v{T+i}")
        for i in range(4): p.I(f"v_cvt_pk_bf16_f32 v{acc+i}, v{acc+2*i}, v{acc+2*i+1}")
        p.I(f"buffer_store_dwordx4 {vr(acc,4)}, v{l16}, s[{S_WS}:{S_WS+3}], {soff} {os.environ.get('HSC','')}")

    FSLOT = 53376; FW1 = 16384; FW3 = 16384 + 18432 + 128
    FEX = 2 * FSLOT; FEX2 = FEX + 4096
    def ftype(g):
        V = Regs('v', base_next, VB.limit)
        st.n = len(base_names); st.names = list(base_names)
        nb = 5 if g == 0 else 4
        b0 = 0 if g == 0 else 5
        nd = 6 if g == 0 else 7
        vd = V.alloc(7); xa = V.alloc(4); wa = V.alloc(4)
        ACC = V.alloc(16 * nb, 4)
        SET = [V.alloc(24, 4), V.alloc(24, 4)]
        XT = V.alloc(12, 4)
        cs = V.alloc(5); sS = V.alloc(2, 2); sQ = V.alloc(2)
        M = V.alloc(4, 4); C = V.alloc(4, 4); E = V.alloc(8, 4); T = V.alloc(8, 2)
        rstd = V.alloc(); c1 = V.alloc(); irs2 = V.alloc(); vex = V.alloc(); vex2 = V.alloc()
        p.I(f"""s_mul_i32 s{s_t1}, s{s_grp}, 288
                s_add_u32 s{s_t1}, s{s_t1}, 512
                s_min_u32 s{s_t1}, s{s_t1}, 2464""")
        def wvoff(dst, q_s, m):
            p.I(f"""s_add_u32 s{s_t0}, s{q_s}, {m}
                    s_lshl_b32 s{s_t0}, s{s_t0}, 6
                    v_add_u32 v{t0}, s{s_t0}, v{lane}
                    v_mul_u32_u24 v{t1}, 3641, v{t0}
                    v_lshrrev_b32 v{t1}, 16, v{t1}
                    v_mul_u32_u24 v{t2}, 18, v{t1}
                    v_sub_u32 v{t0}, v{t0}, v{t2}
                    v_mul_u32_u24 v{t1}, 2752, v{t1}
                    v_lshl_add_u32 v{t0}, v{t0}, 4, v{t1}
                    s_sub_u32 s{s_t0}, s{s_t1}, {1024*m}
                    v_add_u32 v{dst}, s{s_t0}, v{t0}""")
        if g == 0:
            p.I(f"s_mul_i32 s{s_t2}, s{s_i}, 3")
            for m in range(3): wvoff(vd + m, s_t2, m)
            p.I(f"""s_lshl_b32 s{s_mA}, s{s_t2}, 10
                    s_add_u32 s{s_mB}, s{s_mA}, {FW3}
                    s_add_u32 s{s_mA}, s{s_mA}, {FW1}""")
        else:
            p.I(f"""s_and_b32 s{s_t2}, s{s_i}, 1
                    s_mul_i32 s{s_t2}, s{s_t2}, 3
                    s_add_u32 s{s_t2}, s{s_t2}, 12""")
            for m in range(3): wvoff(vd + m, s_t2, m)
            p.I(f"""s_lshl_b32 s{s_mB}, s{s_t2}, 10
                    s_lshr_b32 s{s_t0}, s{s_i}, 1
                    s_mul_i32 s{s_t0}, s{s_t0}, {FW3-FW1}
                    s_add_u32 s{s_mB}, s{s_mB}, s{s_t0}
                    s_add_u32 s{s_mB}, s{s_mB}, {FW1}
                    s_lshl_b32 s{s_mA}, s{s_i}, 12""")
            p.I(f"""s_lshl_b32 s{s_t0}, s{s_rb}, 2
                    s_add_u32 s{s_t0}, s{s_t0}, s{s_i}
                    s_lshl_b32 s{s_t0}, s{s_t0}, 15
                    v_lshrrev_b32 v{t0}, 3, v{lane}
                    v_lshlrev_b32 v{t0}, 10, v{t0}
                    v_add_u32 v{t0}, s{s_t0}, v{t0}
                    v_and_b32 v{t1}, 7, v{lane}
                    v_lshrrev_b32 v{t2}, 4, v{lane}
                    v_xor_b32 v{t1}, v{t1}, v{t2}
                    v_lshl_add_u32 v{vd+3}, v{t1}, 4, v{t0}
                    v_xor_b32 v{t0}, 64, v{vd+3}
                    v_add_u32 v{vd+4}, {7168}, v{t0}
                    v_add_u32 v{vd+5}, {2*7168}, v{vd+3}
                    v_add_u32 v{vd+6}, {3*7168}, v{t0}""")
        p.I(f"""s_mov_b32 s{s_kc}, s{s_rot}
                s_lshl_b32 s{s_xoff}, s{s_kc}, 7
                s_mul_i32 s{s_woff}, s{s_kc}, {64*2752}
                s_mov_b32 s{s_mslot}, 0
                s_mov_b32 s{s_ds}, 0""")
        p.I("s_waitcnt lgkmcnt(0)")
        srd(p, S_W1, W1_P, 512*2752); srd(p, S_W3, W3_P, 512*2752)
        if g == 1:
            srd(p, S_X, X_P, 2048*1024)
            p.I(f"""s_cmp_lt_u32 s{s_i}, 2
                    s_cselect_b64 s[{S_WM}:{S_WM+1}], s[{W1_P}:{W1_P+1}], s[{W3_P}:{W3_P+1}]
                    s_mov_b32 s{S_WM+2}, {512*2752}
                    s_mov_b32 s{S_WM+3}, 0x20000""")
        st.stamp(p, 'args')
        def dma(n, tag):
            if g == 0:
                if n == 0: p.I(f"s_add_u32 m0, s{s_mslot}, s{s_mA}")
                if n == 3: p.I(f"s_add_u32 m0, s{s_mslot}, s{s_mB}")
                S = S_W1 if n < 3 else S_W3
                p.I(f"buffer_load_dwordx4 v{vd + n % 3}, s[{S}:{S+3}], s{s_woff} offen offset:{1024*(n%3)} lds", tag=tag)
            else:
                if n == 0: p.I(f"s_add_u32 m0, s{s_mslot}, s{s_mA}")
                if n == 4: p.I(f"s_add_u32 m0, s{s_mslot}, s{s_mB}")
                if n < 4: p.I(f"buffer_load_dwordx4 v{vd+3+n}, s[{S_X}:{S_X+3}], s{s_xoff} offen offset:{1024*n} lds", tag=tag)
                else: p.I(f"buffer_load_dwordx4 v{vd+n-4}, s[{S_WM}:{S_WM+3}], s{s_woff} offen offset:{1024*(n-4)} lds", tag=tag)
        def next_stage():
            p.I(f"""s_add_u32 s{s_kc}, s{s_kc}, 1
                    s_and_b32 s{s_kc}, s{s_kc}, 7
                    s_lshl_b32 s{s_xoff}, s{s_kc}, 7
                    s_mul_i32 s{s_woff}, s{s_kc}, {64*2752}
                    s_add_u32 s{s_mslot}, s{s_mslot}, {FSLOT}
                    s_cmp_ge_u32 s{s_mslot}, {3*FSLOT}
                    s_cselect_b32 s{s_mslot}, 0, s{s_mslot}
                    s_add_u32 s{s_ds}, s{s_ds}, 1""")
        split = [int(x) for x in os.environ.get('FSPLIT%d' % g, '2,2,1,1' if g == 0 else '2,2,2,1').split(',')]
        assert sum(split) == nd
        ofs = [sum(split[:k]) for k in range(5)]
        for n in range(nd): dma(n, ('d', 0))
        next_stage()
        xaddr_calc(xa, None)
        p.I(f"""v_bfe_u32 v{t0}, v{lane}, 4, 1
                v_mul_u32_u24 v{t0}, {FW3-FW1}, v{t0}
                v_lshrrev_b32 v{t1}, 5, v{lane}
                v_bfe_u32 v{t2}, v{lane}, 2, 2
                v_lshl_add_u32 v{t1}, v{t1}, 3, v{t2}
                v_mul_u32_u24 v{t1}, 288, v{t1}
                v_add_u32 v{t0}, v{t0}, v{t1}
                v_and_b32 v{t1}, 3, v{lane}
                v_lshl_add_u32 v{t0}, v{t1}, 3, v{t0}
                v_add_u32 v{t3}, {FW1 + 32*b0}, v{t0}""")
        per_t(wa, t3, 16 * 288)
        for n in range(nd): dma(n, ('d', 1))
        next_stage()
        for i in range(16 * nb): p.I(f"v_mov_b32 v{ACC+i}, 0")
        for r in list(range(cs, cs + 5)) + [sS, sS+1, sQ, sQ+1, M+1, M+2, M+3, C+1, C+2, C+3]: p.I(f"v_mov_b32 v{r}, 0")
        srd(p, S_WS, WS_P, WS_BYTES)
        p.I(f"""v_and_b32 v{t0}, 31, v{lane}
                v_lshlrev_b32 v{t0}, 5, v{t0}
                s_lshl_b32 s{s_t0}, s{s_i}, 10
                s_add_u32 s{s_t0}, s{s_t0}, {FEX}
                v_add_u32 v{vex}, s{s_t0}, v{t0}
                v_add_u32 v{vex2}, {FEX2 + b0*1024}, v{l16}
                s_lshl_b32 s{s_hoff}, s{s_rb}, 2
                s_add_u32 s{s_hoff}, s{s_hoff}, s{s_i}
                s_mul_i32 s{s_hoff}, s{s_hoff}, 118
                s_lshr_b32 s{s_t1}, s{s_t1}, 5
                s_add_u32 s{s_hoff}, s{s_hoff}, s{s_t1}
                s_add_u32 s{s_hoff}, s{s_hoff}, {b0}
                s_lshl_b32 s{s_hoff}, s{s_hoff}, 10
                s_mov_b32 s{s_it}, 0
                s_mov_b32 s{s_rslot}, 0""")
        for n in range(split[0]): dma(n, ('d', 2))
        def reads(S, t, blocks=None):
            out = [lambda: p.I(f"ds_read_b128 {vr(S,4)}, v{xa+t}")]
            for b in range(nb):
                out.append(lambda b=b: p.I(f"ds_read_b64_tr_b16 {vr(S+4+4*b,2)}, v{wa+t} offset:{32*b}"))
                out.append(lambda b=b: p.I(f"ds_read_b64_tr_b16 {vr(S+4+4*b+2,2)}, v{wa+t} offset:{32*b+1152}"))
            return out
        def mf(S):
            return [lambda b=b: p.I(f"{MF} {vr(ACC+16*b,16)}, {vr(S+4+4*b,4)}, {vr(S,4)}, {vr(ACC+16*b,16)}") for b in range(nb)]
        def stat(X, regs):
            out = []
            for k, r in enumerate(regs):
                out.append(lambda r=r, k=k: p.I(f"v_dot2c_f32_bf16 v{sS+(k&1)}, s{s_ones}, v{X+r}"))
                out.append(lambda r=r, k=k: p.I(f"v_dot2c_f32_bf16 v{sQ+(k&1)}, v{X+r}, v{X+r}"))
            return out
        def csum(S):
            return [lambda b=b, r=r: p.I(f"v_dot2c_f32_bf16 v{cs+b}, s{s_ones}, v{S+4+4*b+r}") for b in range(nb) for r in range(4)]
        myregs = [2*g, 2*g+1]
        def dgroup(k, tagf, valid):
            lo, hi = ofs[k], ofs[k+1]
            if lo == hi: return []
            return [lambda: (p.I(f"s_cmp_gt_u32 s{s_ds}, 7"),
                             p.cond(valid, "s_cbranch_scc1", lambda: [dma(n, tagf) for n in range(lo, hi)]))]
        p.wait(vm=[('d', 0)])
        p.I("s_barrier")
        st.stamp(p, 'bar0')
        for r in reads(SET[0], 0): r()
        def mix(a, b):
            out, i, j = [], 0, 0
            while i < len(a) or j < len(b):
                if j >= len(b) or (i < len(a) and i * max(len(b), 1) <= j * len(a)): out.append(a[i]); i += 1
                else: out.append(b[j]); j += 1
            return out
        def body():
            v2 = lambda r, it: it + 2 <= 7
            v3 = lambda r, it: it + 3 <= 7
            tg2 = lambda it: ('d', it + 2)
            tg3 = lambda it: ('d', it + 3)
            interleave(p, mf(SET[0]), mix(reads(SET[1], 1), stat(SET[0], myregs) + csum(SET[0])) + dgroup(1, tg2, v2))
            interleave(p, mf(SET[1]), mix(reads(SET[0], 2), stat(SET[1], myregs)) + dgroup(2, tg2, v2))
            interleave(p, mf(SET[0]), mix(reads(SET[1], 3), stat(SET[0], myregs)) + dgroup(3, tg2, v2))
            next_stage()
            for f in stat(SET[1], myregs): f()
            p.I(f"""s_add_u32 s{s_rslot}, s{s_rslot}, {FSLOT}
                    s_cmp_ge_u32 s{s_rslot}, {3*FSLOT}
                    s_cselect_b32 s{s_rd}, {(-2*FSLOT) & 0xffffffff}, s{s_t3}
                    s_cselect_b32 s{s_rslot}, 0, s{s_rslot}""")
            p.I(f"s_cmp_lg_u32 s{s_it}, 6")
            def exch():
                p.I(f"""v_add_f32 v{sS}, v{sS}, v{sS+1}
                        v_add_f32 v{sS+1}, v{sQ}, v{sQ+1}
                        v_lshrrev_b32 v{t0}, 5, v{lane}
                        v_lshl_add_u32 v{t0}, v{t0}, 3, v{vex}
                        s_lshl_b32 s{s_t0}, s{s_i}, 2
                        v_add_u32 v{t1}, s{s_t0}, v{vex2}""")
                p.I(f"ds_write_b64 v{t0}, {vr(sS,2)} offset:{16*g}")
                for b in range(nb): p.I(f"ds_write_b32 v{t1}, v{cs+b} offset:{1024*b}")
                p.wait(vm_all=True)
            p.cond(lambda r, it: it == 6, "s_cbranch_scc1", exch)
            p.wait(vm=[lambda it: ('d', it + 1)], lg_all=True)
            p.I("s_barrier")
            for t in range(4):
                p.I(f"v_add_u32 v{xa+t}, s{s_rd}, v{xa+t}\n v_add_u32 v{wa+t}, s{s_rd}, v{wa+t}")
            interleave(p, mf(SET[1]), reads(SET[0], 0) + dgroup(0, tg3, v3))
            p.I(f"s_add_u32 s{s_it}, s{s_it}, 1")
        assert sS % 2 == 0, sS
        p.I(f"s_mov_b32 s{s_t3}, {FSLOT}")
        p.loop(7, body, f"{name}_f{g}", f"s_cmp_lt_u32 s{s_it}, 7\n s_cbranch_scc1 {name}_f{g}")
        st.stamp(p, 'loop')
        WT = [SET[1], SET[1] + 12]
        X = [SET[0], XT, XT + 4, XT + 8]
        for t in range(1, 4): p.I(f"ds_read_b128 {vr(X[t],4)}, v{xa+t}")
        p.I(f"ds_read_b128 {vr(E,4)}, v{vex}\n ds_read_b128 {vr(E+4,4)}, v{vex} offset:16")
        def wread(b):
            for t in range(1, 4):
                p.I(f"ds_read_b64_tr_b16 {vr(WT[b&1]+4*(t-1),2)}, v{wa+t} offset:{32*b}")
                p.I(f"ds_read_b64_tr_b16 {vr(WT[b&1]+4*(t-1)+2,2)}, v{wa+t} offset:{32*b+1152}")
        W = lambda b, t: SET[0] + 4 + 4*b if t == 0 else WT[b&1] + 4*(t-1)
        wread(0)
        for r in [sS, sS+1, sQ, sQ+1] + list(range(cs, cs + nb)): p.I(f"v_mov_b32 v{r}, 0")
        def blk_mfma(b):
            ms = [lambda t=t: p.I(f"{MF} {vr(ACC+16*b,16)}, {vr(W(b,t),4)}, {vr(X[t],4)}, {vr(ACC+16*b,16)}") for t in range(4)]
            return ms
        def blk_cs(b):
            return [lambda t=t, r=r: p.I(f"v_dot2c_f32_bf16 v{cs+b}, s{s_ones}, v{W(b,t)+r}") for t in range(4) for r in range(4)]
        allstat = [f for t in range(4) for f in stat(X[t], range(4))]
        interleave(p, blk_mfma(0), allstat + [lambda: wread(1)])
        halves(sS, sQ)
        stats_final(sS, sQ, E, M, rstd, c1, irs2, T)
        for b in range(nb):
            p.I(f"ds_read_b128 {vr(E,4)}, v{vex2} offset:{1024*b}")
            for f in blk_cs(b): f()
            corr(ACC + 16*b, E, cs + b, C, M, T)
            if b + 1 < nb:
                for f in blk_mfma(b + 1): f()
                if b + 2 < nb: wread(b + 2)
            f_epilogue(ACC + 16*b, c1, irs2, T, f"s{s_hoff} offen offset:{1024*b}" if b < 4 else f"s{s_hoff} offen")
            if b == 3: p.I(f"s_add_u32 s{s_hoff}, s{s_hoff}, 4096")
        st.stamp(p, 'end')
        st.flush(p, S_WS, t0, s_w)
        info[f'F{g}'] = ([w for w in range(256) if (w >> 6) >= 2], [4*g + k for k in range(4)], list(st.names))
        return V.next

    def atype():
        V = Regs('v', base_next, VB.limit)
        st.n = len(base_names); st.names = list(base_names)
        vx = V.alloc(2); vw = V.alloc(); vf = V.alloc()
        xa = V.alloc(4); wa = V.alloc(4); fa = V.alloc(4)
        cs = V.alloc(4); sS = V.alloc(2, 2); sQ = V.alloc(2)
        rstd = V.alloc(); c1 = V.alloc(); irs2 = V.alloc()
        X = V.alloc(128, 4)
        AK, AV, AQ, AF = [V.alloc(16, 4) for _ in range(4)]
        SET = [V.alloc(8, 4), V.alloc(8, 4)]
        WP = V.alloc(8, 4)
        M = WP + 4
        C = V.alloc(4, 4)
        T = t0
        SL = 32768
        EX, EX2, TP, TV = 32768, 36864, 40960, 73728
        p1base = lambda s: (s % 5) * SL
        p2base = lambda s: [3*SL, 3*SL+16384, 4*SL, 4*SL+16384, 0, 16384, 3*SL, 3*SL+16384][s]
        p.I(f"""s_lshl_b32 s{s_t0}, s{s_rb}, 3
                s_add_u32 s{s_t0}, s{s_t0}, s{s_w}
                s_lshl_b32 s{s_t0}, s{s_t0}, 14
                v_lshrrev_b32 v{t0}, 3, v{lane}
                v_lshlrev_b32 v{t1}, 10, v{t0}
                v_add_u32 v{t1}, s{s_t0}, v{t1}
                v_and_b32 v{t2}, 7, v{lane}
                v_lshrrev_b32 v{t3}, 4, v{lane}
                v_xor_b32 v{t3}, v{t2}, v{t3}
                v_lshl_add_u32 v{vx}, v{t3}, 4, v{t1}
                v_xor_b32 v{t1}, 64, v{vx}
                v_add_u32 v{vx+1}, 7168, v{t1}
                s_lshl_b32 s{s_t0}, s{s_w}, 3
                v_add_u32 v{t0}, s{s_t0}, v{t0}
                v_mul_u32_u24 v{t0}, 3072, v{t0}
                v_bfe_u32 v{t1}, v{lane}, 4, 1
                v_lshlrev_b32 v{t1}, 2, v{t1}
                v_xor_b32 v{t1}, v{t1}, v{t2}
                v_lshl_add_u32 v{t0}, v{t1}, 4, v{t0}
                s_lshl_b32 s{s_t0}, s{s_grp}, 7
                v_add_u32 v{vw}, s{s_t0}, v{t0}
                s_lshl_b32 s{s_mA}, s{s_w}, 11
                s_lshl_b32 s{s_mB}, s{s_w}, 10""")
        p.I("s_waitcnt lgkmcnt(0)")
        srd(p, S_X, X_P, 2048*1024); srd(p, S_QKV, WQKV_P, 512*3072)
        st.stamp(p, 'args')
        def kc_setup(s):
            p.I(f"""s_add_u32 s{s_kc}, s{s_rot}, {s}
                    s_and_b32 s{s_kc}, s{s_kc}, 7""")
        dq = []
        def mk1(s):
            tag = ('d', s); b = p1base(s)
            def d0():
                kc_setup(s)
                p.I(f"s_lshl_b32 s{s_xoff}, s{s_kc}, 7\n s_add_u32 m0, s{s_mA}, {b}\n s_mul_i32 s{s_woff}, s{s_kc}, {64*3072}")
                p.I(f"buffer_load_dwordx4 v{vx}, s[{S_X}:{S_X+3}], s{s_xoff} offen lds", tag=tag)
            def d1(): p.I(f"buffer_load_dwordx4 v{vx+1}, s[{S_X}:{S_X+3}], s{s_xoff} offen offset:1024 lds", tag=tag)
            def d2():
                p.I(f"s_add_u32 m0, s{s_mB}, {b + 16384 - 1024}\n s_add_u32 s{s_voff}, s{s_woff}, 2048")
                p.I(f"buffer_load_dwordx4 v{vw}, s[{S_QKV}:{S_QKV+3}], s{s_woff} offen offset:1024 lds", tag=tag)
            def d3():
                p.I(f"s_add_u32 m0, s{s_mB}, {b + 24576}")
                p.I(f"buffer_load_dwordx4 v{vw}, s[{S_QKV}:{S_QKV+3}], s{s_voff} offen lds", tag=tag)
            need = None if s < 5 else s - 4
            return [(d0, need), (d1, need), (d2, need), (d3, need)]
        def mk2(s):
            tag = ('d', 8 + s); b = p2base(s)
            def d0():
                kc_setup(s)
                p.I(f"s_mul_i32 s{s_woff}, s{s_kc}, {64*3072}\n s_add_u32 m0, s{s_mB}, {b}\n s_mul_i32 s{s_voff}, s{s_kc}, {64*2752}")
                p.I(f"buffer_load_dwordx4 v{vw}, s[{S_QKV}:{S_QKV+3}], s{s_woff} offen lds", tag=tag)
            def d1():
                p.I(f"s_add_u32 m0, s{s_mB}, {b + 8192}")
                p.I(f"buffer_load_dwordx4 v{vf}, s[{S_WM}:{S_WM+3}], s{s_voff} offen lds", tag=tag)
            need = [4, 4, 5, 5, 6, 6, 10, 10][s]
            return [(d0, need), (d1, need)]
        for s in range(8): dq += mk1(s)
        for s in range(8): dq += mk2(s)
        passed = [-1]
        def pop(n=1):
            for _ in range(n):
                if not dq: return
                f, need = dq[0]
                if need is not None and need > passed[0]: return
                dq.pop(0); f()
        pop(4)
        p.I(f"""v_lshrrev_b32 v{t0}, 2, v{lane}
                s_lshl_b32 s{s_t0}, s{s_i}, 4
                v_add_u32 v{t0}, s{s_t0}, v{t0}
                v_mul_u32_u24 v{t0}, 2752, v{t0}
                v_and_b32 v{t1}, 3, v{lane}
                s_lshl_b32 s{s_t0}, s{s_g}, 1
                v_xor_b32 v{t1}, s{s_t0}, v{t1}
                v_lshl_add_u32 v{t0}, v{t1}, 4, v{t0}
                s_lshl_b32 s{s_t0}, s{s_grp}, 6
                v_add_u32 v{vf}, s{s_t0}, v{t0}
                s_cmp_eq_u32 s{s_g}, 0
                s_cselect_b64 s[{S_WM}:{S_WM+1}], s[{W1_P}:{W1_P+1}], s[{W3_P}:{W3_P+1}]
                s_mov_b32 s{S_WM+2}, {512*2752}
                s_mov_b32 s{S_WM+3}, 0x20000""")
        srd(p, S_PHI, WPHI_P, 32*512)
        p.I(f"""v_and_b32 v{t0}, 15, v{lane}
                v_lshlrev_b32 v{t0}, 1, v{t0}
                v_bfe_u32 v{t1}, v{lane}, 4, 1
                v_lshl_add_u32 v{t0}, v{t1}, 9, v{t0}
                v_lshrrev_b32 v{t1}, 5, v{lane}
                v_lshl_add_u32 v{t0}, v{t1}, 7, v{t0}
                s_lshl_b32 s{s_t0}, s{s_grp}, 1
                s_add_u32 s{s_t0}, s{s_t0}, s{s_g}
                s_lshl_b32 s{s_t0}, s{s_t0}, 10""")
        pop(4)
        for j in range(8):
            p.I(f"buffer_load_ushort v{WP+j}, v{t0}, s[{S_PHI}:{S_PHI+3}], s{s_t0} offen offset:{(8*(j>>2)+(j&3))*32}")
        xaddr_calc(xa, None)
        p.I(f"""v_lshrrev_b32 v{t0}, 5, v{lane}
                v_bfe_u32 v{t1}, v{lane}, 2, 2
                v_lshl_add_u32 v{t0}, v{t0}, 3, v{t1}
                v_bfe_u32 v{t1}, v{lane}, 4, 1
                v_bfe_u32 v{t2}, v{lane}, 1, 1
                v_lshl_add_u32 v{t2}, v{t1}, 1, v{t2}
                s_lshl_b32 s{s_t1}, s{s_g}, 2
                v_add_u32 v{t2}, s{s_t1}, v{t2}
                v_bfe_u32 v{t3}, v{lane}, 3, 1
                v_lshlrev_b32 v{t3}, 2, v{t3}
                v_xor_b32 v{t2}, v{t2}, v{t3}
                v_lshlrev_b32 v{t2}, 4, v{t2}
                v_lshl_add_u32 v{t2}, v{t0}, 7, v{t2}
                v_and_b32 v{t3}, 1, v{lane}
                v_lshl_add_u32 v{fa}, v{t3}, 3, v{t2}""")
        per_t(wa, fa, 2048)
        p.I(f"""v_lshlrev_b32 v{t0}, 6, v{t0}
                v_lshl_add_u32 v{t0}, v{t1}, 12, v{t0}
                v_bfe_u32 v{t2}, v{lane}, 1, 1
                s_lshl_b32 s{s_t1}, s{s_g}, 1
                v_add_u32 v{t2}, s{s_t1}, v{t2}
                v_lshlrev_b32 v{t1}, 1, v{t1}
                v_xor_b32 v{t2}, v{t2}, v{t1}
                v_lshl_add_u32 v{t0}, v{t2}, 4, v{t0}
                v_lshl_add_u32 v{t3}, v{t3}, 3, v{t0}""")
        per_t(fa, t3, 1024)
        for r in list(range(AK, AK + 64)) + list(range(cs, cs + 4)) + [sS, sS+1, sQ, sQ+1, C+1, C+2, C+3]: p.I(f"v_mov_b32 v{r}, 0")
        srd(p, S_WS, WS_P, WS_BYTES); srd(p, S_DBG, DBG_P, 256)
        win = {xa: 0, wa: 0, fa: 0}
        def off(reg, target):
            if not (0 <= target - win[reg] <= 65535 - 1024):
                nw = target // 65536 * 65536 if target % 65536 < 57344 else target
                d = nw - win[reg]
                for t in range(4): p.I(f"v_add_u32 v{reg+t}, {d & 0xffffffff}, v{reg+t}")
                win[reg] = nw
            return target - win[reg]
        def reads(s, t, S):
            if s < 8:
                b = p1base(s)
                return [lambda: p.I(f"ds_read_b128 {vr(X+16*s+4*t,4)}, v{xa+t} offset:{off(xa,b)}"),
                        lambda: p.I(f"ds_read_b64_tr_b16 {vr(S,2)}, v{wa+t} offset:{off(wa,b+16384)}"),
                        lambda: p.I(f"ds_read_b64_tr_b16 {vr(S+2,2)}, v{wa+t} offset:{off(wa,b+16384+512)}"),
                        lambda: p.I(f"ds_read_b64_tr_b16 {vr(S+4,2)}, v{wa+t} offset:{off(wa,b+24576)}"),
                        lambda: p.I(f"ds_read_b64_tr_b16 {vr(S+6,2)}, v{wa+t} offset:{off(wa,b+24576+512)}")]
            b = p2base(s - 8)
            return [lambda: p.I(f"ds_read_b64_tr_b16 {vr(S,2)}, v{wa+t} offset:{off(wa,b)}"),
                    lambda: p.I(f"ds_read_b64_tr_b16 {vr(S+2,2)}, v{wa+t} offset:{off(wa,b+512)}"),
                    lambda: p.I(f"ds_read_b64_tr_b16 {vr(S+4,2)}, v{fa+t} offset:{off(fa,b+8192)}"),
                    lambda: p.I(f"ds_read_b64_tr_b16 {vr(S+6,2)}, v{fa+t} offset:{off(fa,b+8192+256)}")]
        def mf(s, t, S):
            a0, a1 = (AK, AV) if s < 8 else (AQ, AF)
            xr = X + 16 * (s % 8) + 4 * t
            return [lambda: p.I(f"{MF} {vr(a0,16)}, {vr(S,4)}, {vr(xr,4)}, {vr(a0,16)}"),
                    lambda: p.I(f"{MF} {vr(a1,16)}, {vr(S+4,4)}, {vr(xr,4)}, {vr(a1,16)}")]
        def stat(s, t):
            xr = X + 16 * s + 4 * t
            out = []
            for o in range(4):
                out.append(lambda o=o: p.I(f"v_dot2c_f32_bf16 v{sS+(o&1)}, s{s_ones}, v{xr+o}"))
                out.append(lambda o=o: p.I(f"v_dot2c_f32_bf16 v{sQ+(o&1)}, v{xr+o}, v{xr+o}"))
            return out
        def csum(s, S):
            o = 0 if s < 8 else 2
            return [lambda b=b, r=r: p.I(f"v_dot2c_f32_bf16 v{cs+o+b}, s{s_ones}, v{S+4*b+r}") for r in range(4) for b in range(2)]
        def barrier(j, pre=None):
            if pre: pre()
            p.wait(vm=[('d', j)], lg_all=True)
            p.I("s_barrier")
            passed[0] = j
        def exch_addr(dst, colsum):
            if colsum:
                p.I(f"""s_lshl_b32 s{s_t0}, s{s_g}, 11
                        s_add_u32 s{s_t0}, s{s_t0}, {EX2}
                        v_add_u32 v{dst}, s{s_t0}, v{l16}""")
            else:
                p.I(f"""v_and_b32 v{dst}, 31, v{lane}
                        v_lshlrev_b32 v{dst}, 5, v{dst}
                        s_lshl_b32 s{s_t0}, s{s_i}, 10
                        s_add_u32 s{s_t0}, s{s_t0}, {EX}
                        v_add_u32 v{dst}, s{s_t0}, v{dst}""")
        def cs_write(o):
            exch_addr(t1, True)
            p.I(f"s_lshl_b32 s{s_t0}, s{s_i}, 2\n v_add_u32 v{t1}, s{s_t0}, v{t1}")
            for b in range(2): p.I(f"ds_write_b32 v{t1}, v{cs+o+b} offset:{1024*b}")
        def k_epilogue():
            E = SET[1]
            for i in range(4): p.I(f"v_lshl_or_b32 v{WP+i}, v{WP+2*i+1}, 16, v{WP+2*i}")
            exch_addr(t0, True)
            p.I(f"ds_read_b128 {vr(E,4)}, v{t0}\n ds_read_b128 {vr(E+4,4)}, v{t0} offset:1024")
            p.I(f"v_mov_b32 v{M+1}, 0\n v_mov_b32 v{M+2}, 0\n v_mov_b32 v{M+3}, 0")
            halves(sS, sQ)
            stats_final(sS, None, None, M, rstd, c1, irs2, t1)
            corr(AK, E, None, C, M, t1)
            corr(AV, E + 4, None, C, M, t1)
            p.I(f"""v_and_b32 v{t0}, 31, v{lane}
                    s_lshl_b32 s{s_t0}, s{s_i}, 5
                    v_add_u32 v{t0}, s{s_t0}, v{t0}
                    v_lshrrev_b32 v{t1}, 5, v{lane}
                    v_mul_u32_u24 v{t2}, 40, v{t0}
                    v_lshl_add_u32 v{t2}, v{t1}, 3, v{t2}
                    s_mul_i32 s{s_t0}, s{s_g}, 10240
                    s_add_u32 s{s_t0}, s{s_t0}, {TV}
                    v_add_u32 v{sS}, s{s_t0}, v{t2}
                    v_bfe_u32 v{t2}, v{lane}, 1, 3
                    v_xor_b32 v{t2}, v{t2}, v{t1}
                    v_lshlrev_b32 v{t2}, 3, v{t2}
                    v_lshl_add_u32 v{t2}, v{t0}, 6, v{t2}
                    s_lshl_b32 s{s_t0}, s{s_g}, 14
                    s_add_u32 s{s_t0}, s{s_t0}, {TP}
                    v_add_u32 v{sS+1}, s{s_t0}, v{t2}
                    v_xor_b32 v{sQ}, 16, v{sS+1}
                    v_mul_f32 v{sQ+1}, {LOG2E}, v{rstd}
                    v_mov_b32 v{cs}, s{s_ones}
                    v_mov_b32 v{cs+1}, s{s_ones}""")
            KB = E
            for i in range(8): p.I(f"v_cvt_pk_bf16_f32 v{KB+i}, v{AK+2*i}, v{AK+2*i+1}")
            p.I(f"{MF} {vr(AK,16)}, {vr(WP,4)}, {vr(KB,4)}, 0")
            for i in range(16): p.I(f"v_mul_f32 v{AV+i}, v{AV+i}, v{rstd}")
            for i in range(8): p.I(f"v_cvt_pk_bf16_f32 v{AV+i}, v{AV+2*i}, v{AV+2*i+1}")
            for h in range(2):
                p.I(f"ds_write_b64 v{sS}, {vr(AV+4*h,2)} offset:{5120*h}")
                p.I(f"ds_write_b64 v{sS}, {vr(AV+4*h+2,2)} offset:{5120*h+16}")
            p.I("s_mov_b64 exec, 0xffffffff")
            for h in range(2): p.I(f"ds_write_b64 v{sS}, {vr(cs,2)} offset:{5120*h+32}")
            p.I("s_mov_b64 exec, -1")
            p.I(f"{MF} {vr(AV,16)}, {vr(WP,4)}, {vr(KB+4,4)}, 0")
            for h, (P, Mi) in enumerate(((AK, AK + 8), (AV + 8, AV))):
                softmax_pm(p, P, Mi, f"v{sQ+1}", T)
                p.I(f"v_xor_b32 v{t0}, 32, v{sS+1}\n v_xor_b32 v{t1}, 32, v{sQ}")
                p.I(f"ds_write_b64 v{sS+1}, {vr(P,2)} offset:{8192*h}")
                p.I(f"ds_write_b64 v{sQ}, {vr(P+2,2)} offset:{8192*h}")
                p.I(f"ds_write_b64 v{t0}, {vr(Mi,2)} offset:{8192*h}")
                p.I(f"ds_write_b64 v{t1}, {vr(Mi+2,2)} offset:{8192*h}")
        def kv_phase():
            p.I(f"""v_lshrrev_b32 v{t0}, 5, v{lane}
                    v_bfe_u32 v{t1}, v{lane}, 2, 2
                    v_lshl_add_u32 v{t2}, v{t0}, 2, v{t1}
                    v_bfe_u32 v{t3}, v{lane}, 3, 1
                    v_lshl_add_u32 v{t0}, v{t0}, 1, v{t3}
                    v_and_b32 v{t1}, 3, v{lane}
                    v_bfe_u32 v{t3}, v{lane}, 4, 1
                    v_lshl_add_u32 v{sS}, v{t3}, 2, v{t1}
                    v_xor_b32 v{t0}, v{t0}, v{sS}
                    v_lshlrev_b32 v{t0}, 3, v{t0}
                    v_lshl_add_u32 v{t0}, v{t2}, 6, v{t0}
                    s_lshl_b32 s{s_t0}, s{s_i}, 13
                    s_add_u32 s{s_t0}, s{s_t0}, {TP}
                    v_add_u32 v{sS}, s{s_t0}, v{t0}
                    v_xor_b32 v{sS+1}, 32, v{sS}
                    v_mul_u32_u24 v{t2}, 40, v{t2}
                    v_lshlrev_b32 v{t1}, 3, v{t1}
                    v_cmp_eq_u32 vcc, 0, v{t3}
                    v_cndmask_b32 v{t1}, 32, v{t1}, vcc
                    v_add_u32 v{t2}, v{t2}, v{t1}
                    s_mul_i32 s{s_t0}, s{s_i}, 5120
                    s_add_u32 s{s_t0}, s{s_t0}, {TV}
                    v_add_u32 v{sQ}, s{s_t0}, v{t2}
                    s_lshl_b32 s{s_poff}, s{s_grp}, 4
                    s_add_u32 s{s_poff}, s{s_poff}, s{s_rb}
                    s_lshl_b32 s{s_poff}, s{s_poff}, 2
                    s_add_u32 s{s_poff}, s{s_poff}, s{s_i}
                    s_lshl_b32 s{s_poff}, s{s_poff}, 12
                    s_add_u32 s{s_poff}, s{s_poff}, {PART_OFF}""")
            def rd(ks):
                B = AV + 8 * (ks & 1)
                p.I(f"""ds_read_b64_tr_b16 {vr(B,2)}, v{sS} offset:{1024*ks}
                        ds_read_b64_tr_b16 {vr(B+2,2)}, v{sS+1} offset:{1024*ks+512}
                        ds_read_b64_tr_b16 {vr(B+4,2)}, v{sQ} offset:{640*ks}
                        ds_read_b64_tr_b16 {vr(B+6,2)}, v{sQ} offset:{640*ks+320}""")
            rd(0); rd(1)
            for ks in range(8):
                B = AV + 8 * (ks & 1)
                p.I(f"{MF} {vr(AK,16)}, {vr(B,4)}, {vr(B+4,4)}, {vr(AK,16) if ks else 0}")
                if ks + 2 < 8: rd(ks + 2)
            for q in range(4):
                p.I(f"buffer_store_dwordx4 {vr(AK+4*q,4)}, v{l16}, s[{S_WS}:{S_WS+3}], s{s_poff} offen offset:{1024*q} sc1", tag='part')
        isg0 = lambda r, it: r['g'] == 0
        def flag():
            p.I(f"""s_lshl_b32 s{s_flag}, s{s_grp}, 5
                    v_mov_b32 v{t0}, 0
                    v_mov_b32 v{t1}, 1
                    s_mov_b64 exec, 1""")
            p.I(f"buffer_atomic_add v{t1}, v{t0}, s[{S_DBG}:{S_DBG+3}], s{s_flag} offen sc1")
            p.I("s_mov_b64 exec, -1")

        barrier(0)
        st.stamp(p, 'bar0')
        for r in reads(0, 0, SET[0]): r()
        FLAG_B = 11
        for s in range(16):
            npop = 1 if s < 8 else 1
            for t in range(3):
                fills = reads(s, t + 1, SET[(t + 1) & 1])
                if s < 8: fills = fills + stat(s, t)
                if t == 0: fills = fills + csum(s, SET[0])
                interleave(p, mf(s, t, SET[t & 1]), fills + [pop])
            def pre():
                if s == 7: cs_write(0)
                if s == 15: cs_write(2)
                if s + 1 == FLAG_B:
                    p.I(f"s_cmp_lg_u32 s{s_g}, 0")
                    p.cond(isg0, "s_cbranch_scc1", lambda: p.wait(vm=['part']))
            barrier(s + 1, pre)
            if s + 1 == FLAG_B:
                p.I(f"s_cmp_lg_u32 s{s_w}, 0")
                p.cond(lambda r, it: r['w'] == 0, "s_cbranch_scc1", flag)
            interleave(p, mf(s, 3, SET[1]), (reads(s + 1, 0, SET[0]) if s < 15 else []) + (stat(s, 3) if s < 8 else []) + [pop])
            if s == 7:
                st.stamp(p, 'p1')
                k_epilogue()
                st.stamp(p, 'kepi')
            if s == 8:
                p.I(f"s_cmp_lg_u32 s{s_g}, 0")
                p.cond(isg0, "s_cbranch_scc1", kv_phase)
                st.stamp(p, 'kv')
        assert not dq
        st.stamp(p, 'p2')
        E = SET[0]
        exch_addr(t0, True)
        p.I(f"ds_read_b128 {vr(E,4)}, v{t0}\n ds_read_b128 {vr(E+4,4)}, v{t0} offset:1024")
        p.I(f"""s_lshl_b32 s{s_hoff}, s{s_rb}, 2
                s_add_u32 s{s_hoff}, s{s_hoff}, s{s_i}
                s_lshl_b32 s{s_t0}, s{s_grp}, 1
                s_add_u32 s{s_t0}, s{s_t0}, s{s_g}
                s_lshl_b32 s{s_qoff}, s{s_hoff}, 4
                s_add_u32 s{s_qoff}, s{s_qoff}, s{s_t0}
                s_lshl_b32 s{s_qoff}, s{s_qoff}, 11
                s_add_u32 s{s_qoff}, s{s_qoff}, {QF_OFF}
                s_mul_i32 s{s_hoff}, s{s_hoff}, 118
                s_add_u32 s{s_hoff}, s{s_hoff}, s{s_t0}
                s_lshl_b32 s{s_hoff}, s{s_hoff}, 10""")
        p.I(f"s_lshl_b32 s{s_flag}, s{s_grp}, 5\n v_mov_b32 v{X+1}, 0\n s_cmp_lg_u32 s{s_w}, 4")
        isred = lambda r, it: r['w'] == 4
        p.cond(isred, "s_cbranch_scc1", lambda: p.I(f"buffer_load_dword v{X}, v{X+1}, s[{S_DBG}:{S_DBG+3}], s{s_flag} offen sc1"))
        corr(AQ, E, None, C, M, t1)
        corr(AF, E + 4, None, C, M, t1)
        for i in range(16): p.I(f"v_mul_f32 v{AQ+i}, v{AQ+i}, v{rstd}")
        for i in range(8): p.I(f"v_cvt_pk_bf16_f32 v{AQ+i}, v{AQ+2*i}, v{AQ+2*i+1}")
        for h in range(2):
            p.I(f"buffer_store_dwordx4 {vr(AQ+4*h,4)}, v{l16}, s[{S_WS}:{S_WS+3}], s{s_qoff} offen offset:{1024*h} {os.environ.get('HSC','')}")
        f_epilogue(AF, c1, irs2, SET[1], f"s{s_hoff} offen")
        st.stamp(p, 'epi2')
        def reducer():
            spin_wait(p, X, X + 1, S_DBG, s_flag, 16, s_t0, s_t1)
            p.I(f"""s_lshl_b32 s{s_poff}, s{s_grp}, 8
                    s_add_u32 s{s_poff}, s{s_poff}, s{s_rb}
                    s_lshl_b32 s{s_poff}, s{s_poff}, 10
                    s_add_u32 s{s_poff}, s{s_poff}, {PART_OFF}""")
            for r in range(16):
                p.I(f"buffer_load_dwordx4 {vr(X+4+4*r,4)}, v{l16}, s[{S_WS}:{S_WS+3}], s{s_poff} offen sc1")
                p.I(f"s_add_u32 s{s_poff}, s{s_poff}, 16384")
            p.I(f"""s_lshr_b32 s{s_t0}, s{s_rb}, 2
                    s_lshl_b32 s{s_koff}, s{s_grp}, 2
                    s_add_u32 s{s_koff}, s{s_koff}, s{s_t0}
                    s_lshl_b32 s{s_koff}, s{s_koff}, 11
                    s_bfe_u32 s{s_t0}, s{s_rb}, 0x10001
                    s_lshl_b32 s{s_t0}, s{s_t0}, 10
                    s_add_u32 s{s_koff}, s{s_koff}, s{s_t0}
                    s_and_b32 s{s_t0}, s{s_rb}, 1
                    s_lshl_b32 s{s_t0}, s{s_t0}, 3
                    s_add_u32 s{s_koff}, s{s_koff}, s{s_t0}
                    s_add_u32 s{s_koff}, s{s_koff}, {KVZ_OFF}""")
            for r in range(1, 16):
                for k in range(4): p.I(f"v_add_f32 v{X+4+k}, v{X+4+k}, v{X+4+4*r+k}")
            p.I(f"v_cvt_pk_bf16_f32 v{X+4}, v{X+4}, v{X+5}\n v_cvt_pk_bf16_f32 v{X+5}, v{X+6}, v{X+7}")
            p.I(f"buffer_store_dwordx2 {vr(X+4,2)}, v{l16}, s[{S_WS}:{S_WS+3}], s{s_koff} offen")
        p.I(f"s_cmp_lg_u32 s{s_w}, 4")
        p.cond(isred, "s_cbranch_scc1", reducer)
        st.stamp(p, 'end')
        st.flush(p, S_WS, t0, s_w)
        A = [w for w in range(256) if (w >> 6) < 2]
        info['A0'] = (A, [0, 1, 2, 3], list(st.names)); info['A1'] = (A, [5, 6, 7], list(st.names)); info['Ared'] = (A, [4], list(st.names))
        return V.next

    used = []
    def fboth():
        p.I(f"s_cmp_lg_u32 s{s_g}, 0")
        p.ifelse(lambda r, it: r['g'] == 0, "s_cbranch_scc1", lambda: used.append(ftype(0)), lambda: used.append(ftype(1)))
    p.ifelse(lambda r, it: r['type'] == 'A', "s_cbranch_scc0", lambda: used.append(atype()), fboth)
    p.label(f"{name}_end")
    p.I("s_endpgm")
    roles = [dict(type='A', g=0, w=0), dict(type='A', g=0, w=1), dict(type='A', g=1, w=4), dict(type='A', g=1, w=4, slow=True), dict(type='A', g=1, w=5),
             dict(type='F', g=0, w=0), dict(type='F', g=1, w=4)]
    lines = finalize(p.cur, roles)
    print("k1 vgprs", used)
    return lines, max(used), info
```

```python
from common import *
import os

def gen_k2(name, stamps=False):
    OPT = os.environ.get('K2OPT', '').split(',')
    ASC = '' if 'nosc1' in OPT else 'sc1'
    p = Prog('B')
    V = Regs('v', 1, 256)
    st = Stamper(stamps, 100, 1)
    S_WS, S_B, S_A, S_X, S_OUT, S_PHI, S_DBG = 28, 40, 44, 48, 52, 56, 60
    s_w, s_ct, s_rb, s_rot, s_kl, s_t0, s_t1, s_t2, s_abase, s_slotw, s_slotr, s_it, s_wA, s_log2e, s_head, s_wB = range(84, 100)
    s_qoff, s_koff, s_poff, s_ooff, s_poll, s_wosz = 64, 65, 66, 67, 68, 69
    SLOT = 32768
    B0_, BSTEP_, BLAG_ = [int(x) for x in os.environ.get('K2BAR', '30,6,19').split(',')]
    p.I("s_cmp_ge_u32 s2, 256")
    p.I(f"s_cbranch_scc1 {name}_end")
    st.stamp(p, 'start')
    load_args(p)
    lane = V.alloc(name='lane'); t0 = V.alloc(); t1 = V.alloc(); t2 = V.alloc()
    l16 = V.alloc(name='l16')
    p.I(f"""v_and_b32 v{lane}, 63, v0
            v_lshrrev_b32 v{t0}, 6, v0
            s_and_b32 s{s_t0}, s2, 7
            s_lshr_b32 s{s_t1}, s2, 3
            v_readfirstlane_b32 s{s_w}, v{t0}
            s_and_b32 s{s_ct}, s{s_t1}, 7
            s_lshr_b32 s{s_t1}, s{s_t1}, 3
            s_lshl_b32 s{s_rb}, s{s_t0}, 2
            s_add_u32 s{s_rb}, s{s_rb}, s{s_t1}
            v_lshlrev_b32 v{l16}, 4, v{lane}
            s_cmp_lt_u32 s{s_w}, 4""")
    isC = lambda r, it: r['w'] < 4

    def loader():
        vA1 = V.alloc(); vB = V.alloc(4)
        p.I(f"""s_lshl_b32 s{s_t1}, s{s_t1}, 1
                s_add_u32 s{s_rot}, s{s_ct}, s{s_t1}
                s_and_b32 s{s_rot}, s{s_rot}, 7
                s_mul_i32 s{s_rot}, s{s_rot}, {0 if 'norot' in OPT else 10}
                v_lshrrev_b32 v{t0}, 3, v{lane}
                v_lshlrev_b32 v{t0}, 10, v{t0}
                v_and_b32 v{t1}, 7, v{lane}
                v_bfe_u32 v{t2}, v{lane}, 4, 1
                v_lshlrev_b32 v{t2}, 2, v{t2}
                v_xor_b32 v{t1}, v{t1}, v{t2}
                v_lshl_add_u32 v{vB}, v{t1}, 4, v{t0}
                s_lshl_b32 s{s_t0}, s{s_ct}, 7
                v_add_u32 v{vB}, s{s_t0}, v{vB}
                v_add_u32 v{vB+1}, {7168}, v{vB}
                v_add_u32 v{vB+2}, {2*7168}, v{vB}
                v_add_u32 v{vB+3}, {3*7168}, v{vB}
                v_add_u32 v{vA1}, {HO_RU-2048}, v{l16}
                s_and_b32 s{s_t0}, s{s_w}, 3
                s_lshl_b32 s{s_wA}, s{s_t0}, 12
                s_add_u32 s{s_wB}, s{s_wA}, 16384
                s_lshl_b32 s{s_kl}, s{s_t0}, 1
                s_mul_i32 s{s_abase}, s{s_rb}, {2*HO_RU}
                s_mov_b32 s{s_slotw}, 0
                s_mov_b32 s{s_wosz}, {512*1024}""")
        p.I("s_waitcnt lgkmcnt(0)")
        srd(p, S_A, WS_P, WS_BYTES)
        srd(p, S_B, W2_P, 1376*1024)
        if 'noA' in OPT: p.I(f"s_mov_b32 s{S_A+2}, 0")
        p.I(f"""s_add_u32 s{s_t1}, s{s_kl}, s{s_rot}
                s_lshl_b32 s{s_t1}, s{s_t1}, 14
                s_lshr_b32 s{s_t0}, s{s_t1}, 4
                s_add_u32 s{s_t0}, s{s_t0}, s{s_abase}
                s_mov_b32 m0, s{s_wB}""")
        st.stamp(p, 'args')
        B0, BSTEP, BLAG = [int(x) for x in os.environ.get('K2BAR', '30,6,19').split(',')]
        nbar = {}
        for j in range(15):
            nbar.setdefault(max(8*j + BLAG, B0 + BSTEP*j), []).append(j)
            assert max(8*j + BLAG, B0 + BSTEP*j) <= 8*j + 32
        def bars(n):
            for j in nbar.get(n, []):
                if 'fine' in OPT and j in (4,8,12): st.stamp(p, f'pre{j}')
                p.wait(vm=[('d', j)])
                if 'fine' in OPT and j in (4,8,12): st.stamp(p, f'w{j}')
                p.I("s_barrier")
                if j == 0 or ('fine' in OPT and j in (2,4,6,8,12)): st.stamp(p, f'bar{j}')
        s_nb, s_na = s_t2, s_it
        for s in range(15):
            slot = (s % 5) * SLOT
            nslot = ((s + 1) % 5) * SLOT
            if s < 10 or s > 10:
                nxt = [f"s_add_u32 s{s_nb}, s{s_t1}, {8<<14}"]
                if s < 10:
                    nxt += [f"s_sub_u32 s{s_na}, s{s_nb}, {86<<14}", f"s_cmp_ge_u32 s{s_nb}, {86<<14}", f"s_cselect_b32 s{s_nb}, s{s_na}, s{s_nb}",
                            f"s_lshr_b32 s{s_na}, s{s_nb}, 4", f"s_add_u32 s{s_na}, s{s_na}, s{s_abase}"]
                else:
                    nxt += [f"s_add_u32 s{s_na}, s{s_t0}, {8<<10}"]
            else:
                nxt = [f"s_lshl_b32 s{s_nb}, s{s_kl}, 14", f"s_lshl_b32 s{s_na}, s{s_kl}, 10", f"s_add_u32 s{s_na}, s{s_na}, s{s_abase}", f"s_add_u32 s{s_na}, s{s_na}, {86<<10}"]
            def ld(m):
                if m < 4:
                    p.I(f"buffer_load_dwordx4 v{vB+m}, s[{S_B}:{S_B+3}], s{s_t1} offen offset:{1024*m} lds", tag=('d', s))
                else:
                    p.I(f"buffer_load_dwordx4 v{l16 if m < 6 else vA1}, s[{S_A}:{S_A+3}], s{s_t0} offen offset:{1024*(m-4)} {ASC} lds", tag=('d', s))
            for m in range(8):
                bars(8*s + m)
                if s == 10:
                    p.I(f"s_cmp_eq_u32 s{s_w}, 7")
                    p.cond(lambda r, it: r['w'] != 7, "s_cbranch_scc1", lambda: ld(m))
                else:
                    ld(m)
                if m == 3: p.I(f"s_add_u32 m0, s{s_wA}, {slot}\n s_nop 0")
                if m in (0, 1, 2, 4, 5, 6):
                    k = (0, 1, 2, None, 3, 4, 5)[m]
                    if s == 10 or s > 10:
                        if k < len(nxt): p.I(nxt[k])
                    elif m == 0: p.I(nxt[0] + "\n" + nxt[1])
                    elif m == 1: p.I(nxt[2] + "\n" + nxt[3])
                    elif m == 2: p.I(nxt[4])
                    elif m == 4: p.I(nxt[5])
            p.I(f"s_mov_b32 s{s_t1}, s{s_nb}\n s_mov_b32 s{s_t0}, s{s_na}\n s_add_u32 m0, s{s_wB}, {nslot}")
            if s == 10:
                p.I(f"s_mov_b32 s{S_B}, s{WO_P}\n s_mov_b32 s{S_B+1}, s{WO_P+1}\n s_mov_b32 s{S_B+2}, {512*1024}")
        st.stamp(p, 'issued')
        for n in range(120, 200): bars(n)
        st.stamp(p, 'end')
        if stamps: srd(p, S_WS, WS_P, WS_BYTES)
        st.flush(p, S_WS, t0, s_w)

    def consumer():
        st.n = 1; st.names2 = st.names; st.names = ['start']
        vphi = V.alloc()
        p.I(f"""v_and_b32 v{t0}, 15, v{lane}
                v_lshlrev_b32 v{t0}, 1, v{t0}
                v_lshrrev_b32 v{t1}, 5, v{lane}
                v_lshl_add_u32 v{vphi}, v{t1}, 7, v{t0}
                s_mov_b32 s{s_log2e}, {LOG2E}
                s_lshl_b32 s{s_head}, s{s_ct}, 2
                s_add_u32 s{s_head}, s{s_head}, s{s_w}
                s_lshl_b32 s{s_qoff}, s{s_rb}, 6
                s_add_u32 s{s_qoff}, s{s_qoff}, s{s_head}
                s_lshl_b32 s{s_qoff}, s{s_qoff}, 10
                s_add_u32 s{s_qoff}, s{s_qoff}, {QF_OFF}
                s_add_u32 s{s_t2}, s{s_qoff}, {32*1024}
                s_lshl_b32 s{s_koff}, s{s_head}, 11
                s_add_u32 s{s_koff}, s{s_koff}, {KVZ_OFF}
                s_lshl_b32 s{s_poff}, s{s_head}, 9
                s_mul_i32 s{s_ooff}, s{s_rb}, 236
                s_add_u32 s{s_ooff}, s{s_ooff}, s{s_head}
                s_add_u32 s{s_ooff}, s{s_ooff}, 86
                s_lshl_b32 s{s_ooff}, s{s_ooff}, 10""")
        p.I("s_waitcnt lgkmcnt(0)")
        srd(p, S_WS, WS_P, WS_BYTES)
        srd(p, S_PHI, WPHI_P, 32*512)
        st.stamp(p, 'args')
        Q = V.alloc(8, 4); KZ = V.alloc(8, 4); WP = V.alloc(8, 4)
        for j in range(8):
            p.I(f"buffer_load_ushort v{WP+j}, v{vphi}, s[{S_PHI}:{S_PHI+3}], s{s_poff} offen offset:{(8*(j>>2)+(j&3))*32}")
        p.I(f"buffer_load_dwordx4 {vr(Q,4)}, v{l16}, s[{S_WS}:{S_WS+3}], s{s_qoff} offen")
        p.I(f"buffer_load_dwordx4 {vr(Q+4,4)}, v{l16}, s[{S_WS}:{S_WS+3}], s{s_t2} offen")
        p.I(f"buffer_load_dwordx4 {vr(KZ,4)}, v{l16}, s[{S_WS}:{S_WS+3}], s{s_koff} offen")
        p.I(f"buffer_load_dwordx4 {vr(KZ+4,4)}, v{l16}, s[{S_WS}:{S_WS+3}], s{s_koff} offen offset:1024")
        srd(p, S_X, X_P, 2048*1024)
        srd(p, S_OUT, OUT_P, 2048*1024)
        srd(p, S_DBG, DBG_P, 256)
        cA = V.alloc(); cB = V.alloc(); aA = V.alloc(); aB = V.alloc()
        p.I(f"""s_and_b32 s{s_t1}, s{s_w}, 1
                s_lshl_b32 s{s_t1}, s{s_t1}, 11
                v_add_u32 v{cA}, s{s_t1}, v{l16}
                v_lshrrev_b32 v{t0}, 5, v{lane}
                v_bfe_u32 v{t1}, v{lane}, 2, 2
                v_lshl_add_u32 v{t0}, v{t0}, 2, v{t1}
                v_lshlrev_b32 v{cB}, 7, v{t0}
                v_bfe_u32 v{t0}, v{lane}, 4, 1
                v_bfe_u32 v{t1}, v{lane}, 1, 1
                v_lshl_add_u32 v{t0}, v{t0}, 1, v{t1}
                s_lshr_b32 s{s_t1}, s{s_w}, 1
                s_lshl_b32 s{s_t1}, s{s_t1}, 2
                v_add_u32 v{t0}, s{s_t1}, v{t0}
                v_bfe_u32 v{t1}, v{lane}, 3, 1
                v_lshlrev_b32 v{t1}, 2, v{t1}
                v_xor_b32 v{t0}, v{t0}, v{t1}
                v_lshl_add_u32 v{cB}, v{t0}, 4, v{cB}
                v_and_b32 v{t0}, 1, v{lane}
                v_lshl_add_u32 v{cB}, v{t0}, 3, v{cB}
                v_add_u32 v{cB}, 16384, v{cB}""")
        vO = V.alloc(); vXr = V.alloc()
        p.I(f"""s_lshl_b32 s{s_t0}, s{s_rb}, 1
                s_and_b32 s{s_t1}, s{s_w}, 1
                s_add_u32 s{s_t0}, s{s_t0}, s{s_t1}
                s_lshl_b32 s{s_t0}, s{s_t0}, 15
                s_lshl_b32 s{s_t1}, s{s_ct}, 7
                s_add_u32 s{s_t0}, s{s_t0}, s{s_t1}
                s_lshr_b32 s{s_t1}, s{s_w}, 1
                s_lshl_b32 s{s_t1}, s{s_t1}, 6
                s_add_u32 s{s_t0}, s{s_t0}, s{s_t1}
                v_and_b32 v{t0}, 31, v{lane}
                v_lshlrev_b32 v{t0}, 10, v{t0}
                v_add_u32 v{t0}, s{s_t0}, v{t0}
                v_lshrrev_b32 v{t1}, 5, v{lane}
                v_lshl_add_u32 v{vO}, v{t1}, 4, v{t0}
                v_lshl_add_u32 v{vXr}, v{t1}, 3, v{t0}
                s_lshl_b32 s{s_poll}, s{s_rb}, 2
                v_mov_b32 v{t2}, 0""")
        ACC = V.alloc(16, 4); FA = V.alloc(32, 4); FB = V.alloc(32, 4)
        XR = V.alloc(8, 2); vpoll = V.alloc()
        T0, T1 = FB, None
        for i in range(4):
            p.I(f"v_lshl_or_b32 v{WP+i}, v{WP+2*i+1}, 16, v{WP+2*i}")
        st.stamp(p, 'wp_in')
        p.I(f"v_mfma_f32_32x32x16_bf16 {vr(FA,16)}, {vr(WP,4)}, {vr(Q,4)}, 0")
        p.I(f"v_mfma_f32_32x32x16_bf16 {vr(FA+16,16)}, {vr(WP,4)}, {vr(Q+4,4)}, 0")
        for u in range(2):
            P = FA + 16*u
            softmax_pm(p, P, P+8, f"s{s_log2e}", ACC)
            p.I(f"v_mfma_f32_32x32x16_bf16 {vr(FB+16*u,16)}, {vr(KZ,4)}, {vr(P,4)}, 0")
            p.I(f"v_mfma_f32_32x32x16_bf16 {vr(FB+16*u,16)}, {vr(KZ+4,4)}, {vr(P+8,4)}, {vr(FB+16*u,16)}")
        for u in range(2):
            D = FB + 16*u
            p.I(f"v_add_f32 v{ACC+u}, 0x358637bd, v{D+8}")
            p.I(f"v_rcp_f32 v{ACC+u}, v{ACC+u}")
            for i in range(8):
                p.I(f"v_mul_f32 v{D+i}, v{D+i}, v{ACC+u}")
            for i in range(4):
                p.I(f"v_cvt_pk_bf16_f32 v{Q+4*u+i}, v{D+2*i}, v{D+2*i+1}")
            p.I(f"buffer_store_dwordx4 {vr(Q+4*u,4)}, v{l16}, s[{S_WS}:{S_WS+3}], s{s_ooff} offen sc1", tag='ostore')
            if u == 0: p.I(f"s_add_u32 s{s_ooff}, s{s_ooff}, {HO_RU}")
        st.stamp(p, 'o_done')
        for q in range(4):
            p.I(f"buffer_load_dwordx2 {vr(XR+2*q,2)}, v{vXr}, s[{S_X}:{S_X+3}], 0 offen offset:{16*q}")
        for i in range(16):
            p.I(f"v_mov_b32 v{ACC+i}, 0")
        p.I(f"s_mov_b32 s{s_slotr}, 0\n s_mov_b32 s{s_it}, 0\n s_lshl_b32 s{s_wA}, s{s_w}, 8")
        FLAG_IT = 1
        POLL_IT = max(j for j in range(15) if max(8*j + BLAG_, B0_ + BSTEP_*j) <= 88)
        def compute():
            p.I(f"v_add_u32 v{aA}, s{s_slotr}, v{cA}\n v_add_u32 v{aB}, s{s_slotr}, v{cB}")
            def rd(e):
                p.I(f"ds_read_b128 {vr(FA+4*e,4)}, v{aA} offset:{(e>>1)*4096 + (e&1)*1024}")
                p.I(f"ds_read_b64_tr_b16 {vr(FB+4*e,2)}, v{aB} offset:{e*2048}")
                p.I(f"ds_read_b64_tr_b16 {vr(FB+4*e+2,2)}, v{aB} offset:{e*2048+1024}")
            def mf(e):
                p.I(f"v_mfma_f32_32x32x16_bf16 {vr(ACC,16)}, {vr(FB+4*e,4)}, {vr(FA+4*e,4)}, {vr(ACC,16)}")
            for e in range(4): rd(e)
            for e in range(6):
                mf(e)
                if e + 4 < 8: rd(e + 4)
            p.wait(lg_all=True)
            p.I(f"s_cmp_eq_u32 s{s_it}, 10")
            p.cond(lambda r, it: it != 10, "s_cbranch_scc1", lambda: (mf(6), mf(7)))
        def body():
            p.I(f"s_add_u32 s{s_t2}, s{s_it}, s{s_wA}")
            p.I(f"s_cmp_lg_u32 s{s_t2}, {POLL_IT}")
            p.cond(lambda r, it: r['w'] == 0 and it == POLL_IT, "s_cbranch_scc1",
                   lambda: spin_wait(p, vpoll, t2, S_DBG, s_poll, 0 if 'nopoll' in OPT else 8, s_t0, s_t1))
            p.I(f"s_cmp_lg_u32 s{s_it}, {FLAG_IT}")
            p.cond(lambda r, it: it == FLAG_IT, "s_cbranch_scc1", lambda: p.wait(vm=['ostore']))
            p.I("s_barrier")
            p.I(f"s_cmp_lg_u32 s{s_t2}, {FLAG_IT}")
            def flag():
                p.I(f"v_mov_b32 v{t1}, 1\n s_mov_b64 exec, 1")
                p.I(f"buffer_atomic_add v{t1}, v{t2}, s[{S_DBG}:{S_DBG+3}], s{s_poll} offen sc1")
                p.I("s_mov_b64 exec, -1")
            p.cond(lambda r, it: r['w'] == 0 and it == FLAG_IT, "s_cbranch_scc1", flag)
            p.I(f"s_cmp_lg_u32 s{s_t2}, {POLL_IT-1}")
            p.cond(lambda r, it: r['w'] == 0 and it == POLL_IT - 1, "s_cbranch_scc1",
                   lambda: p.I(f"buffer_load_dword v{vpoll}, v{t2}, s[{S_DBG}:{S_DBG+3}], s{s_poll} offen sc1"))
            if 'nocomp' not in OPT: compute()
            p.I(f"""s_add_u32 s{s_slotr}, s{s_slotr}, {SLOT}
                    s_cmp_ge_u32 s{s_slotr}, {5*SLOT}
                    s_cselect_b32 s{s_slotr}, 0, s{s_slotr}
                    s_add_u32 s{s_it}, s{s_it}, 1""")
        p.loop(15, body, f"{name}_cloop", f"s_cmp_lt_u32 s{s_it}, 15\n s_cbranch_scc1 {name}_cloop")
        st.stamp(p, 'loop_done')
        for i in range(8):
            p.I(f"v_lshlrev_b32 v{FA+2*i}, 16, v{XR+i}")
            p.I(f"v_and_b32 v{FA+2*i+1}, 0xffff0000, v{XR+i}")
        for i in range(16):
            p.I(f"v_add_f32 v{FA+i}, v{ACC+i}, v{FA+i}")
        for i in range(8):
            p.I(f"v_cvt_pk_bf16_f32 v{FB+i}, v{FA+2*i}, v{FA+2*i+1}")
        for h in range(2):
            p.I(f"v_permlane32_swap_b32 v{FB+4*h}, v{FB+4*h+2}")
            p.I(f"v_permlane32_swap_b32 v{FB+4*h+1}, v{FB+4*h+3}")
            p.I(f"buffer_store_dwordx4 {vr(FB+4*h,4)}, v{vO}, s[{S_OUT}:{S_OUT+3}], 0 offen offset:{32*h}")
        st.stamp(p, 'end')
        st.flush(p, S_WS, t0, s_w)
    p.begin(); loader(); litems = p.end()
    p.ifelse(isC, "s_cbranch_scc0", consumer, lambda: p.extend(litems))
    p.label(f"{name}_end")
    p.I("s_endpgm")
    roles = [{'w': 0}, {'w': 0, 'slow': True}, {'w': 1}, {'w': 5}, {'w': 7}]
    lines = finalize(p.cur, roles)
    info = {}
    if stamps:
        info = {'cons': (list(range(256)), [0,1,2,3], st.names), 'load': (list(range(256)), [4,5,6,7], st.names2)}
    return lines, max(V.next, 64), info
```

```python
import re

REG_RE = re.compile(r'^(-|abs\(|\|)?([vsa])(\d+)\)?\|?$')
RNG_RE = re.compile(r'^(-|abs\(|\|)?([vsa])\[(\d+):(\d+)\]\)?\|?$')

def regs_of(tok):
    tok = tok.strip()
    m = REG_RE.match(tok)
    if m:
        return [m.group(2) + m.group(3)]
    m = RNG_RE.match(tok)
    if m:
        return [m.group(2) + str(i) for i in range(int(m.group(3)), int(m.group(4)) + 1)]
    if tok == 'vcc':
        return ['vcc']
    if tok == 'exec':
        return ['exec']
    if tok == 'm0':
        return ['m0']
    return []

def split_ops(s):
    out, depth, cur = [], 0, ''
    for ch in s:
        if ch in '[(':
            depth += 1
        if ch in '])':
            depth -= 1
        if ch == ',' and depth == 0:
            out.append(cur.strip()); cur = ''
        else:
            cur += ch
    if cur.strip():
        out.append(cur.strip())
    return out

TRANS = ('v_exp_f32', 'v_log_f32', 'v_rcp_f32', 'v_rsq_f32', 'v_sqrt_f32', 'v_sin_f32', 'v_cos_f32')
NO_DEF_SALU = ('s_cmp', 's_cbranch', 's_branch', 's_waitcnt', 's_barrier', 's_nop', 's_endpgm', 's_setprio', 's_sleep', 's_bitcmp')

class Ins:
    def __init__(self, text, tag=None, comment=None):
        self.text = text.strip()
        self.tag = tag
        self.comment = comment
        self.pre_vm = None
        self.pre_lg = None
        self.pre_nop = 0
        parts = self.text.split(None, 1)
        self.op = parts[0]
        rest = parts[1] if len(parts) > 1 else ''
        ops = split_ops(rest)
        mods = ''
        if ops:
            lp = ops[-1].split(None, 1)
            ops[-1] = lp[0]
            mods = lp[1] if len(lp) > 1 else ''
        self.ops = ops
        self.mods = mods
        op = self.op
        R = [regs_of(o) for o in ops]
        flat = lambda l: [r for x in l for r in x]
        self.defs, self.uses = [], []
        self.kind = 'other'
        self.srcc = []
        if op.startswith('v_mfma'):
            self.kind = 'mfma'
            self.defs = R[0]; self.uses = flat(R[1:]); self.srcab = R[1] + R[2]; self.srcc = R[3]
            self.passes = 8 if '32x32' in op else 4
        elif op.startswith('v_cmp'):
            self.kind = 'valu'; self.defs = R[0]; self.uses = flat(R[1:])
        elif op.startswith('v_readfirstlane') or op.startswith('v_readlane'):
            self.kind = 'valu'; self.defs = R[0]; self.uses = flat(R[1:])
        elif op.startswith('v_permlane') and 'swap' in op:
            self.kind = 'valu'; self.defs = R[0] + R[1]; self.uses = R[0] + R[1]
        elif op.startswith('v_dot2c') or op.startswith('v_dot2_'):
            self.kind = 'dot'; self.defs = R[0]; self.uses = flat(R[1:]) + (R[0] if op.startswith('v_dot2c') else [])
        elif op.startswith('v_fmac') or op.startswith('v_pk_fmac'):
            self.kind = 'valu'; self.defs = R[0]; self.uses = flat(R)
        elif op.startswith('v_add_co') or op.startswith('v_addc_co') or op.startswith('v_sub_co'):
            self.kind = 'valu'; self.defs = R[0] + R[1]; self.uses = flat(R[2:])
        elif op.startswith('v_nop'):
            self.kind = 'valu'
        elif op.startswith('v_'):
            self.kind = 'trans' if op.replace('_e32', '').replace('_e64', '') in TRANS else 'valu'
            self.defs = R[0]; self.uses = flat(R[1:])
        elif op.startswith('ds_read') or op.startswith('ds_bpermute') or op.startswith('ds_permute') or op.startswith('ds_swizzle'):
            self.kind = 'dsr'; self.defs = R[0]; self.uses = flat(R[1:])
        elif op.startswith('ds_'):
            self.kind = 'dsw'; self.uses = flat(R)
        elif op.startswith('buffer_load') or op.startswith('global_load'):
            if ' lds' in (' ' + mods) or op.startswith('global_load_lds'):
                self.kind = 'dma'; self.uses = flat(R) + ['m0']
            else:
                self.kind = 'vload'; self.defs = R[0]; self.uses = flat(R[1:])
                if 'd16' in op:
                    self.uses += R[0]
        elif op.startswith('buffer_store') or op.startswith('global_store'):
            self.kind = 'vstore'; self.uses = flat(R)
            self.wide = op.endswith('x4') or op.endswith('x3')
            self.sdata = R[0] if op.startswith('buffer') else R[1]
        elif op.startswith('buffer_atomic') or op.startswith('global_atomic'):
            self.kind = 'vstore'; self.uses = flat(R); self.wide = False
            if 'sc0' in mods:
                self.kind = 'vload'; self.defs = R[0]
        elif op.startswith('buffer_wbl2') or op.startswith('buffer_inv'):
            self.kind = 'vstore'; self.wide = False
        elif op.startswith('s_load') or op.startswith('s_memtime') or op.startswith('s_memrealtime'):
            self.kind = 'smem'; self.defs = R[0]; self.uses = flat(R[1:])
        elif op.startswith('s_'):
            self.kind = 'salu'
            if op.startswith(NO_DEF_SALU):
                self.uses = flat(R)
            else:
                self.defs = R[0]; self.uses = flat(R[1:])
                if 'saveexec' in op:
                    self.defs = self.defs + ['exec']
            if op == 's_barrier':
                self.kind = 'barrier'
        self.isvalu = self.kind in ('valu', 'trans', 'dot')
        self.states = 1
        if op == 's_nop':
            self.states = int(ops[0], 0) + 1

    def lines(self):
        out = []
        w = []
        if self.pre_vm is not None:
            w.append(f'vmcnt({min(self.pre_vm,63)})')
        if self.pre_lg is not None:
            w.append(f'lgkmcnt({min(self.pre_lg,15)})')
        if w:
            out.append('  s_waitcnt ' + ' '.join(w))
        n = self.pre_nop
        while n > 0:
            k = min(n, 16)
            out.append(f'  s_nop {k-1}')
            n -= k
        if self.text:
            out.append('  ' + self.text + (f'  ; {self.comment}' if self.comment else ''))
        return out

class Wait(Ins):
    def __init__(self, vm=None, lg_all=False, vm_all=False):
        super().__init__('s_nop 0')
        self.text = ''
        self.kind = 'wait'; self.states = 0
        self.vm_tags = vm or []
        self.lg_all = lg_all
        self.vm_all = vm_all

class Label:
    def __init__(self, name): self.name = name

class Loop:
    def __init__(self, items, n, first=0): self.items, self.n, self.first = items, n, first

class Cond:
    def __init__(self, pred, items): self.pred, self.items = pred, items

class CondOut(Cond):
    pass

class Prog:
    def __init__(self, prefix=''):
        self.stack = [[]]
        self.nlab = 0
        self.prefix = prefix
    @property
    def cur(self): return self.stack[-1]
    drop = ()
    def I(self, text, tag=None, comment=None, keep=False):
        for t in text.strip().split('\n'):
            t = t.split(';')[0].strip()
            if not t: continue
            ins = Ins(t, tag, comment)
            if ins.kind in self.drop and not keep: continue
            self.cur.append(ins)
    def wait(self, vm=None, lg_all=False, vm_all=False):
        self.cur.append(Wait(vm, lg_all, vm_all))
    def label(self, name): self.cur.append(Label(name))
    def newlabel(self, p='L'):
        self.nlab += 1
        return f'{self.prefix}{p}_{self.nlab}'
    def begin(self): self.stack.append([])
    def end(self): return self.stack.pop()
    def add(self, item): self.cur.append(item)
    def extend(self, items): self.cur.extend(items)
    def loop(self, n, body, label, close, first=0):
        self.begin(); self.label(label); body(); self.I(close); items = self.end()
        self.add(Loop(items, n, first))
    def cond(self, pred, skip_branch, body):
        lab = self.newlabel('Lskip')
        self.I(f'{skip_branch} {lab}')
        self.begin(); body(); items = self.end()
        self.add(Cond(pred, items)); self.label(lab)
    def rare(self, pred, take_branch, body):
        lo = self.newlabel('Lrare'); lb = self.newlabel('Lback')
        self.I(f'{take_branch} {lo}')
        self.begin(); self.label(lo); body(); self.I(f's_branch {lb}'); items = self.end()
        self.add(CondOut(pred, items)); self.label(lb)
    def rare_else(self, pred, take_branch, body, normal):
        lo = self.newlabel('Lrare'); lb = self.newlabel('Lback')
        self.I(f'{take_branch} {lo}')
        self.begin(); self.label(lo); body(); self.I(f's_branch {lb}'); items = self.end()
        self.add(CondOut(pred, items))
        self.begin(); normal(); n = self.end()
        self.add(Cond(lambda r, it: not pred(r, it), n)); self.label(lb)
    def ifelse(self, pred, else_branch, body1, body2):
        l_else = self.newlabel('Lelse'); l_end = self.newlabel('Lend')
        self.I(f'{else_branch} {l_else}')
        self.begin(); body1(); self.I(f's_branch {l_end}'); a = self.end()
        self.add(Cond(pred, a)); self.label(l_else)
        self.begin(); body2(); b = self.end()
        self.add(Cond(lambda r, it: not pred(r, it), b)); self.label(l_end)

def trace(items, role, it=None, out=None):
    if out is None: out = []
    for x in items:
        if isinstance(x, Ins): out.append((x, it))
        elif isinstance(x, Loop):
            for k in range(x.first, x.first + x.n):
                trace(x.items, role, k, out)
        elif isinstance(x, Cond):
            if x.pred(role, it): trace(x.items, role, it, out)
    return out

def flat(items, out=None, rare=None):
    top = out is None
    if top: out, rare = [], []
    for x in items:
        if isinstance(x, Ins): out.extend(x.lines())
        elif isinstance(x, Label): out.append(f'{x.name}:')
        elif isinstance(x, CondOut): rare.append(x)
        else: flat(x.items, out, rare)
    if top:
        while rare:
            x = rare.pop(0)
            flat(x.items, out, rare)
    return out

def ev(tag, it):
    return tag(it) if callable(tag) else tag

def upd(cur, new):
    return new if cur is None else min(cur, new)

def resolve_waits(items, roles):
    for role in roles:
        tr = trace(items, role)
        vmq = []
        lgq = []
        vm_done = 0; lg_done = 0
        pend = {}
        wsrc = {}
        for ins, it in tr:
            need_vm = None; need_lg = None
            if ins.kind == 'wait':
                for t in ins.vm_tags:
                    tv = ev(t, it)
                    idx = [i for i, x in enumerate(vmq) if x == tv]
                    if idx and idx[-1] >= vm_done:
                        need_vm = upd(need_vm, len(vmq) - 1 - idx[-1])
                if ins.vm_all and vm_done < len(vmq): need_vm = 0
                if ins.lg_all and lg_done < len(lgq): need_lg = 0
            for r in set(ins.uses) | set(ins.defs):
                if r in pend:
                    k, i = pend[r]
                    if k == 'vm' and i >= vm_done:
                        if ins.kind == 'vload' and r in ins.defs: continue
                        need_vm = upd(need_vm, len(vmq) - 1 - i)
                    if k == 'lg' and i >= lg_done:
                        n = len(lgq) - 1 - i
                        if any(x == 'smem' for x in lgq[lg_done:]): n = 0
                        need_lg = upd(need_lg, n)
            if ins.kind == 'mfma':
                for r in ins.defs:
                    i = wsrc.get(r)
                    if i is not None and i >= lg_done: need_lg = upd(need_lg, len(lgq) - 1 - i)
            if need_vm is not None:
                ins.pre_vm = upd(ins.pre_vm, need_vm); vm_done = max(vm_done, len(vmq) - min(need_vm, 63))
            if need_lg is not None:
                ins.pre_lg = upd(ins.pre_lg, need_lg); lg_done = max(lg_done, len(lgq) - min(need_lg, 15))
            if ins.op == 's_waitcnt':
                m = re.search(r'vmcnt\((\d+)\)', ins.text)
                if m: vm_done = max(vm_done, len(vmq) - int(m.group(1)))
                m = re.search(r'lgkmcnt\((\d+)\)', ins.text)
                if m: lg_done = max(lg_done, len(lgq) - int(m.group(1)))
            if ins.kind in ('vload', 'vstore', 'dma'):
                vmq.append(ev(ins.tag, it))
                if ins.kind == 'vload':
                    for r in ins.defs: pend[r] = ('vm', len(vmq) - 1)
                if len(vmq) - vm_done > 63:
                    pass
                    raise RuntimeError(f'more than 63 vm ops outstanding at {ins.text} role {role}')
            elif ins.kind in ('dsr', 'dsw', 'smem'):
                lgq.append(ins.kind)
                if ins.kind == 'smem' and not ins.op.startswith('s_load_dword '): lgq.append('smem')
                for r in ins.defs: pend[r] = ('lg', len(lgq) - 1)
                if ins.kind == 'dsw':
                    for r in ins.uses: wsrc[r] = len(lgq) - 1
            else:
                for r in ins.defs: pend.pop(r, None)

MFMA_RD = {4: 8, 8: 12}
MFMA_OVL = {4: 6, 8: 10}
MFMA_WAR = {4: 3, 8: 7}

def need_states(p, c):
    n = 0
    pd, cd, cu = set(p.defs), set(c.defs), set(c.uses)
    vdefs = {r for r in pd if r[0] in 'va' and r != 'vcc'}
    sdefs = pd - vdefs
    if p.kind == 'mfma':
        if c.kind == 'mfma':
            if pd & set(c.srcab): n = max(n, MFMA_RD[p.passes])
            if pd & set(c.srcc):
                if not (p.defs == c.srcc and p.passes == c.passes): n = max(n, MFMA_OVL[p.passes])
            elif pd & cd: n = max(n, MFMA_OVL[p.passes])
        elif c.kind not in ('salu', 'barrier', 'wait', 'smem', 'other'):
            if pd & (cu | cd): n = max(n, MFMA_RD[p.passes])
        if c.isvalu and set(p.srcc) & cd: n = max(n, MFMA_WAR[p.passes])
    if p.isvalu:
        if c.kind == 'mfma' and vdefs & cu: n = max(n, 3 if p.kind == 'dot' else 2)
        if p.kind == 'trans' and c.isvalu and c.kind != 'trans' and vdefs & cu: n = max(n, 1)
        if p.kind == 'trans' and c.kind == 'mfma' and vdefs & cu: n = max(n, 2)
        if p.kind == 'dot':
            if c.kind == 'dot' and c.op == p.op:
                srcab = set(r for o in c.ops[1:3] for r in regs_of(o))
                if vdefs & srcab: n = max(n, 3)
            elif vdefs & (cu | cd) and c.kind not in ('salu', 'barrier', 'wait'): n = max(n, 3)
        if c.op.startswith('v_permlane') and vdefs & cu: n = max(n, 2)
        if (c.op.startswith('v_readfirstlane') or c.op.startswith('v_readlane')) and vdefs & cu: n = max(n, 1)
        if 'dpp' in c.op or 'row_' in c.mods or 'quad_perm' in c.mods:
            if vdefs & cu: n = max(n, 2)
        if sdefs:
            if c.isvalu and sdefs & cu: n = max(n, 2)
            if c.kind in ('vload', 'vstore', 'dma') and sdefs & cu: n = max(n, 5)
            if c.kind == 'salu' and sdefs & cu: n = max(n, 1)
        if 'sdwa' in p.op or 'op_sel' in p.mods and not p.op.startswith('v_pk'):
            if c.isvalu and vdefs & (cu | cd): n = max(n, 1)
    if p.kind == 'salu' and 'm0' in pd and (c.kind == 'dma' or 'addtid' in c.op): n = max(n, 1)
    if p.kind == 'vstore' and getattr(p, 'wide', False) and set(p.sdata) & cd:
        n = max(n, 2 if c.isvalu else 1)
    return n

def pad_hazards(items, roles):
    changed = True
    while changed:
        changed = False
        for role in roles:
            tr = [x for x, _ in trace(items, role)]
            for j, c in enumerate(tr):
                if c.kind == 'wait': continue
                dist = c.pre_nop + (1 if (c.pre_vm is not None or c.pre_lg is not None) else 0)
                for i in range(j - 1, max(-1, j - 24), -1):
                    p = tr[i]
                    n = need_states(p, c)
                    if n > dist:
                        c.pre_nop += n - dist
                        dist = n
                        changed = True
                    dist += p.states + p.pre_nop + (1 if (p.pre_vm is not None or p.pre_lg is not None) else 0)
                    if dist >= 13: break

def finalize(items, roles):
    resolve_waits(items, roles)
    pad_hazards(items, roles)
    return flat(items)

class Regs:
    def __init__(self, kind, start, limit):
        self.kind, self.next, self.limit = kind, start, limit
        self.names = {}
    def alloc(self, n=1, align=1, name=None):
        b = (self.next + align - 1) // align * align
        self.next = b + n
        assert self.next <= self.limit, f'out of {self.kind} regs at {name}'
        if name: self.names[name] = (b, n)
        return b

def vr(b, n=1):
    return f'v{b}' if n == 1 else f'v[{b}:{b+n-1}]'
def sr(b, n=1):
    return f's{b}' if n == 1 else f's[{b}:{b+n-1}]'
```

```python
from asmlib import *
import os

HO_OFF   = 0
HO_RU    = 118 * 1024
QF_OFF   = 8 << 20
PART_OFF = 8 << 20
KVZ_OFF  = 12 << 20
STAMP_OFF = 13 << 20
ST_OFF   = 14 << 20
FL_OFF   = (14 << 20) + (512 << 10)
NONCE_OFF = (14 << 20) + (768 << 10)
CS_OFF   = 15 << 20
WS_BYTES = 16 << 20
LOG2E = 0x3fb8aa3b

def srd(p, s, base, nbytes):
    p.I(f"""s_mov_b32 s{s}, s{base}
            s_mov_b32 s{s+1}, s{base+1}
            s_mov_b32 s{s+2}, {nbytes}
            s_mov_b32 s{s+3}, 0x20000""")

def load_args(p):
    p.I("""s_load_dwordx16 s[4:19], s[0:1], 0
           s_load_dwordx4 s[20:23], s[0:1], 64
           s_load_dwordx2 s[24:25], s[0:1], 80""")
X_P, WQKV_P, WPHI_P, WO_P, W1_P, W3_P, W2_P, OUT_P, DBG_P, WS_P = 4, 6, 8, 10, 14, 16, 18, 20, 22, 24

def pk(op, d, a, b, c=None, bc=(), neg=()):
    ops = [a, b] + ([c] if c is not None else [])
    n = len(ops)
    lo, hi, txt = [], [], []
    for i, o in enumerate(ops):
        if isinstance(o, str): txt.append(o); lo.append(0); hi.append(0 if i in bc else 1)
        elif i in bc:
            assert o % 2 == 0, 'broadcast scalars must sit in even registers (op_sel=1 misbehaved on hardware)'
            txt.append(vr(o, 2)); lo.append(0); hi.append(0)
        else:
            assert o % 2 == 0, o
            txt.append(vr(o, 2)); lo.append(0); hi.append(1)
    assert d % 2 == 0
    s = f"{op} {vr(d,2)}, " + ", ".join(txt)
    if any(lo): s += " op_sel:[" + ",".join(map(str, lo)) + "]"
    if not all(hi): s += " op_sel_hi:[" + ",".join(map(str, hi)) + "]"
    if neg:
        m = "[" + ",".join('1' if i in neg else '0' for i in range(n)) + "]"
        s += f" neg_lo:{m} neg_hi:{m}"
    return s

def softmax_pm(p, P, M, sc, T):
    a, b, c, c2 = T, T+1, T+2, T+4
    scl = sc
    sc1 = scl.replace('[', '').split(':')[0] if isinstance(sc, str) else f"v{sc}"
    p.I(f"""v_max3_f32 v{a}, v{P}, v{P+1}, v{P+2}
            v_max3_f32 v{b}, -v{P}, -v{P+1}, -v{P+2}
            v_max3_f32 v{c}, v{P+3}, v{P+4}, v{P+5}
            v_max3_f32 v{c2}, -v{P+3}, -v{P+4}, -v{P+5}
            v_max3_f32 v{a}, v{a}, v{P+6}, v{P+7}
            v_max3_f32 v{b}, v{b}, -v{P+6}, -v{P+7}
            v_max_f32 v{a}, v{a}, v{c}
            v_max_f32 v{b}, v{b}, v{c2}
            v_permlane32_swap_b32 v{a}, v{b}
            v_max_f32 v{c}, v{a}, v{b}
            v_mul_f32 v{c}, {sc1}, v{c}
            v_mov_b32 v{c2}, v{c}
            v_permlane32_swap_b32 v{c}, v{c2}""")
    SMX = os.environ.get('SMX', '')
    if 'n' in SMX: p.I("s_nop 4")
    if 'f' in SMX:
        for i in range(8):
            p.I(f"v_fma_f32 v{M+i}, -v{P+i}, {sc1}, -v{c2}")
            p.I(f"v_fma_f32 v{P+i}, v{P+i}, {sc1}, -v{c}")
    elif 'o' in SMX:
        for i in range(0, 8, 2): p.I(pk("v_pk_fma_f32", M+i, P+i, scl, c2, bc=(1, 2), neg=(0, 2)))
        for i in range(0, 8, 2): p.I(pk("v_pk_fma_f32", P+i, P+i, scl, c, bc=(1, 2), neg=(2,)))
    else:
      for i in range(0, 8, 2):
        p.I(pk("v_pk_fma_f32", M+i, P+i, scl, c2, bc=(1, 2), neg=(0, 2)))
        p.I(pk("v_pk_fma_f32", P+i, P+i, scl, c, bc=(1, 2), neg=(2,)))
    if 'e' in SMX: p.I("s_nop 7")
    for i in range(8):
        p.I(f"v_exp_f32 v{M+i}, v{M+i}")
        p.I(f"v_exp_f32 v{P+i}, v{P+i}")
    p.I(pk("v_pk_add_f32", c, P, P+2)); p.I(pk("v_pk_add_f32", c2, M, M+2))
    p.I(pk("v_pk_add_f32", a, P+4, P+6)); p.I(pk("v_pk_add_f32", c2, c2, M+4))
    p.I(pk("v_pk_add_f32", c, c, a)); p.I(pk("v_pk_add_f32", c2, c2, M+6))
    p.I(f"""v_add_f32 v{a}, v{c}, v{c+1}
            v_add_f32 v{b}, v{c2}, v{c2+1}
            v_permlane32_swap_b32 v{a}, v{b}
            v_add_f32 v{c}, v{a}, v{b}
            v_rcp_f32 v{c}, v{c}
            v_mov_b32 v{c2}, v{c}
            v_permlane32_swap_b32 v{c}, v{c2}""")
    for i in range(0, 8, 2):
        p.I(pk("v_pk_mul_f32", P+i, P+i, c, bc=(1,)))
        p.I(pk("v_pk_mul_f32", M+i, M+i, c2, bc=(1,)))
    for i in range(4):
        p.I(f"v_cvt_pk_bf16_f32 v{P+i}, v{P+2*i}, v{P+2*i+1}")
        p.I(f"v_cvt_pk_bf16_f32 v{M+i}, v{M+2*i}, v{M+2*i+1}")

class Stamper:
    def __init__(self, on, sbase, kid, vreg=255):
        self.on, self.sbase, self.n, self.kid, self.v = on, sbase, 0, kid, vreg
        self.names = []
    def stamp(self, p, name):
        if not self.on: return
        skip = os.environ.get('STSKIP', '').split(',')
        if name in skip: return
        s = self.sbase
        p.I(f"{os.environ.get('STAMPOP','s_memrealtime')} s[{s}:{s+1}]")
        p.I("s_waitcnt lgkmcnt(0)")
        p.I(f"v_writelane_b32 v{self.v}, s{s}, {self.n}", keep=True)
        self.n += 1; self.names.append(name)
        assert self.n <= 16
    def stamp_dyn(self, p, name, s_it, count):
        if not self.on: return
        s = self.sbase
        p.I(f"{os.environ.get('STAMPOP','s_memrealtime')} s[{s}:{s+1}]")
        p.I(f"s_add_u32 s{s-1}, s{s_it}, {self.n}")
        p.I("s_waitcnt lgkmcnt(0)")
        p.I(f"s_lshl_b64 exec, 1, s{s-1}\n v_mov_b32 v{self.v}, s{s}\n s_mov_b64 exec, -1", keep=True)
        self.n += count; self.names += [f"{name}{k}" for k in range(count)]
        assert self.n <= 16
    def flush(self, p, ws_srd, vt, wave_s):
        if not self.on: return
        p.I(f"""s_lshl_b32 s3, s2, 3
                s_add_u32 s3, s3, s{wave_s}
                s_lshl_b32 s3, s3, 6
                s_add_u32 s3, s3, {STAMP_OFF + self.kid * (1<<19)}
                v_and_b32 v{vt}, 63, v0
                v_lshlrev_b32 v{vt}, 2, v{vt}
                s_mov_b64 exec, 0xffff
                buffer_store_dword v{self.v}, v{vt}, s[{ws_srd}:{ws_srd+3}], s3 offen""")

def kernel_desc(name, vgpr, sgpr=102):
    return f""".section .rodata,"a"
.p2align 6
.amdhsa_kernel {name}
  .amdhsa_next_free_vgpr {vgpr}
  .amdhsa_next_free_sgpr {sgpr}
  .amdhsa_accum_offset {(vgpr+3)//4*4}
  .amdhsa_group_segment_fixed_size 0
  .amdhsa_kernarg_size 88
  .amdhsa_user_sgpr_count 2
  .amdhsa_user_sgpr_kernarg_segment_ptr 1
  .amdhsa_system_sgpr_workgroup_id_x 1
.end_amdhsa_kernel
"""
def kernel_head(name):
    return f""".text
.globl {name}
.p2align 8
.type {name},@function
{name}:
"""

def flag_sample(p, vf, vaddr, S_WS, s_off):
    p.I(f"buffer_load_dwordx2 {vr(vf,2)}, v{vaddr}, s[{S_WS}:{S_WS+3}], s{s_off} offen sc1")

def flag_wait(p, vf, vaddr, S_WS, s_off, s_nonce, s_a):
    p.I(f"v_cmp_eq_u64 vcc, s[{s_nonce}:{s_nonce+1}], {vr(vf,2)}")
    p.I("s_cmp_eq_u64 vcc, -1")
    def slow():
        lab = p.newlabel('Lspin'); done = p.newlabel('Lspind')
        p.I(f"s_mov_b32 s{s_a}, 0")
        p.label(lab)
        flag_sample(p, vf, vaddr, S_WS, s_off)
        p.I("s_waitcnt vmcnt(0)")
        p.I(f"v_cmp_eq_u64 vcc, s[{s_nonce}:{s_nonce+1}], {vr(vf,2)}")
        p.I(f"""s_add_u32 s{s_a}, s{s_a}, 1
                s_cmp_ge_u32 s{s_a}, 0x40000
                s_cbranch_scc1 {done}
                s_cmp_eq_u64 vcc, -1
                s_cbranch_scc0 {lab}""")
        p.label(done)
    p.rare(lambda r, it: r.get('slow', False), "s_cbranch_scc0", slow)

def nonce_get(p, vf, vzero, S, s_off, s_nonce, s_a):
    p.I(f"v_readfirstlane_b32 s{s_nonce}, v{vf}\n v_readfirstlane_b32 s{s_nonce+1}, v{vf+1}")
    p.I(f"s_cmp_lg_u64 s[{s_nonce}:{s_nonce+1}], 0")
    def slow():
        lab = p.newlabel('Lnsp'); done = p.newlabel('Lnspd')
        p.I(f"s_mov_b32 s{s_a}, 0")
        p.label(lab)
        p.I(f"buffer_load_dwordx2 {vr(vf,2)}, v{vzero}, s[{S}:{S+3}], {s_off} offen sc1")
        p.I("s_waitcnt vmcnt(0)")
        p.I(f"v_readfirstlane_b32 s{s_nonce}, v{vf}\n v_readfirstlane_b32 s{s_nonce+1}, v{vf+1}")
        p.I(f"""s_add_u32 s{s_a}, s{s_a}, 1
                s_cmp_ge_u32 s{s_a}, 0x40000
                s_cbranch_scc1 {done}
                s_cmp_eq_u64 s[{s_nonce}:{s_nonce+1}], 0
                s_cbranch_scc1 {lab}""")
        p.label(done)
    p.rare(lambda r, it: r.get('slow', False), "s_cbranch_scc0", slow)

def flag_raise(p, vt, S_WS, s_off, s_nonce):
    p.I(f"""v_mov_b32 v{vt}, s{s_nonce}
            v_mov_b32 v{vt+1}, s{s_nonce+1}
            v_mov_b32 v{vt+2}, 0
            s_mov_b64 exec, 1""")
    p.I(f"buffer_store_dwordx2 {vr(vt,2)}, v{vt+2}, s[{S_WS}:{S_WS+3}], s{s_off} offen sc1")
    p.I("s_mov_b64 exec, -1")
```

```python
from common import *
import os

MF = "v_mfma_f32_32x32x16_bf16"

def interleave(p, mains, fills):
    n, k = len(mains), 0
    for i, m in enumerate(mains):
        m()
        upto = (len(fills) * (i + 1) + n - 1) // n
        while k < upto:
            fills[k](); k += 1

def mix(*lists):
    items = []
    for li, l in enumerate(lists):
        for j, x in enumerate(l): items.append(((j + 0.5) / len(l), li, j, x))
    items.sort(key=lambda t: t[:3])
    return [t[3] for t in items]

def gen_k1(name, stamps=False):
    OPT = os.environ.get('K1OPT', '').split(',')
    HSC = os.environ.get('HSC', '')
    p = Prog('A')
    st = Stamper(stamps, 100, 0, 8)
    S_WS, S_X, S_W1, S_W3, S_WM, S_QKV, S_PHI, S_DBG = 28, 32, 36, 40, 44, 48, 52, 56
    (s_w, s_i, s_g, s_rb, s_grp, s_rot, s_t0, s_t1, s_t2, s_t3, s_ci, s_kc, s_xoff, s_woff, s_mslot, s_it,
     s_mA, s_mB, s_rd, s_hoff, s_ds, s_qoff, s_poff, s_fl, s_koff, s_voff, s_rslot, s_col, s_sto, s_flr) = range(60, 90)
    s_cso = 93; s_csg = 94; s_pf = 95; s_pair = 96
    s_non = 90
    s_wit = 92
    lane, l16, t0, t1, t2, t3, t4, t5, vstamp, v9 = range(10)
    BASE = 10
    drop = tuple(x[5:] for x in OPT if x.startswith('drop_'))
    isA = lambda r, it: r['type'] == 'A'
    isF = lambda g: (lambda r, it: r['type'] == 'F' and r['g'] == g)
    isw0 = lambda r, it: r['w'] == 0
    isg0 = lambda r, it: r['g'] == 0
    p.I("s_cmp_ge_u32 s2, 256")
    p.I(f"s_cbranch_scc1 {name}_end")
    st.stamp(p, 'start')
    load_args(p)
    p.I(f"""v_lshrrev_b32 v{t0}, 6, v0
            v_and_b32 v{lane}, 63, v0
            s_and_b32 s{s_t0}, s2, 7
            s_lshr_b32 s{s_t1}, s2, 3
            v_readfirstlane_b32 s{s_w}, v{t0}
            s_and_b32 s{s_t2}, s{s_t1}, 7
            s_lshr_b32 s{s_ci}, s{s_t1}, 3
            s_and_b32 s{s_rb}, s{s_t0}, 1
            s_lshl_b32 s{s_rb}, s{s_rb}, 3
            s_add_u32 s{s_rb}, s{s_rb}, s{s_t2}
            s_and_b32 s{s_grp}, s{s_t0}, 6
            s_and_b32 s{s_t3}, s{s_ci}, 1
            s_add_u32 s{s_grp}, s{s_grp}, s{s_t3}
            s_lshr_b32 s{s_t0}, s{s_t0}, 1
            s_lshl_b32 s{s_t3}, s{s_t3}, 2
            s_add_u32 s{s_rot}, s{s_t0}, s{s_t3}
            s_and_b32 s{s_t3}, s{s_ci}, 2
            s_add_u32 s{s_rot}, s{s_rot}, s{s_t3}
            s_add_u32 s{s_rot}, s{s_rot}, s{s_t2}
            s_and_b32 s{s_rot}, s{s_rot}, 7
            s_and_b32 s{s_i}, s{s_w}, 3
            s_lshr_b32 s{s_g}, s{s_w}, 2
            v_lshlrev_b32 v{l16}, 4, v{lane}
            s_cmp_lt_u32 s{s_ci}, 2
            s_cbranch_scc1 {name}_proA
            s_cmp_lg_u32 s{s_g}, 0
            s_cbranch_scc1 {name}_proF1""")
    base_names = list(st.names)
    info = {}

    def xaddr_calc(xa):
        p.I(f"""v_and_b32 v{t0}, 31, v{lane}
                v_lshlrev_b32 v{t1}, 7, v{t0}
                s_lshl_b32 s{s_t0}, s{s_i}, 12
                v_add_u32 v{t1}, s{s_t0}, v{t1}
                v_bfe_u32 v{t0}, v{lane}, 1, 3
                v_lshrrev_b32 v{t2}, 5, v{lane}
                v_xor_b32 v{t0}, v{t0}, v{t2}
                v_lshl_add_u32 v{t1}, v{t0}, 4, v{t1}""")
        for t in range(4):
            p.I(f"""s_add_u32 s{s_t0}, s{s_i}, {t}
                    s_and_b32 s{s_t0}, s{s_t0}, 3
                    s_lshl_b32 s{s_t0}, s{s_t0}, 5
                    v_xor_b32 v{xa+t}, s{s_t0}, v{t1}""")
    def per_t(dst, src, ks_stride):
        for t in range(4):
            p.I(f"""s_add_u32 s{s_t0}, s{s_i}, {t}
                    s_and_b32 s{s_t0}, s{s_t0}, 3
                    s_mul_i32 s{s_t0}, s{s_t0}, {ks_stride}
                    v_add_u32 v{dst+t}, s{s_t0}, v{src}""")
    def sync_setup(typ):
        srd(p, S_WS, WS_P, WS_BYTES); srd(p, S_DBG, DBG_P, 256)
        p.I(f"""s_lshl_b32 s{s_t0}, s{s_rb}, 2
                s_add_u32 s{s_t0}, s{s_t0}, s{s_i}
                s_lshl_b32 s{s_sto}, s{s_t0}, 12
                s_add_u32 s{s_sto}, s{s_sto}, {ST_OFF + typ * 64 * 4096}
                s_lshl_b32 s{s_wit}, s{s_w}, 8
                s_lshl_b32 s{s_cso}, s{s_grp}, 1
                s_lshr_b32 s{s_t0}, s{s_rb}, 3
                s_add_u32 s{s_cso}, s{s_cso}, s{s_t0}
                s_lshl_b32 s{s_cso}, s{s_cso}, 15
                s_add_u32 s{s_cso}, s{s_cso}, {CS_OFF + typ * 16 * 32768}""")
        if typ == 0:
            p.I(f"s_add_u32 s{s_t0}, s{s_wit}, s2\n s_cmp_lg_u32 s{s_t0}, 0")
            def pub():
                p.I(f"s_memrealtime s[{s_non}:{s_non+1}]\n s_mov_b32 s{s_t0}, {NONCE_OFF}\n s_waitcnt lgkmcnt(0)")
                p.I(f"""v_mov_b32 v{t0}, s{s_non}
                        v_mov_b32 v{t1}, s{s_non+1}
                        v_mov_b32 v{t2}, 0
                        s_mov_b64 exec, 1""")
                p.I(f"buffer_store_dwordx2 {vr(t0,2)}, v{t2}, s[{S_DBG}:{S_DBG+3}], 0 offen sc1")
                p.I(f"buffer_store_dwordx2 {vr(t0,2)}, v{t2}, s[{S_WS}:{S_WS+3}], s{s_t0} offen")
                p.I("s_mov_b64 exec, -1")
            p.cond(lambda r, it: r.get('wg0', False), "s_cbranch_scc1", pub)
    def stat_ops(xr, sS, sQ):
        out = []
        for o in range(0, 4, 2):
            out += [f"v_lshlrev_b32 v{t0}, 16, v{xr+o}", f"v_and_b32 v{t1}, 0xffff0000, v{xr+o}",
                    f"v_lshlrev_b32 v{t2}, 16, v{xr+o+1}", f"v_and_b32 v{t3}, 0xffff0000, v{xr+o+1}",
                    f"v_add_f32 v{sS}, v{sS}, v{t0}", f"v_add_f32 v{sS+1}, v{sS+1}, v{t1}",
                    f"v_fmac_f32 v{sQ}, v{t0}, v{t0}", f"v_fmac_f32 v{sQ+1}, v{t1}, v{t1}",
                    f"v_add_f32 v{sS}, v{sS}, v{t2}", f"v_add_f32 v{sS+1}, v{sS+1}, v{t3}",
                    f"v_fmac_f32 v{sQ}, v{t2}, v{t2}", f"v_fmac_f32 v{sQ+1}, v{t3}, v{t3}"]
        return out
    def cs_pre(F, dst):
        for k in range(0, 16, 2):
            p.I(f"""v_lshlrev_b32 v{t0}, 16, v{F+k}
                    v_and_b32 v{t1}, 0xffff0000, v{F+k}
                    v_lshlrev_b32 v{t2}, 16, v{F+k+1}
                    v_and_b32 v{t3}, 0xffff0000, v{F+k+1}""")
            if k == 0: p.I(pk("v_pk_add_f32", t4, t0, t2))
            else:
                p.I(pk("v_pk_add_f32", t4, t4, t0)); p.I(pk("v_pk_add_f32", t4, t4, t2))
        p.I(f"""v_add_f32 v{t4}, v{t4}, v{t5}
                v_mov_b32 v{t5}, v{t4}
                v_permlane32_swap_b32 v{t4}, v{t5}
                v_add_f32 v{dst}, v{t4}, v{t5}""")
    def cs_publish(src, s_blk):
        p.I(f"""v_mov_b32 v{src+1}, s{s_non}
                s_lshl_b32 s{s_t0}, s{s_blk}, 11
                s_add_u32 s{s_t0}, s{s_t0}, s{s_cso}
                s_and_b32 s{s_t1}, s{s_rb}, 6
                s_lshl_b32 s{s_t1}, s{s_t1}, 8
                s_add_u32 s{s_t0}, s{s_t0}, s{s_t1}
                s_and_b32 s{s_t1}, s{s_rb}, 1
                s_lshl_b32 s{s_t1}, s{s_t1}, 3
                s_add_u32 s{s_t0}, s{s_t0}, s{s_t1}
                s_mov_b64 exec, 0xffffffff""")
        p.I(f"buffer_store_dwordx2 {vr(src,2)}, v{l16}, s[{S_WS}:{S_WS+3}], s{s_t0} offen sc1")
        p.I("s_mov_b64 exec, -1")
    def fetch(loads):
        last = None
        for q, sb, o in loads:
            hi = o // 4096
            if (sb, hi) != last:
                p.I(f"s_add_u32 s{s_t0}, s{sb}, {hi * 4096}"); last = (sb, hi)
            p.I(f"buffer_load_dwordx4 {vr(q,4)}, v{l16}, s[{S_WS}:{S_WS+3}], s{s_t0} offen offset:{o % 4096} sc1")
    def validate(loads):
        tags = [r for q, _, _ in loads for r in (q + 1, q + 3)]
        def test():
            for op, acc in (("min", t0), ("max", t1)):
                p.I(f"v_{op}_u32 v{acc}, v{tags[0]}, v{tags[1]}")
                for k in range(2, len(tags), 2): p.I(f"v_{op}3_u32 v{acc}, v{acc}, v{tags[k]}, v{tags[k+1]}")
            p.I(f"""v_cmp_eq_u32 vcc, s{s_non}, v{t0}
                    v_cmp_eq_u32 s[{s_pair}:{s_pair+1}], s{s_non}, v{t1}
                    s_and_b64 vcc, vcc, s[{s_pair}:{s_pair+1}]""")
        test()
        p.I("s_cmp_eq_u64 vcc, -1")
        def slow():
            lab = p.newlabel('Lval'); done = p.newlabel('Lvald')
            p.I(f"s_mov_b32 s{s_t1}, 0")
            p.label(lab)
            fetch(loads)
            p.I("s_waitcnt vmcnt(0)")
            test()
            p.I(f"""s_add_u32 s{s_t1}, s{s_t1}, 1
                    s_cmp_ge_u32 s{s_t1}, 0x40000
                    s_cbranch_scc1 {done}
                    s_cmp_eq_u64 vcc, -1
                    s_cbranch_scc0 {lab}""")
            p.label(done)
        p.rare(lambda r, it: r.get('slow', False), "s_cbranch_scc0", slow)
    def xhalf(a):
        p.I(f"""v_permlane32_swap_b32 v{a}, v{a+1}
                v_add_f32 v{a}, v{a}, v{a+1}
                v_mov_b32 v{a+1}, v{a}
                v_permlane32_swap_b32 v{a}, v{a+1}""")
    def stats_pre(sS, sQ, P):
        p.I(f"v_add_f32 v{sS}, v{sS}, v{sS+1}\n v_add_f32 v{sS+1}, v{sQ}, v{sQ+1}")
        xhalf(sS)
        p.I(f"v_mov_b32 v{P}, v{sS}\n v_mov_b32 v{P+2}, v{sS+1}")
    def stats_publish(P):
        p.I(f"""v_mov_b32 v{P+1}, s{s_non}
                v_mov_b32 v{P+3}, s{s_non}
                s_lshl_b32 s{s_t0}, s{s_grp}, 9
                s_add_u32 s{s_t0}, s{s_t0}, s{s_sto}
                s_mov_b64 exec, 0xffffffff""")
        p.I(f"buffer_store_dwordx4 {vr(P,4)}, v{l16}, s[{S_WS}:{S_WS+3}], s{s_t0} offen sc1")
        p.I("s_mov_b64 exec, -1")
    st_loads = lambda B: [(B + 4*j, s_sto, 1024*j) for j in range(4)]
    def st_addr(dst, base):
        p.I(f"""v_and_b32 v{dst}, 31, v{lane}
                v_lshlrev_b32 v{dst}, 3, v{dst}
                s_lshl_b32 s{s_t0}, s{s_i}, 8
                s_add_u32 s{s_t0}, s{s_t0}, {base}
                v_add_u32 v{dst}, s{s_t0}, v{dst}""")
    def f_consts(rstd, sd, c1, irs2):
        p.I(f"v_mul_f32 v{irs2}, v{sd}, v{sd}\n v_mul_f32 v{c1}, {0x80000000 | LOG2E}, v{rstd}")
    def stats_final(E, M, rstd, sd):
        T = t0
        p.I(f"""v_add_f32 v{E}, v{E}, v{E+4}
                v_add_f32 v{E+1}, v{E+2}, v{E+6}
                v_add_f32 v{E+8}, v{E+8}, v{E+12}
                v_add_f32 v{E+9}, v{E+10}, v{E+14}""")
        p.I(pk("v_pk_add_f32", E, E, E+8))
        xhalf(E)
        p.I(f"""v_mul_f32 v{E}, 0x3b000000, v{E}
                v_mul_f32 v{E+1}, 0x3b000000, v{E+1}
                v_fma_f32 v{E+1}, -v{E}, v{E}, v{E+1}
                v_cvt_pk_bf16_f32 v{M}, -v{E}, -v{E}
                v_max_f32 v{E+1}, 0, v{E+1}
                v_cvt_pk_bf16_f32 v{T}, v{E+1}, v{E+1}
                v_and_b32 v{T}, 0xffff0000, v{T}
                v_add_f32 v{T}, 0x3727c5ac, v{T}
                v_cvt_pk_bf16_f32 v{T}, v{T}, v{T}
                v_and_b32 v{T}, 0xffff0000, v{T}
                v_sqrt_f32 v{T}, v{T}
                v_cvt_pk_bf16_f32 v{T}, v{T}, v{T}
                v_and_b32 v{sd}, 0xffff0000, v{T}
                v_rcp_f32 v{rstd}, v{sd}""")
    def corr_prep(qa, qb, dst):
        T = t5
        p.I(f"""v_add_f32 v{qa}, v{qa}, v{qa+2}
                v_add_f32 v{qb}, v{qb}, v{qb+2}
                v_add_f32 v{qa}, v{qa}, v{qb}
                v_cvt_pk_bf16_f32 v{T}, v{qa}, v{qa}
                v_and_b32 v{T}, 0xffff0000, v{T}
                v_sub_f32 v{T}, v{qa}, v{T}
                v_cvt_pk_bf16_f32 v{dst}, v{qa}, v{T}""")
    def corr_mf(acc, src, C, M):
        p.I(f"v_mov_b32 v{C}, v{src}")
        p.I(f"{MF} {vr(acc,16)}, {vr(C,4)}, {vr(M,4)}, {vr(acc,16)}")
    def f_epi_list(acc, c1, irs2, T, soff, packed):
        L = []
        if packed:
            L += [pk("v_pk_mul_f32", T+i, acc+i, c1, bc=(1,)) for i in range(0, 8, 2)]
            L += [f"v_exp_f32 v{T+i}, v{T+i}" for i in range(8)]
            L += [pk("v_pk_mul_f32", acc+i, acc+i, acc+8+i) for i in range(0, 8, 2)]
            L += [pk("v_pk_fma_f32", T+i, T+i, irs2, irs2, bc=(1, 2)) for i in range(0, 8, 2)]
            L += [f"v_rcp_f32 v{T+i}, v{T+i}" for i in range(8)]
            L += [pk("v_pk_mul_f32", acc+i, acc+i, T+i) for i in range(0, 8, 2)]
        else:
            L += [f"v_mul_f32 v{T+i}, v{acc+i}, v{c1}" for i in range(8)]
            for i in range(8): L += [f"v_exp_f32 v{T+i}, v{T+i}", f"v_mul_f32 v{acc+i}, v{acc+i}, v{acc+8+i}"]
            L += [f"v_fma_f32 v{T+i}, v{T+i}, v{irs2}, v{irs2}" for i in range(8)]
            L += [f"v_rcp_f32 v{T+i}, v{T+i}" for i in range(2)]
            for i in range(8):
                if i + 2 < 8: L += [f"v_rcp_f32 v{T+i+2}, v{T+i+2}"]
                L += [f"v_mul_f32 v{acc+i}, v{acc+i}, v{T+i}"]
        L += [f"v_cvt_pk_bf16_f32 v{acc+i}, v{acc+2*i}, v{acc+2*i+1}" for i in range(4)]
        L += [f"buffer_store_dwordx4 {vr(acc,4)}, v{l16}, s[{S_WS}:{S_WS+3}], {soff} {HSC}"]
        return [lambda x=x: p.I(x) for x in L]
    def f_epilogue(acc, c1, irs2, T, soff):
        for f in f_epi_list(acc, c1, irs2, T, soff, True): f()
    def nonce_sample(vf):
        p.I(f"v_mov_b32 v{t0}, 0")
        p.I(f"buffer_load_dwordx2 {vr(vf,2)}, v{t0}, s[{S_DBG}:{S_DBG+3}], 0 offen sc1")
    def nonce_take(vf):
        p.I(f"v_mov_b32 v{t0}, 0")
        nonce_get(p, vf, t0, S_DBG, "0", s_non, s_t0)
    S_PF = S_PHI
    def pf_list(dummy):
        L = []
        def setup(ptr, nbytes, per):
            srd(p, S_PF, ptr, nbytes)
            p.I(f"""s_lshr_b32 s{s_pf}, s2, 3
                    s_mul_i32 s{s_pf}, s{s_pf}, {per}
                    s_add_u32 s{s_pf}, s{s_pf}, s{s_w}
                    s_lshl_b32 s{s_pf}, s{s_pf}, 10""")
        def ld():
            p.I(f"buffer_load_dwordx4 {vr(dummy,4)}, v{l16}, s[{S_PF}:{S_PF+3}], s{s_pf} offen")
            p.I(f"s_add_u32 s{s_pf}, s{s_pf}, 8192")
        if 'nopf' in OPT: return []
        L.append(lambda: (setup(W2_P, 1376*1024, 43), ld()))
        L += [ld] * 5
        L.append(lambda: (setup(WO_P, 512*1024, 16), ld()))
        L.append(ld)
        return L
    def code_pf(label, dummy, piece_s=None):
        here = p.newlabel('Lpc')
        p.I(f"s_getpc_b64 s[{s_pair}:{s_pair+1}]")
        p.label(here)
        p.I(f"""s_add_u32 s{s_pair}, s{s_pair}, {label}-{here}
                s_addc_u32 s{s_pair+1}, s{s_pair+1}, {'0' if label.startswith('k2') else '-1'}
                v_lshlrev_b32 v{dummy}, 7, v{lane}""")
        if piece_s is not None: p.I(f"v_add_u32 v{dummy}, s{piece_s}, v{dummy}")
        p.I(f"global_load_dword v{dummy}, v{dummy}, s[{s_pair}:{s_pair+1}]")
    def ifw(w, fn):
        p.I(f"s_cmp_lg_u32 s{s_w}, {w}"); p.cond(lambda r, it: r['w'] == w, "s_cbranch_scc1", fn)
    def rarew(w, fn):
        p.I(f"s_cmp_eq_u32 s{s_w}, {w}"); p.rare(lambda r, it: r['w'] == w, "s_cbranch_scc1", fn)

    FSLOT = 53376; FW1 = 16384; FW3 = 16384 + 18432 + 128
    FEX2 = 2 * FSLOT
    def ftype(g):
        V = Regs('v', BASE, 256)
        st.n = len(base_names); st.names = list(base_names)
        nb = 5 if g == 0 else 4
        b0 = 0 if g == 0 else 5
        nd = 6 if g == 0 else 7
        vd = V.alloc(7); xa = V.alloc(4); wa = V.alloc(4)
        ACC = V.alloc(16 * nb, 4)
        SET = [V.alloc(24, 4), V.alloc(24, 4)]
        XT = V.alloc(28, 4); WTB = V.alloc(32, 4)
        sS, sQ, PUBS, PUBC, PUB8, VF, vpre = WTB + 16, WTB + 18, XT + 16, XT + 20, XT + 22, XT + 24, XT + 26
        FEX = 3 * FSLOT
        floads = [(WTB, s_csg, 0), (WTB + 4, s_csg, 1024)] + (st_loads(XT) if g == 1 else [])
        floads8 = [(WTB + 8, s_cso, 16384), (WTB + 12, s_cso, 17408)]
        M = V.alloc(4, 4); C = V.alloc(4, 4); T = V.alloc(8, 4)
        c1 = V.alloc(1, 2); rstd = V.alloc(); irs2 = V.alloc(1, 2); C0 = V.alloc(5); PFD = V.alloc(4, 4)
        def dma(n, tag):
            if g == 0:
                if n == 0: p.I(f"s_add_u32 m0, s{s_mslot}, s{s_mA}")
                if n == 3: p.I(f"s_add_u32 m0, s{s_mslot}, s{s_mB}")
                S = S_W1 if n < 3 else S_W3
                p.I(f"buffer_load_dwordx4 v{vd + n % 3}, s[{S}:{S+3}], s{s_woff} offen offset:{1024*(n%3)} lds", tag=tag)
            else:
                if n == 0: p.I(f"s_add_u32 m0, s{s_mslot}, s{s_mA}")
                if n == 4: p.I(f"s_add_u32 m0, s{s_mslot}, s{s_mB}")
                if n < 4: p.I(f"buffer_load_dwordx4 v{vd+3+n}, s[{S_X}:{S_X+3}], s{s_xoff} offen offset:{1024*n} lds", tag=tag)
                else: p.I(f"buffer_load_dwordx4 v{vd+n-4}, s[{S_WM}:{S_WM+3}], s{s_woff} offen offset:{1024*(n-4)} lds", tag=tag)
        nxt = f"""s_add_u32 s{s_kc}, s{s_kc}, 1
                  s_and_b32 s{s_kc}, s{s_kc}, 7
                  s_lshl_b32 s{s_xoff}, s{s_kc}, 7
                  s_mul_i32 s{s_woff}, s{s_kc}, {64*2752}
                  s_add_u32 s{s_mslot}, s{s_mslot}, {FSLOT}
                  s_cmp_ge_u32 s{s_mslot}, {3*FSLOT}
                  s_cselect_b32 s{s_mslot}, 0, s{s_mslot}
                  s_add_u32 s{s_ds}, s{s_ds}, 1"""
        def prologue():
            p.label(f"{name}_proF{g}")
            p.I(f"""s_mul_i32 s{s_col}, s{s_grp}, 288
                    s_add_u32 s{s_col}, s{s_col}, 512
                    s_min_u32 s{s_col}, s{s_col}, 2464""")
            def wvoff(dst, q_s, m):
                p.I(f"""s_add_u32 s{s_t0}, s{q_s}, {m}
                        s_lshl_b32 s{s_t0}, s{s_t0}, 6
                        v_add_u32 v{t0}, s{s_t0}, v{lane}
                        v_mul_u32_u24 v{t1}, 3641, v{t0}
                        v_lshrrev_b32 v{t1}, 16, v{t1}
                        v_mul_u32_u24 v{t2}, {2752 - 18*16}, v{t1}
                        v_lshl_add_u32 v{t0}, v{t0}, 4, v{t2}
                        s_sub_u32 s{s_t0}, s{s_col}, {1024*m}
                        v_add_u32 v{dst}, s{s_t0}, v{t0}""")
            if g == 0:
                p.I(f"s_mul_i32 s{s_t2}, s{s_i}, 3")
                for m in range(3): wvoff(vd + m, s_t2, m)
                p.I(f"""s_lshl_b32 s{s_mA}, s{s_t2}, 10
                        s_add_u32 s{s_mB}, s{s_mA}, {FW3}
                        s_add_u32 s{s_mA}, s{s_mA}, {FW1}""")
            else:
                p.I(f"""s_lshl_b32 s{s_t0}, s{s_rb}, 2
                        s_add_u32 s{s_t0}, s{s_t0}, s{s_i}
                        s_lshl_b32 s{s_t0}, s{s_t0}, 15
                        v_lshrrev_b32 v{t0}, 3, v{lane}
                        v_lshlrev_b32 v{t0}, 10, v{t0}
                        v_add_u32 v{t0}, s{s_t0}, v{t0}
                        v_and_b32 v{t1}, 7, v{lane}
                        v_lshrrev_b32 v{t2}, 4, v{lane}
                        v_xor_b32 v{t1}, v{t1}, v{t2}
                        v_lshl_add_u32 v{vd+3}, v{t1}, 4, v{t0}
                        v_xor_b32 v{t0}, 64, v{vd+3}
                        v_add_u32 v{vd+4}, {7168}, v{t0}
                        v_add_u32 v{vd+5}, {2*7168}, v{vd+3}
                        v_add_u32 v{vd+6}, {3*7168}, v{t0}
                        s_and_b32 s{s_t2}, s{s_i}, 1
                        s_mul_i32 s{s_t2}, s{s_t2}, 3
                        s_add_u32 s{s_t2}, s{s_t2}, 12""")
                for m in range(3): wvoff(vd + m, s_t2, m)
                p.I(f"""s_lshl_b32 s{s_mB}, s{s_t2}, 10
                        s_lshr_b32 s{s_t0}, s{s_i}, 1
                        s_mul_i32 s{s_t0}, s{s_t0}, {FW3-FW1}
                        s_add_u32 s{s_mB}, s{s_mB}, s{s_t0}
                        s_add_u32 s{s_mB}, s{s_mB}, {FW1}
                        s_lshl_b32 s{s_mA}, s{s_i}, 12""")
            p.I(f"""s_mov_b32 s{s_kc}, s{s_rot}
                    s_lshl_b32 s{s_xoff}, s{s_kc}, 7
                    s_mul_i32 s{s_woff}, s{s_kc}, {64*2752}
                    s_mov_b32 s{s_mslot}, 0
                    s_mov_b32 s{s_ds}, 0""")
            p.I("s_waitcnt lgkmcnt(0)")
            if g == 0:
                srd(p, S_W1, W1_P, 512*2752); srd(p, S_W3, W3_P, 512*2752)
            else:
                srd(p, S_X, X_P, 2048*1024)
                p.I(f"""s_cmp_lt_u32 s{s_i}, 2
                        s_cselect_b64 s[{S_WM}:{S_WM+1}], s[{W1_P}:{W1_P+1}], s[{W3_P}:{W3_P+1}]
                        s_mov_b32 s{S_WM+2}, {512*2752}
                        s_mov_b32 s{S_WM+3}, 0x20000""")
            st.stamp(p, 'args')
            for n in range(nd): dma(n, ('d', 0))
            p.I(nxt)
            p.I(f"s_branch {name}_bodyF{g}")
        split = [int(x) for x in os.environ.get('FSPLIT%d' % g, '2,2,1,1' if g == 0 else '2,2,2,1').split(',')]
        assert sum(split) == nd
        ofs = [sum(split[:k]) for k in range(5)]
        def body():
            p.label(f"{name}_bodyF{g}")
            for n in range(nd): dma(n, ('d', 1))
            p.I(nxt)
            xaddr_calc(xa)
            p.I(f"""v_bfe_u32 v{t0}, v{lane}, 4, 1
                    v_mul_u32_u24 v{t0}, {FW3-FW1}, v{t0}
                    v_lshrrev_b32 v{t1}, 5, v{lane}
                    v_bfe_u32 v{t2}, v{lane}, 2, 2
                    v_lshl_add_u32 v{t1}, v{t1}, 3, v{t2}
                    v_mul_u32_u24 v{t1}, 288, v{t1}
                    v_add_u32 v{t0}, v{t0}, v{t1}
                    v_and_b32 v{t1}, 3, v{lane}
                    v_lshl_add_u32 v{t0}, v{t1}, 3, v{t0}
                    v_add_u32 v{t3}, {FW1 + 32*b0}, v{t0}
                    s_lshl_b32 s{s_t0}, s{s_w}, 5
                    s_add_u32 s{s_t0}, s{s_t0}, {FW1}
                    v_add_u32 v{vpre}, s{s_t0}, v{t0}""")
            per_t(wa, t3, 16 * 288)
            for i in range(0, 16 * nb, 2): p.I(f"v_mov_b64 {vr(ACC+i,2)}, 0")
            for r in [sS, sS+1, sQ, sQ+1, M+1, M+2, M+3, C+1, C+2, C+3]: p.I(f"v_mov_b32 v{r}, 0")
            sync_setup(1)
            p.I(f"""s_lshl_b32 s{s_hoff}, s{s_rb}, 2
                    s_add_u32 s{s_hoff}, s{s_hoff}, s{s_i}
                    s_mul_i32 s{s_hoff}, s{s_hoff}, 118
                    s_lshr_b32 s{s_t1}, s{s_col}, 5
                    s_add_u32 s{s_hoff}, s{s_hoff}, s{s_t1}
                    s_add_u32 s{s_hoff}, s{s_hoff}, {b0}
                    s_lshl_b32 s{s_hoff}, s{s_hoff}, 10
                    s_mov_b32 s{s_it}, 0
                    s_mov_b32 s{s_rslot}, 0
                    s_mov_b32 s{s_t3}, {FSLOT}""")
            def reads(S, t):
                out = [lambda: p.I(f"ds_read_b128 {vr(S,4)}, v{xa+t}")]
                for b in range(nb):
                    out.append(lambda b=b: p.I(f"ds_read_b64_tr_b16 {vr(S+4+4*b,2)}, v{wa+t} offset:{32*b}"))
                    out.append(lambda b=b: p.I(f"ds_read_b64_tr_b16 {vr(S+4+4*b+2,2)}, v{wa+t} offset:{32*b+1152}"))
                return out
            def mf(S):
                return [lambda b=b: p.I(f"{MF} {vr(ACC+16*b,16)}, {vr(S+4+4*b,4)}, {vr(S,4)}, {vr(ACC+16*b,16)}") for b in range(nb)]
            def dgroup(k, tagf, valid):
                lo, hi = ofs[k], ofs[k+1]
                if lo == hi: return []
                return [lambda: (p.I(f"s_cmp_gt_u32 s{s_ds}, 7"),
                                 p.cond(valid, "s_cbranch_scc1", lambda: [dma(n, tagf) for n in range(lo, hi)]))]
            def at_it(k, w0, fn):
                p.I(f"s_cmp_lg_u32 s{s_wit if w0 else s_it}, {k}")
                p.cond(lambda r, it: it == k and (not w0 or r['w'] == 0), "s_cbranch_scc1", fn)
            def special(its, fn):
                p.I(f"s_bitcmp1_b32 {sum(1 << k for k in its)}, s{s_it}")
                p.rare(lambda r, it: it in its, "s_cbranch_scc1", fn)
            p.I(f"s_lshl_b32 s{s_csg}, s{s_w}, 11\n s_add_u32 s{s_csg}, s{s_csg}, s{s_cso}")
            nonce_sample(VF)
            p.wait(vm=[('d', 0)])
            p.I("s_barrier")
            st.stamp(p, 'bar0')
            def pre_reads(extra):
                for t in range(4):
                    for h in range(2):
                        p.I(f"ds_read_b64_tr_b16 {vr(SET[1]+4*t+2*h,2)}, v{vpre} offset:{16*288*t + 1152*h + extra}")
            pre_reads(0)
            if g == 1:
                XS = [XT, XT + 4, XT + 8, XT + 12]
                for t in range(4): p.I(f"ds_read_b128 {vr(XS[t],4)}, v{xa+t}")
            for n in range(split[0]): dma(n, ('d', 2))
            cs_pre(SET[1], PUBC)
            if g == 1:
                for t in range(4): p.I("\n".join(stat_ops(XS[t], sS, sQ)))
                stats_pre(sS, sQ, PUBS)
            else:
                ifw(0, lambda: (pre_reads(256), cs_pre(SET[1], PUB8)))
            for r in reads(SET[0], 0): r()
            st.stamp(p, 'pre')
            FGET = int(os.environ.get('FGET', '3'))
            def lbody():
                v2 = lambda r, it: it + 2 <= 7
                v3 = lambda r, it: it + 3 <= 7
                tg2 = lambda it: ('d', it + 2)
                tg3 = lambda it: ('d', it + 3)
                interleave(p, mf(SET[0]), mix(reads(SET[1], 1), dgroup(1, tg2, v2)))
                interleave(p, mf(SET[1]), mix(reads(SET[0], 2), dgroup(2, tg2, v2)))
                slot = [lambda: p.I(nxt), lambda: p.I(f"""s_add_u32 s{s_rslot}, s{s_rslot}, {FSLOT}
                        s_cmp_ge_u32 s{s_rslot}, {3*FSLOT}
                        s_cselect_b32 s{s_rd}, {(-2*FSLOT) & 0xffffffff}, s{s_t3}
                        s_cselect_b32 s{s_rslot}, 0, s{s_rslot}""")]
                interleave(p, mf(SET[0]), mix(reads(SET[1], 3), dgroup(3, tg2, v2) + slot))
                w = lambda: p.wait(vm=[lambda it: ('d', it + 1)], lg_all=True)
                p.I(f"s_bitcmp1_b32 {(1 << 1) | (1 << (FGET + 1))}, s{s_it}")
                p.rare_else(lambda r, it: it in (1, FGET + 1), "s_cbranch_scc1", w, w)
                p.I("s_barrier")
                if 'fine' in OPT: st.stamp_dyn(p, 'b', s_it, 6)
                adr = [lambda t=t: p.I(f"v_add_u32 v{xa+t}, s{s_rd}, v{xa+t}\n v_add_u32 v{wa+t}, s{s_rd}, v{wa+t}") for t in range(4)]
                def publish():
                    nonce_take(VF)
                    cs_publish(PUBC, s_w)
                    if g == 1: stats_publish(PUBS)
                    else: ifw(0, lambda: (p.I(f"s_mov_b32 s{s_t2}, 8"), cs_publish(PUB8, s_t2)))
                def get():
                    fetch(floads)
                    if g == 0: ifw(0, lambda: fetch(floads8))
                def digest():
                    validate(floads)
                    corr_prep(WTB, WTB + 4, t2)
                    p.I(f"""v_lshlrev_b32 v{t3}, 2, v{lane}
                            s_lshl_b32 s{s_t0}, s{s_w}, 8
                            s_add_u32 s{s_t0}, s{s_t0}, {FEX}
                            v_add_u32 v{t3}, s{s_t0}, v{t3}""")
                    p.I(f"ds_write_b32 v{t3}, v{t2}")
                    if g == 0:
                        ifw(0, lambda: (validate(floads8), corr_prep(WTB + 8, WTB + 12, t2), p.I(f"ds_write_b32 v{t3}, v{t2} offset:2048")))
                    else:
                        stats_final(XT, M, rstd, M + 1)
                        st_addr(t3, FEX + 2304)
                        p.I(f"ds_write_b64 v{t3}, {vr(M,2)}")
                def postsync():
                    def f():
                        at_it(0, False, publish)
                        at_it(FGET, False, get)
                        at_it(5, False, digest)
                    special((0, FGET, 5), f)
                interleave(p, mf(SET[1]), [adr[0]] + mix(reads(SET[0], 0), adr[1:], dgroup(0, tg3, v3)) + [postsync])
                p.I(f"s_add_u32 s{s_it}, s{s_it}, 1\n s_add_u32 s{s_wit}, s{s_wit}, 1")
            p.drop = drop
            p.loop(6, lbody, f"{name}_f{g}", f"s_cmp_lt_u32 s{s_it}, 6\n s_cbranch_scc1 {name}_f{g}")
            p.drop = ()
            st.stamp(p, 'loop')
            Xr = lambda s, t: SET[0] if (s, t) == (6, 0) else XT + 4 * (4 * (s - 6) + t - 1)
            order = [(0, 6), (1, 6), (2, 6), (0, 7), (1, 7), (2, 7)] + [(b, s) for b in range(3, nb) for s in (6, 7)]
            bufs = [SET[1], WTB, WTB + 16]
            ub = {u: bufs[k % 3] for k, u in enumerate(order)}
            Wr = lambda b, s, t: SET[0] + 4 + 4*b if (s, t) == (6, 0) else ub[(b, s)] + 4*t
            def wread(u):
                b, s = u
                return [lambda t=t, h=h: p.I(f"ds_read_b64_tr_b16 {vr(Wr(b,s,t)+2*h,2)}, v{wa+t} offset:{32*b + 1152*h + (s-6)*FSLOT}")
                        for t in range(4) if (s, t) != (6, 0) for h in range(2)]
            def unit(u):
                b, s = u
                return [lambda t=t: p.I(f"{MF} {vr(ACC+16*b,16)}, {vr(Wr(b,s,t),4)}, {vr(Xr(s,t),4)}, {vr(ACC+16*b,16)}") for t in range(4)]
            xread = lambda s: [lambda t=t: p.I(f"ds_read_b128 {vr(Xr(s,t),4)}, v{xa+t} offset:{(s-6)*FSLOT}") for t in range(4) if (s, t) != (6, 0)]
            cmf = lambda b: corr_mf(ACC + 16*b, C0 + b, C, M)
            def epi(b, packed):
                L = f_epi_list(ACC + 16*b, c1, irs2, T, f"s{s_hoff} offen offset:{1024*b}" if b < 4 else f"s{s_t2} offen", packed)
                return L
            p.I(f"s_add_u32 s{s_t2}, s{s_hoff}, 4096")
            for f in xread(6) + wread(order[0]): f()
            interleave(p, unit(order[0]), wread(order[1]))
            interleave(p, unit(order[1]), wread(order[2]))
            p.wait(vm=[('d', 7)], lg_all=True)
            p.I("s_barrier")
            p.I(f"v_lshlrev_b32 v{t3}, 2, v{lane}\n v_add_u32 v{t3}, {FEX + 256*b0}, v{t3}")
            for b in range(nb): p.I(f"ds_read_b32 v{C0+b}, v{t3} offset:{256*b}")
            if g == 0:
                st_addr(t2, FEX + 2304)
                p.I(f"ds_read_b64 {vr(M,2)}, v{t2}")
            def consts():
                p.I(f"v_rcp_f32 v{rstd}, v{M+1}")
                f_consts(rstd, M + 1, c1, irs2)
                p.I(f"v_mov_b32 v{M+1}, 0")
            PKT = 'pktail' in OPT
            CH = int(os.environ.get('FCH', '30'))
            work = []
            pfl = pf_list(PFD)
            fresh = False
            for k in range(2, len(order)):
                u = order[k]
                nxtr = (xread(7) if k == 2 else []) + (wread(order[k + 1]) if k + 1 < len(order) else []) + ([consts] if k == 2 else [])
                take, work = work[:CH], work[CH:]
                nxtr, pfl = nxtr + pfl[:2], pfl[2:]
                ms = unit(u)
                if fresh:
                    interleave(p, ms[:2], nxtr); interleave(p, ms[2:], take)
                else:
                    interleave(p, ms, mix(nxtr, take))
                fresh = False
                if u[1] == 7:
                    cmf(u[0])
                    fresh = not work
                    work = work + epi(u[0], PKT or k + 1 == len(order))
            for f in work: f()
            st.stamp(p, 'end')
            st.flush(p, S_WS, t0, s_w)
            p.I(f"s_endpgm")
        p.begin(); prologue(); pro = p.end()
        p.begin(); body(); bod = p.end()
        info[f'F{g}'] = ([w for w in range(256) if (w >> 6) >= 2], [4*g + k for k in range(4)], list(st.names))
        return pro, bod, V.next

    def atype():
        V = Regs('v', BASE, 256)
        st.n = len(base_names); st.names = list(base_names)
        vx = V.alloc(2); vw = V.alloc(); vf = V.alloc()
        xa = V.alloc(4); wa = V.alloc(4); fa = V.alloc(4)
        cs = V.alloc(2, 2); vpre = V.alloc(2); sS = V.alloc(2, 2); sQ = V.alloc(2)
        rstd = V.alloc(1, 2); sd = V.alloc(); c1 = t0; irs2 = t2
        X = V.alloc(128, 4)
        AK, AV, AQ, AF = [V.alloc(16, 4) for _ in range(4)]
        SET = [V.alloc(8, 4), V.alloc(8, 4)]
        WP = V.alloc(8, 4); M = WP + 4
        C = V.alloc(4, 4)
        VF = AF + 8
        SL = 32768
        AGET = int(os.environ.get('AGET', '5'))
        EX2, TP, TV = 36864, 40960, 73728
        p1base = lambda s: (s % 4) * SL
        p2base = lambda s: [4*SL, 4*SL+16384, 0, 16384, 3*SL, 3*SL+16384, 4*SL, 4*SL+16384][s]
        def kc_setup(s):
            p.I(f"s_add_u32 s{s_kc}, s{s_rot}, {s}\n s_and_b32 s{s_kc}, s{s_kc}, 7")
        dq = []
        def mk1(s):
            tag = ('d', s); b = p1base(s)
            def d0():
                kc_setup(s)
                p.I(f"s_lshl_b32 s{s_xoff}, s{s_kc}, 7\n s_add_u32 m0, s{s_mA}, {b}\n s_mul_i32 s{s_woff}, s{s_kc}, {64*3072}")
                p.I(f"buffer_load_dwordx4 v{vx}, s[{S_X}:{S_X+3}], s{s_xoff} offen lds", tag=tag)
            def d1(): p.I(f"buffer_load_dwordx4 v{vx+1}, s[{S_X}:{S_X+3}], s{s_xoff} offen offset:1024 lds", tag=tag)
            def d2():
                p.I(f"s_add_u32 m0, s{s_mB}, {b + 16384 - 1024}\n s_add_u32 s{s_voff}, s{s_woff}, 2048")
                p.I(f"buffer_load_dwordx4 v{vw}, s[{S_QKV}:{S_QKV+3}], s{s_woff} offen offset:1024 lds", tag=tag)
            def d3():
                p.I(f"s_add_u32 m0, s{s_mB}, {b + 24576}")
                p.I(f"buffer_load_dwordx4 v{vw}, s[{S_QKV}:{S_QKV+3}], s{s_voff} offen lds", tag=tag)
            need = None if s < 4 else s - 2
            return [(d0, need), (d1, need), (d2, need), (d3, need)]
        def mk2(s):
            tag = ('d', 8 + s); b = p2base(s)
            def d0():
                kc_setup(s)
                p.I(f"s_mul_i32 s{s_woff}, s{s_kc}, {64*3072}\n s_add_u32 m0, s{s_mB}, {b}\n s_mul_i32 s{s_voff}, s{s_kc}, {64*2752}")
                p.I(f"buffer_load_dwordx4 v{vw}, s[{S_QKV}:{S_QKV+3}], s{s_woff} offen lds", tag=tag)
            def d1():
                p.I(f"s_add_u32 m0, s{s_mB}, {b + 8192}")
                p.I(f"buffer_load_dwordx4 v{vf}, s[{S_WM}:{S_WM+3}], s{s_voff} offen lds", tag=tag)
            need = [None, 4, 6, 6, 9, 9, 11, 11][s]
            return [(d0, need), (d1, need)]
        dq += mk1(0) + mk1(1) + mk2(0)
        for s in range(2, 8): dq += mk1(s)
        for s in range(1, 8): dq += mk2(s)
        npop = [0]
        passed = [-1]
        def pop(n=1):
            for _ in range(n):
                if not dq: return
                f, need = dq[0]
                if need is not None and need > passed[0]: return
                dq.pop(0); f(); npop[0] += 1
        def prologue():
            p.label(f"{name}_proA")
            p.I(f"""s_lshl_b32 s{s_t0}, s{s_rb}, 3
                    s_add_u32 s{s_t0}, s{s_t0}, s{s_w}
                    s_lshl_b32 s{s_t0}, s{s_t0}, 14
                    v_lshrrev_b32 v{t0}, 3, v{lane}
                    v_lshlrev_b32 v{t1}, 10, v{t0}
                    v_add_u32 v{t1}, s{s_t0}, v{t1}
                    v_and_b32 v{t2}, 7, v{lane}
                    v_lshrrev_b32 v{t3}, 4, v{lane}
                    v_xor_b32 v{t3}, v{t2}, v{t3}
                    v_lshl_add_u32 v{vx}, v{t3}, 4, v{t1}
                    v_xor_b32 v{t1}, 64, v{vx}
                    v_add_u32 v{vx+1}, 7168, v{t1}
                    s_lshl_b32 s{s_t0}, s{s_w}, 3
                    v_add_u32 v{t0}, s{s_t0}, v{t0}
                    v_mul_u32_u24 v{t0}, 3072, v{t0}
                    v_bfe_u32 v{t1}, v{lane}, 4, 1
                    v_lshlrev_b32 v{t1}, 2, v{t1}
                    v_xor_b32 v{t1}, v{t1}, v{t2}
                    v_lshl_add_u32 v{t0}, v{t1}, 4, v{t0}
                    s_lshl_b32 s{s_t0}, s{s_grp}, 7
                    v_add_u32 v{vw}, s{s_t0}, v{t0}
                    s_lshl_b32 s{s_mA}, s{s_w}, 11
                    s_lshl_b32 s{s_mB}, s{s_w}, 10""")
            p.I("s_waitcnt lgkmcnt(0)")
            srd(p, S_X, X_P, 2048*1024); srd(p, S_QKV, WQKV_P, 512*3072)
            st.stamp(p, 'args')
            pop(4)
        def body():
            sync_setup(0)
            pop(4)
            p.I(f"""v_lshrrev_b32 v{t0}, 2, v{lane}
                    s_lshl_b32 s{s_t0}, s{s_i}, 4
                    v_add_u32 v{t0}, s{s_t0}, v{t0}
                    v_mul_u32_u24 v{t0}, 2752, v{t0}
                    v_and_b32 v{t1}, 3, v{lane}
                    s_lshl_b32 s{s_t0}, s{s_g}, 1
                    v_xor_b32 v{t1}, s{s_t0}, v{t1}
                    v_lshl_add_u32 v{t0}, v{t1}, 4, v{t0}
                    s_lshl_b32 s{s_t0}, s{s_grp}, 6
                    v_add_u32 v{vf}, s{s_t0}, v{t0}
                    s_cmp_eq_u32 s{s_g}, 0
                    s_cselect_b64 s[{S_WM}:{S_WM+1}], s[{W1_P}:{W1_P+1}], s[{W3_P}:{W3_P+1}]
                    s_mov_b32 s{S_WM+2}, {512*2752}
                    s_mov_b32 s{S_WM+3}, 0x20000""")
            srd(p, S_PHI, WPHI_P, 32*512)
            xaddr_calc(xa)
            p.I(f"""v_lshrrev_b32 v{t0}, 5, v{lane}
                    v_bfe_u32 v{t1}, v{lane}, 2, 2
                    v_lshl_add_u32 v{t0}, v{t0}, 3, v{t1}
                    v_bfe_u32 v{t1}, v{lane}, 4, 1
                    v_bfe_u32 v{t2}, v{lane}, 1, 1
                    v_lshl_add_u32 v{t2}, v{t1}, 1, v{t2}
                    s_lshl_b32 s{s_t1}, s{s_g}, 2
                    v_add_u32 v{t2}, s{s_t1}, v{t2}
                    v_bfe_u32 v{t3}, v{lane}, 3, 1
                    v_lshlrev_b32 v{t3}, 2, v{t3}
                    v_xor_b32 v{t2}, v{t2}, v{t3}
                    v_lshlrev_b32 v{t2}, 4, v{t2}
                    v_lshl_add_u32 v{t2}, v{t0}, 7, v{t2}
                    v_and_b32 v{t3}, 1, v{lane}
                    v_lshl_add_u32 v{fa}, v{t3}, 3, v{t2}
                    s_lshr_b32 s{s_t1}, s{s_i}, 1
                    s_xor_b32 s{s_t1}, s{s_t1}, s{s_g}
                    s_lshl_b32 s{s_t2}, s{s_t1}, 6
                    v_xor_b32 v{vpre}, s{s_t2}, v{fa}
                    s_lshl_b32 s{s_t3}, s{s_t1}, 5""")
            per_t(wa, fa, 2048)
            p.I(f"""v_lshlrev_b32 v{t0}, 6, v{t0}
                    v_lshl_add_u32 v{t0}, v{t1}, 12, v{t0}
                    v_bfe_u32 v{t2}, v{lane}, 1, 1
                    s_lshl_b32 s{s_t1}, s{s_g}, 1
                    v_add_u32 v{t2}, s{s_t1}, v{t2}
                    v_lshlrev_b32 v{t1}, 1, v{t1}
                    v_xor_b32 v{t2}, v{t2}, v{t1}
                    v_lshl_add_u32 v{t0}, v{t2}, 4, v{t0}
                    v_lshl_add_u32 v{t3}, v{t3}, 3, v{t0}
                    v_xor_b32 v{vpre+1}, s{s_t3}, v{t3}""")
            per_t(fa, t3, 1024)
            for r in [sS, sS+1, sQ, sQ+1]: p.I(f"v_mov_b32 v{r}, 0")
            def wphi_read():
                p.I(f"""v_bfe_u32 v{t0}, v{lane}, 4, 1
                        v_lshlrev_b32 v{t0}, 9, v{t0}
                        v_lshrrev_b32 v{t1}, 5, v{lane}
                        v_lshl_add_u32 v{t0}, v{t1}, 7, v{t0}
                        v_and_b32 v{t1}, 15, v{lane}
                        v_lshl_add_u32 v{t0}, v{t1}, 3, v{t0}
                        s_lshl_b32 s{s_t0}, s{s_w}, 10
                        s_add_u32 s{s_t0}, s{s_t0}, {4*SL+16384}
                        v_add_u32 v{t0}, s{s_t0}, v{t0}""")
                p.wait(vm=['wphi'])
                p.I(f"ds_read_b64_tr_b16 {vr(WP,2)}, v{t0}\n ds_read_b64_tr_b16 {vr(WP+2,2)}, v{t0} offset:256")
            p.I(f"""s_lshl_b32 s{s_t0}, s{s_grp}, 1
                    s_add_u32 s{s_t0}, s{s_t0}, s{s_g}
                    s_lshl_b32 s{s_t0}, s{s_t0}, 10
                    s_add_u32 m0, s{s_mB}, {4*SL+16384}""")
            p.I(f"buffer_load_dwordx4 v{l16}, s[{S_PHI}:{S_PHI+3}], s{s_t0} offen lds", tag='wphi')
            win = {xa: 0, wa: 0, fa: 0}
            def off(reg, target):
                if not (0 <= target - win[reg] <= 65535 - 1024):
                    nw = target // 65536 * 65536
                    d = nw - win[reg]
                    for t in range(4): p.I(f"v_add_u32 v{reg+t}, {d & 0xffffffff}, v{reg+t}")
                    win[reg] = nw
                return target - win[reg]
            def reads(s, t, S):
                if s < 8:
                    b = p1base(s)
                    return [lambda: p.I(f"ds_read_b128 {vr(X+16*s+4*t,4)}, v{xa+t} offset:{off(xa,b)}"),
                            lambda: p.I(f"ds_read_b64_tr_b16 {vr(S,2)}, v{wa+t} offset:{off(wa,b+16384)}"),
                            lambda: p.I(f"ds_read_b64_tr_b16 {vr(S+2,2)}, v{wa+t} offset:{off(wa,b+16384+512)}"),
                            lambda: p.I(f"ds_read_b64_tr_b16 {vr(S+4,2)}, v{wa+t} offset:{off(wa,b+24576)}"),
                            lambda: p.I(f"ds_read_b64_tr_b16 {vr(S+6,2)}, v{wa+t} offset:{off(wa,b+24576+512)}")]
                b = p2base(s - 8)
                return [lambda: p.I(f"ds_read_b64_tr_b16 {vr(S,2)}, v{wa+t} offset:{off(wa,b)}"),
                        lambda: p.I(f"ds_read_b64_tr_b16 {vr(S+2,2)}, v{wa+t} offset:{off(wa,b+512)}"),
                        lambda: p.I(f"ds_read_b64_tr_b16 {vr(S+4,2)}, v{fa+t} offset:{off(fa,b+8192)}"),
                        lambda: p.I(f"ds_read_b64_tr_b16 {vr(S+6,2)}, v{fa+t} offset:{off(fa,b+8192+256)}")]
            def mf(s, t, S):
                a0, a1 = (AK, AV) if s < 8 else (AQ, AF)
                xr = X + 16 * (s % 8) + 4 * t
                first = (s % 8 == 0 and t == 0)
                return [lambda: p.I(f"{MF} {vr(a0,16)}, {vr(S,4)}, {vr(xr,4)}, {0 if first else vr(a0,16)}"),
                        lambda: p.I(f"{MF} {vr(a1,16)}, {vr(S+4,4)}, {vr(xr,4)}, {0 if first else vr(a1,16)}")]
            def ifg0(fn):
                p.I(f"s_cmp_lg_u32 s{s_g}, 0"); p.cond(isg0, "s_cbranch_scc1", fn)
            def barrier(j, pre=None, lg=False):
                if pre: pre()
                w = lambda: p.wait(vm=[('d', j)], lg_all=lg)
                if j in (AGET + 1, AGET + 2, 10, 14, 15):
                    p.I(f"s_cmp_lg_u32 s{s_g}, 0"); p.rare_else(lambda r, it: r['g'] == 1, "s_cbranch_scc1", w, w)
                else: w()
                p.I("s_barrier")
                passed[0] = j
                if 'fine' in OPT and j in (2, 3, 4, 5, 6, 7): st.stamp(p, f'b{j}')
            AEX = SL
            loadsC = [(AQ, s_csg, 0), (AQ + 4, s_csg, 1024)]
            loadsC2 = [(AK, s_csg, 8192), (AK + 4, s_csg, 9216)]
            loadsS = st_loads(AQ)
            def c_digest(loads):
                validate(loads)
                corr_prep(loads[0][0], loads[1][0], t2)
                p.I(f"""v_lshlrev_b32 v{t3}, 2, v{lane}
                        s_lshl_b32 s{s_t0}, s{s_i}, 8
                        s_add_u32 s{s_t0}, s{s_t0}, {AEX}
                        v_add_u32 v{t3}, s{s_t0}, v{t3}""")
                p.I(f"ds_write_b32 v{t3}, v{t2}")
            def s_digest():
                validate(loadsS)
                stats_final(AQ, M, rstd, M + 1)
                st_addr(t3, AEX + 1024)
                p.I(f"ds_write_b64 v{t3}, {vr(M,2)}")
            def c_read():
                p.I(f"""v_lshlrev_b32 v{t4}, 2, v{lane}
                        s_lshl_b32 s{s_t0}, s{s_g}, 9
                        s_add_u32 s{s_t0}, s{s_t0}, {AEX}
                        v_add_u32 v{t4}, s{s_t0}, v{t4}""")
                p.I(f"ds_read_b32 v{t2}, v{t4}\n ds_read_b32 v{t3}, v{t4} offset:256")
            def k_epilogue():
                E = SET[1]
                c_read()
                st_addr(t4, AEX + 1024)
                p.I(f"ds_read_b64 {vr(M,2)}, v{t4}")
                for r in (M+2, M+3, C+1, C+2, C+3): p.I(f"v_mov_b32 v{r}, 0")
                p.I(f"v_mov_b32 v{sd}, v{M+1}\n v_rcp_f32 v{rstd}, v{M+1}\n v_mov_b32 v{M+1}, 0")
                corr_mf(AK, t2, C, M)
                corr_mf(AV, t3, C, M)
                p.I(f"""v_and_b32 v{t0}, 31, v{lane}
                        s_lshl_b32 s{s_t0}, s{s_i}, 5
                        v_add_u32 v{t0}, s{s_t0}, v{t0}
                        v_lshrrev_b32 v{t1}, 5, v{lane}
                        v_mul_u32_u24 v{t2}, 40, v{t0}
                        v_lshl_add_u32 v{t2}, v{t1}, 3, v{t2}
                        s_mul_i32 s{s_t0}, s{s_g}, 10240
                        s_add_u32 s{s_t0}, s{s_t0}, {TV}
                        v_add_u32 v{sS}, s{s_t0}, v{t2}
                        v_bfe_u32 v{t2}, v{lane}, 1, 3
                        v_xor_b32 v{t2}, v{t2}, v{t1}
                        v_lshlrev_b32 v{t2}, 3, v{t2}
                        v_lshl_add_u32 v{t2}, v{t0}, 6, v{t2}
                        s_lshl_b32 s{s_t0}, s{s_g}, 14
                        s_add_u32 s{s_t0}, s{s_t0}, {TP}
                        v_add_u32 v{sS+1}, s{s_t0}, v{t2}
                        v_xor_b32 v{sQ+1}, 16, v{sS+1}
                        v_mul_f32 v{sQ}, {LOG2E}, v{rstd}
                        v_mov_b32 v{cs}, 0x3f803f80
                        v_mov_b32 v{cs+1}, 0x3f803f80""")
                KB = E
                for i in range(8): p.I(f"v_cvt_pk_bf16_f32 v{KB+i}, v{AK+2*i}, v{AK+2*i+1}")
                p.I(f"{MF} {vr(AK,16)}, {vr(WP,4)}, {vr(KB,4)}, 0")
                for i in range(0, 16, 2): p.I(pk("v_pk_mul_f32", AV+i, AV+i, rstd, bc=(1,)))
                for i in range(8): p.I(f"v_cvt_pk_bf16_f32 v{AV+i}, v{AV+2*i}, v{AV+2*i+1}")
                for h in range(2):
                    p.I(f"ds_write_b64 v{sS}, {vr(AV+4*h,2)} offset:{5120*h}")
                    p.I(f"ds_write_b64 v{sS}, {vr(AV+4*h+2,2)} offset:{5120*h+16}")
                p.I("s_mov_b64 exec, 0xffffffff")
                for h in range(2): p.I(f"ds_write_b64 v{sS}, {vr(cs,2)} offset:{5120*h+32}")
                p.I("s_mov_b64 exec, -1")
                p.I(f"{MF} {vr(AV,16)}, {vr(WP,4)}, {vr(KB+4,4)}, 0")
                for h, (P, Mi) in enumerate(((AK, AK + 8), (AV + 8, AV))):
                    softmax_pm(p, P, Mi, sQ, t0)
                    p.I(f"v_xor_b32 v{t0}, 32, v{sS+1}\n v_xor_b32 v{t1}, 32, v{sQ+1}")
                    p.I(f"ds_write_b64 v{sS+1}, {vr(P,2)} offset:{8192*h}")
                    p.I(f"ds_write_b64 v{sQ+1}, {vr(P+2,2)} offset:{8192*h}")
                    p.I(f"ds_write_b64 v{t0}, {vr(Mi,2)} offset:{8192*h}")
                    p.I(f"ds_write_b64 v{t1}, {vr(Mi+2,2)} offset:{8192*h}")
            def kv_phase():
                p.I(f"""v_lshrrev_b32 v{t0}, 5, v{lane}
                        v_bfe_u32 v{t1}, v{lane}, 2, 2
                        v_lshl_add_u32 v{t2}, v{t0}, 2, v{t1}
                        v_bfe_u32 v{t3}, v{lane}, 3, 1
                        v_lshl_add_u32 v{t0}, v{t0}, 1, v{t3}
                        v_and_b32 v{t1}, 3, v{lane}
                        v_bfe_u32 v{t3}, v{lane}, 4, 1
                        v_lshl_add_u32 v{sS}, v{t3}, 2, v{t1}
                        v_xor_b32 v{t0}, v{t0}, v{sS}
                        v_lshlrev_b32 v{t0}, 3, v{t0}
                        v_lshl_add_u32 v{t0}, v{t2}, 6, v{t0}
                        s_lshl_b32 s{s_t0}, s{s_i}, 13
                        s_add_u32 s{s_t0}, s{s_t0}, {TP}
                        v_add_u32 v{sS}, s{s_t0}, v{t0}
                        v_xor_b32 v{sS+1}, 32, v{sS}
                        v_mul_u32_u24 v{t2}, 40, v{t2}
                        v_lshlrev_b32 v{t1}, 3, v{t1}
                        v_cmp_eq_u32 vcc, 0, v{t3}
                        v_cndmask_b32 v{t1}, 32, v{t1}, vcc
                        v_add_u32 v{t2}, v{t2}, v{t1}
                        s_mul_i32 s{s_t0}, s{s_i}, 5120
                        s_add_u32 s{s_t0}, s{s_t0}, {TV}
                        v_add_u32 v{sQ}, s{s_t0}, v{t2}
                        s_lshl_b32 s{s_poff}, s{s_grp}, 4
                        s_add_u32 s{s_poff}, s{s_poff}, s{s_rb}
                        s_lshl_b32 s{s_poff}, s{s_poff}, 2
                        s_add_u32 s{s_poff}, s{s_poff}, s{s_i}
                        s_lshl_b32 s{s_poff}, s{s_poff}, 12
                        s_add_u32 s{s_poff}, s{s_poff}, {PART_OFF}""")
                def rd(ks):
                    B = AV + 8 * (ks & 1)
                    p.I(f"""ds_read_b64_tr_b16 {vr(B,2)}, v{sS} offset:{1024*ks}
                            ds_read_b64_tr_b16 {vr(B+2,2)}, v{sS+1} offset:{1024*ks+512}
                            ds_read_b64_tr_b16 {vr(B+4,2)}, v{sQ} offset:{640*ks}
                            ds_read_b64_tr_b16 {vr(B+6,2)}, v{sQ} offset:{640*ks+320}""")
                rd(0); rd(1)
                for ks in range(8):
                    B = AV + 8 * (ks & 1)
                    p.I(f"{MF} {vr(AK,16)}, {vr(B,4)}, {vr(B+4,4)}, {vr(AK,16) if ks else 0}")
                    if ks + 2 < 8: rd(ks + 2)
                for q in range(4):
                    p.I(f"buffer_store_dwordx4 {vr(AK+4*q,4)}, v{l16}, s[{S_WS}:{S_WS+3}], s{s_poff} offen offset:{1024*q} sc1", tag='part')
            def sets(n):
                if n < 32: return [SET[0], AF, SET[1]][n % 3]
                if n < 36: return SET[n % 2]
                return [SET[0], SET[1], AV][n % 3]
            issue_at = {n: n - 2 for n in range(64)}
            issue_at.update({32: 31, 33: 'kepi', 34: 33, 35: 34, 36: 35, 37: 36, 38: 36})
            rd = lambda n: reads(n >> 2, n & 3, sets(n))
            p.I(f"s_lshl_b32 s{s_csg}, s{s_i}, 11\n s_add_u32 s{s_csg}, s{s_csg}, s{s_cso}")
            pop(2)
            nonce_sample(VF)
            barrier(0)
            st.stamp(p, 'bar0')
            def pre_kv():
                p.I(f"s_and_b32 s{s_t0}, s{s_i}, 1\n s_lshl_b32 s{s_t0}, s{s_t0}, 13\n v_add_u32 v{t0}, s{s_t0}, v{vpre}")
                for t in range(4):
                    for h in range(2): p.I(f"ds_read_b64_tr_b16 {vr(AQ+4*t+2*h,2)}, v{t0} offset:{16384 + 2048*t + 512*h}")
                cs_pre(AQ, cs)
            def pre_st():
                for t in range(2, 4): p.I(f"ds_read_b128 {vr(X+4*t,4)}, v{xa+t}")
                for t in range(4): p.I("\n".join(stat_ops(X + 4 * t, sS, sQ)))
                stats_pre(sS, sQ, M)
            for r in rd(0) + rd(1): r()
            pop(2)
            p.I(f"s_cmp_lg_u32 s{s_g}, 0")
            p.ifelse(isg0, "s_cbranch_scc1", pre_kv, pre_st)
            st.stamp(p, 'pre')
            def pre_qf():
                b = p2base(0)
                def var(reg, base, ks, hs):
                    p.I(f"v_add_u32 v{t0}, {base}, v{reg}")
                    for t in range(4):
                        for h in range(2): p.I(f"ds_read_b64_tr_b16 {vr(AK+4*t+2*h,2)}, v{t0} offset:{ks*t + hs*h}")
                p.I(f"s_bitcmp1_b32 s{s_i}, 0")
                p.ifelse(lambda r, it: r['w'] % 2 == 0, "s_cbranch_scc1", lambda: var(vpre, b, 2048, 512), lambda: var(vpre + 1, b + 8192, 1024, 256))
                p.I(f"s_add_u32 s{s_t2}, s{s_i}, 4")
                cs_pre(AK, cs)
                cs_publish(cs, s_t2)
            FLAG_B = 11
            kvfl = lambda: p.I(f"""s_lshl_b32 s{s_flr}, s{s_grp}, 11
                                   s_add_u32 s{s_flr}, s{s_flr}, {FL_OFF + 256*128}
                                   v_and_b32 v{t1}, 15, v{lane}
                                   v_lshlrev_b32 v{t1}, 7, v{t1}""")
            def pre(j):
                if j == FLAG_B: p.wait(vm=['part'])
                if j == 15: rarew(4, lambda: (kvfl(), flag_wait(p, sS, t1, S_WS, s_flr, s_non, s_t0)))
            def post(j):
                if j == 1:
                    nonce_take(VF)
                    p.I(f"s_cmp_lg_u32 s{s_g}, 0")
                    p.ifelse(isg0, "s_cbranch_scc1", lambda: cs_publish(cs, s_i), lambda: stats_publish(M))
                if j == 2: wphi_read()
                if j == AGET:
                    p.I(f"s_cmp_lg_u32 s{s_g}, 0")
                    p.ifelse(isg0, "s_cbranch_scc1", lambda: fetch(loadsC), lambda: fetch(loadsS))
                if j == 7:
                    p.I(f"s_cmp_lg_u32 s{s_g}, 0")
                    p.ifelse(isg0, "s_cbranch_scc1", lambda: c_digest(loadsC), s_digest)
                if j == 15: ifg0(lambda: c_digest(loadsC2))
                if j == FLAG_B:
                    def fr():
                        p.I(f"""s_lshl_b32 s{s_t1}, s{s_grp}, 4
                                s_add_u32 s{s_t1}, s{s_t1}, s{s_rb}
                                s_lshl_b32 s{s_t1}, s{s_t1}, 7
                                s_add_u32 s{s_t1}, s{s_t1}, {FL_OFF + 256*128}""")
                        flag_raise(p, t2, S_WS, s_t1, s_non)
                    rarew(0, fr)
                if j == 13:
                    ifg0(lambda: fetch(loadsC2))
                    rarew(4, lambda: (kvfl(), flag_sample(p, sS, t1, S_WS, s_flr)))
            pfl = pf_list(AK + 12)
            def popn(n):
                for _ in range(2):
                    if npop[0] < 13 + n: pop()
                if n >= 44 and n % 2 == 0 and pfl: pfl.pop(0)()
                if n == 43 and 'nopf' not in OPT: rarew(7, lambda: code_pf('k2_kernel', AK + 12))
            for n in range(64):
                p.drop = drop
                todo = [m for m in range(64) if issue_at[m] == n]
                extra = []
                for m in todo:
                    if m % 4 == 0:
                        j = m >> 2
                        barrier(j, lambda: pre(j), lg=j in (8, 9))
                        extra = [lambda j=j: post(j)]
                interleave(p, mf(n >> 2, n & 3, sets(n)), mix([f for m in todo for f in rd(m)], [lambda: popn(n)]) + extra)
                p.drop = ()
                if n == 31:
                    st.stamp(p, 'p1')
                    k_epilogue()
                    for f in rd(33): f()
                    st.stamp(p, 'kepi')
                if n == 35:
                    p.I(f"s_cmp_lg_u32 s{s_g}, 0")
                    p.ifelse(isg0, "s_cbranch_scc1", kv_phase, pre_qf)
                    st.stamp(p, 'kv')
            assert not dq
            st.stamp(p, 'p2')
            def red_load():
                p.I(f"""s_lshl_b32 s{s_poff}, s{s_grp}, 8
                        s_add_u32 s{s_poff}, s{s_poff}, s{s_rb}
                        s_lshl_b32 s{s_poff}, s{s_poff}, 10
                        s_add_u32 s{s_poff}, s{s_poff}, {PART_OFF}""")
                for r in range(16):
                    p.I(f"buffer_load_dwordx4 {vr(X+4+4*r,4)}, v{l16}, s[{S_WS}:{S_WS+3}], s{s_poff} offen sc1")
                    p.I(f"s_add_u32 s{s_poff}, s{s_poff}, 16384")
            p.I(f"""s_lshl_b32 s{s_hoff}, s{s_rb}, 2
                    s_add_u32 s{s_hoff}, s{s_hoff}, s{s_i}
                    s_lshl_b32 s{s_t0}, s{s_grp}, 1
                    s_add_u32 s{s_t0}, s{s_t0}, s{s_g}
                    s_lshl_b32 s{s_qoff}, s{s_hoff}, 4
                    s_add_u32 s{s_qoff}, s{s_qoff}, s{s_t0}
                    s_lshl_b32 s{s_qoff}, s{s_qoff}, 11
                    s_add_u32 s{s_qoff}, s{s_qoff}, {QF_OFF}
                    s_mul_i32 s{s_hoff}, s{s_hoff}, 118
                    s_add_u32 s{s_hoff}, s{s_hoff}, s{s_t0}
                    s_lshl_b32 s{s_hoff}, s{s_hoff}, 10""")
            ifw(4, red_load)
            p.wait(lg_all=True)
            p.I("s_barrier")
            c_read()
            corr_mf(AQ, t2, C, M)
            corr_mf(AF, t3, C, M)
            for i in range(0, 16, 2): p.I(pk("v_pk_mul_f32", AQ+i, AQ+i, rstd, bc=(1,)))
            for i in range(8): p.I(f"v_cvt_pk_bf16_f32 v{AQ+i}, v{AQ+2*i}, v{AQ+2*i+1}")
            for h in range(2):
                p.I(f"buffer_store_dwordx4 {vr(AQ+4*h,4)}, v{l16}, s[{S_WS}:{S_WS+3}], s{s_qoff} offen offset:{1024*h} {HSC}")
            f_consts(rstd, sd, c1, irs2)
            f_epilogue(AF, c1, irs2, SET[1], f"s{s_hoff} offen")
            st.stamp(p, 'epi2')
            def reducer():
                p.I(f"""s_lshr_b32 s{s_t0}, s{s_rb}, 2
                        s_lshl_b32 s{s_koff}, s{s_grp}, 2
                        s_add_u32 s{s_koff}, s{s_koff}, s{s_t0}
                        s_lshl_b32 s{s_koff}, s{s_koff}, 11
                        s_bfe_u32 s{s_t0}, s{s_rb}, 0x10001
                        s_lshl_b32 s{s_t0}, s{s_t0}, 10
                        s_add_u32 s{s_koff}, s{s_koff}, s{s_t0}
                        s_and_b32 s{s_t0}, s{s_rb}, 1
                        s_lshl_b32 s{s_t0}, s{s_t0}, 3
                        s_add_u32 s{s_koff}, s{s_koff}, s{s_t0}
                        s_add_u32 s{s_koff}, s{s_koff}, {KVZ_OFF}""")
                for r in range(1, 16):
                    for k in range(0, 4, 2): p.I(pk("v_pk_add_f32", X+4+k, X+4+k, X+4+4*r+k))
                p.I(f"v_cvt_pk_bf16_f32 v{X+4}, v{X+4}, v{X+5}\n v_cvt_pk_bf16_f32 v{X+5}, v{X+6}, v{X+7}")
                p.I(f"buffer_store_dwordx2 {vr(X+4,2)}, v{l16}, s[{S_WS}:{S_WS+3}], s{s_koff} offen")
            ifw(4, reducer)
            st.stamp(p, 'end')
            st.flush(p, S_WS, t0, s_w)
            p.I("s_endpgm")
        p.begin(); prologue(); pro = p.end()
        p.begin(); body(); bod = p.end()
        A = [w for w in range(256) if (w >> 6) < 2]
        info['A0'] = (A, [0, 1, 2, 3], list(st.names)); info['A1'] = (A, [5, 6, 7], list(st.names)); info['Ared'] = (A, [4], list(st.names))
        return pro, bod, V.next

    pf0, bf0, u0 = ftype(0); pf1, bf1, u1 = ftype(1); pa, ba, ua = atype()
    for pred, items in ((isF(0), pf0), (isF(1), pf1), (isA, pa), (isA, ba), (isF(0), bf0), (isF(1), bf1)):
        p.add(Cond(pred, items))
    p.label(f"{name}_end")
    p.I("s_endpgm")
    roles = [dict(type='A', g=0, w=0), dict(type='A', g=0, w=0, wg0=True, slow=True), dict(type='A', g=0, w=1), dict(type='A', g=1, w=4),
             dict(type='A', g=1, w=4, slow=True), dict(type='A', g=1, w=5), dict(type='A', g=1, w=6), dict(type='A', g=1, w=7),
             dict(type='F', g=0, w=0), dict(type='F', g=0, w=0, slow=True), dict(type='F', g=0, w=1), dict(type='F', g=1, w=4)]
    lines = finalize(p.cur, roles)
    print("k1 vgprs", u0, u1, ua)
    return lines, max(u0, u1, ua), info
```

```python
from common import *
import os

def gen_k2(name, stamps=False):
    OPT = os.environ.get('K2OPT', '').split(',')
    ASC = '' if 'nosc1' in OPT else 'sc1'
    p = Prog('B')
    V = Regs('v', 1, 256)
    st = Stamper(stamps, 100, 1)
    S_WS, S_B, S_A, S_X, S_OUT, S_PHI, S_DBG = 28, 40, 44, 48, 52, 56, 60
    s_w, s_ct, s_rb, s_rot, s_kl, s_t0, s_t1, s_t2, s_abase, s_slotw, s_slotr, s_it, s_wA, s_log2e, s_head, s_wB = range(84, 100)
    s_qoff, s_koff, s_poff, s_ooff, s_poll, s_wosz, s_fl = 64, 65, 66, 67, 68, 69, 70
    s_non = 72; s_l2 = 74
    SLOT = 32768
    B0_, BSTEP_, BLAG_ = [int(x) for x in os.environ.get('K2BAR', '30,6,19').split(',')]
    p.I("s_cmp_ge_u32 s2, 256")
    p.I(f"s_cbranch_scc1 {name}_end")
    st.stamp(p, 'start')
    load_args(p)
    lane = V.alloc(name='lane'); t0 = V.alloc(); t1 = V.alloc(); t2 = V.alloc()
    l16 = V.alloc(name='l16')
    p.I(f"""v_and_b32 v{lane}, 63, v0
            v_lshrrev_b32 v{t0}, 6, v0
            s_and_b32 s{s_t0}, s2, 7
            s_lshr_b32 s{s_t1}, s2, 3
            v_readfirstlane_b32 s{s_w}, v{t0}
            s_and_b32 s{s_ct}, s{s_t1}, 7
            s_lshr_b32 s{s_t1}, s{s_t1}, 3
            s_lshl_b32 s{s_rb}, s{s_t0}, 2
            s_add_u32 s{s_rb}, s{s_rb}, s{s_t1}
            v_lshlrev_b32 v{l16}, 4, v{lane}
            s_cmp_lt_u32 s{s_w}, 4""")
    isC = lambda r, it: r['w'] < 4

    def loader():
        vA1 = V.alloc(); vB = V.alloc(4)
        p.I(f"""s_lshl_b32 s{s_t1}, s{s_t1}, 1
                s_add_u32 s{s_rot}, s{s_ct}, s{s_t1}
                s_and_b32 s{s_rot}, s{s_rot}, 7
                s_mul_i32 s{s_rot}, s{s_rot}, {0 if 'norot' in OPT else 10}
                v_lshrrev_b32 v{t0}, 3, v{lane}
                v_lshlrev_b32 v{t0}, 10, v{t0}
                v_and_b32 v{t1}, 7, v{lane}
                v_bfe_u32 v{t2}, v{lane}, 4, 1
                v_lshlrev_b32 v{t2}, 2, v{t2}
                v_xor_b32 v{t1}, v{t1}, v{t2}
                v_lshl_add_u32 v{vB}, v{t1}, 4, v{t0}
                s_lshl_b32 s{s_t0}, s{s_ct}, 7
                v_add_u32 v{vB}, s{s_t0}, v{vB}
                v_add_u32 v{vB+1}, {7168}, v{vB}
                v_add_u32 v{vB+2}, {2*7168}, v{vB}
                v_add_u32 v{vB+3}, {3*7168}, v{vB}
                v_add_u32 v{vA1}, {HO_RU-2048}, v{l16}
                s_and_b32 s{s_t0}, s{s_w}, 3
                s_lshl_b32 s{s_wA}, s{s_t0}, 12
                s_add_u32 s{s_wB}, s{s_wA}, 16384
                s_lshl_b32 s{s_kl}, s{s_t0}, 1
                s_mul_i32 s{s_abase}, s{s_rb}, {2*HO_RU}
                s_mov_b32 s{s_slotw}, 0
                s_mov_b32 s{s_wosz}, {512*1024}""")
        p.I("s_waitcnt lgkmcnt(0)")
        srd(p, S_A, WS_P, WS_BYTES)
        srd(p, S_B, W2_P, 1376*1024)
        if 'noA' in OPT: p.I(f"s_mov_b32 s{S_A+2}, 0")
        p.I(f"""s_add_u32 s{s_t1}, s{s_kl}, s{s_rot}
                s_lshl_b32 s{s_t1}, s{s_t1}, 14
                s_lshr_b32 s{s_t0}, s{s_t1}, 4
                s_add_u32 s{s_t0}, s{s_t0}, s{s_abase}
                s_mov_b32 m0, s{s_wB}""")
        st.stamp(p, 'args')
        B0, BSTEP, BLAG = [int(x) for x in os.environ.get('K2BAR', '30,6,19').split(',')]
        assert B0 <= 32
        nbar = {}
        for j in range(15):
            nbar.setdefault(max(8*j + BLAG, B0 + BSTEP*j), []).append(j)
            assert max(8*j + BLAG, B0 + BSTEP*j) <= 8*j + 32
        def bars(n):
            for j in nbar.get(n, []):
                if 'fine' in OPT and j in (4,8,12): st.stamp(p, f'pre{j}')
                p.wait(vm=[('d', j)])
                if 'fine' in OPT and j in (4,8,12): st.stamp(p, f'w{j}')
                p.I("s_barrier")
                if j == 0 or ('fine' in OPT and j in (2,4,6,8,12)): st.stamp(p, f'bar{j}')
        s_nb, s_na = s_t2, s_it
        for s in range(15):
            slot = (s % 5) * SLOT
            nslot = ((s + 1) % 5) * SLOT
            if s < 10 or s > 10:
                nxt = [f"s_add_u32 s{s_nb}, s{s_t1}, {8<<14}"]
                if s < 10:
                    nxt += [f"s_sub_u32 s{s_na}, s{s_nb}, {86<<14}", f"s_cmp_ge_u32 s{s_nb}, {86<<14}", f"s_cselect_b32 s{s_nb}, s{s_na}, s{s_nb}",
                            f"s_lshr_b32 s{s_na}, s{s_nb}, 4", f"s_add_u32 s{s_na}, s{s_na}, s{s_abase}"]
                else:
                    nxt += [f"s_add_u32 s{s_na}, s{s_t0}, {8<<10}"]
            else:
                nxt = [f"s_lshl_b32 s{s_nb}, s{s_kl}, 14", f"s_lshl_b32 s{s_na}, s{s_kl}, 10", f"s_add_u32 s{s_na}, s{s_na}, s{s_abase}", f"s_add_u32 s{s_na}, s{s_na}, {86<<10}"]
            def ld(m):
                if m < 4:
                    p.I(f"buffer_load_dwordx4 v{vB+m}, s[{S_B}:{S_B+3}], s{s_t1} offen offset:{1024*m} lds", tag=('d', s))
                else:
                    p.I(f"buffer_load_dwordx4 v{l16 if m < 6 else vA1}, s[{S_A}:{S_A+3}], s{s_t0} offen offset:{1024*(m-4)} {ASC if s > 10 else ''} lds", tag=('d', s))
            for m in range(8):
                bars(8*s + m)
                if s == 10:
                    p.I(f"s_cmp_eq_u32 s{s_w}, 7")
                    p.cond(lambda r, it: r['w'] != 7, "s_cbranch_scc1", lambda: ld(m))
                else:
                    ld(m)
                if m == 3: p.I(f"s_add_u32 m0, s{s_wA}, {slot}\n s_nop 0")
                if m in (0, 1, 2, 4, 5, 6):
                    k = (0, 1, 2, None, 3, 4, 5)[m]
                    if s == 10 or s > 10:
                        if k < len(nxt): p.I(nxt[k])
                    elif m == 0: p.I(nxt[0] + "\n" + nxt[1])
                    elif m == 1: p.I(nxt[2] + "\n" + nxt[3])
                    elif m == 2: p.I(nxt[4])
                    elif m == 4: p.I(nxt[5])
            p.I(f"s_mov_b32 s{s_t1}, s{s_nb}\n s_mov_b32 s{s_t0}, s{s_na}\n s_add_u32 m0, s{s_wB}, {nslot}")
            if s == 10:
                p.I(f"s_mov_b32 s{S_B}, s{WO_P}\n s_mov_b32 s{S_B+1}, s{WO_P+1}\n s_mov_b32 s{S_B+2}, {512*1024}")
        st.stamp(p, 'issued')
        for n in range(120, 200): bars(n)
        st.stamp(p, 'end')
        if stamps: srd(p, S_WS, WS_P, WS_BYTES)
        st.flush(p, S_WS, t0, s_w)

    def consumer():
        st.n = 1; st.names2 = st.names; st.names = ['start']
        vphi = V.alloc()
        p.I(f"""v_and_b32 v{t0}, 15, v{lane}
                v_lshlrev_b32 v{t0}, 3, v{t0}
                v_lshrrev_b32 v{t1}, 5, v{lane}
                v_lshl_add_u32 v{vphi}, v{t1}, 7, v{t0}
                s_mov_b32 s{s_l2}, {LOG2E}
                s_lshl_b32 s{s_head}, s{s_ct}, 2
                s_add_u32 s{s_head}, s{s_head}, s{s_w}
                s_lshl_b32 s{s_qoff}, s{s_rb}, 6
                s_add_u32 s{s_qoff}, s{s_qoff}, s{s_head}
                s_lshl_b32 s{s_qoff}, s{s_qoff}, 10
                s_add_u32 s{s_qoff}, s{s_qoff}, {QF_OFF}
                s_add_u32 s{s_t2}, s{s_qoff}, {32*1024}
                s_lshl_b32 s{s_koff}, s{s_head}, 11
                s_add_u32 s{s_koff}, s{s_koff}, {KVZ_OFF}
                s_lshl_b32 s{s_poff}, s{s_head}, 9
                s_mul_i32 s{s_ooff}, s{s_rb}, 236
                s_add_u32 s{s_ooff}, s{s_ooff}, s{s_head}
                s_add_u32 s{s_ooff}, s{s_ooff}, 86
                s_lshl_b32 s{s_ooff}, s{s_ooff}, 10""")
        p.I("s_waitcnt lgkmcnt(0)")
        srd(p, S_WS, WS_P, WS_BYTES)
        srd(p, S_PHI, WPHI_P, 32*512)
        st.stamp(p, 'args')
        p.I(f"s_add_u32 s{s_non}, s{WS_P}, {NONCE_OFF}\n s_addc_u32 s{s_non+1}, s{WS_P+1}, 0\n s_load_dwordx2 s[{s_non}:{s_non+1}], s[{s_non}:{s_non+1}], 0")
        Q = V.alloc(8, 4); KZ = V.alloc(8, 4); WP = V.alloc(8, 4)
        p.I(f"s_lshl_b32 s{s_t0}, s{s_w}, 10\n s_add_u32 m0, s{s_t0}, {4*SLOT}\n v_add_u32 v{vphi}, m0, v{vphi}")
        p.I(f"buffer_load_dwordx4 v{l16}, s[{S_PHI}:{S_PHI+3}], s{s_poff} offen lds", tag='wphi')
        p.I(f"buffer_load_dwordx4 {vr(Q,4)}, v{l16}, s[{S_WS}:{S_WS+3}], s{s_qoff} offen")
        p.I(f"buffer_load_dwordx4 {vr(Q+4,4)}, v{l16}, s[{S_WS}:{S_WS+3}], s{s_t2} offen")
        p.I(f"buffer_load_dwordx4 {vr(KZ,4)}, v{l16}, s[{S_WS}:{S_WS+3}], s{s_koff} offen")
        p.I(f"buffer_load_dwordx4 {vr(KZ+4,4)}, v{l16}, s[{S_WS}:{S_WS+3}], s{s_koff} offen offset:1024")
        srd(p, S_X, X_P, 2048*1024)
        srd(p, S_OUT, OUT_P, 2048*1024)
        cA = V.alloc(); cB = V.alloc(); aA = V.alloc(); aB = V.alloc()
        p.I(f"""s_and_b32 s{s_t1}, s{s_w}, 1
                s_lshl_b32 s{s_t1}, s{s_t1}, 11
                v_add_u32 v{cA}, s{s_t1}, v{l16}
                v_lshrrev_b32 v{t0}, 5, v{lane}
                v_bfe_u32 v{t1}, v{lane}, 2, 2
                v_lshl_add_u32 v{t0}, v{t0}, 2, v{t1}
                v_lshlrev_b32 v{cB}, 7, v{t0}
                v_bfe_u32 v{t0}, v{lane}, 4, 1
                v_bfe_u32 v{t1}, v{lane}, 1, 1
                v_lshl_add_u32 v{t0}, v{t0}, 1, v{t1}
                s_lshr_b32 s{s_t1}, s{s_w}, 1
                s_lshl_b32 s{s_t1}, s{s_t1}, 2
                v_add_u32 v{t0}, s{s_t1}, v{t0}
                v_bfe_u32 v{t1}, v{lane}, 3, 1
                v_lshlrev_b32 v{t1}, 2, v{t1}
                v_xor_b32 v{t0}, v{t0}, v{t1}
                v_lshl_add_u32 v{cB}, v{t0}, 4, v{cB}
                v_and_b32 v{t0}, 1, v{lane}
                v_lshl_add_u32 v{cB}, v{t0}, 3, v{cB}
                v_add_u32 v{cB}, 16384, v{cB}""")
        vO = V.alloc(); vXr = V.alloc(); vfa = V.alloc()
        p.I(f"""s_lshl_b32 s{s_t0}, s{s_rb}, 1
                s_and_b32 s{s_t1}, s{s_w}, 1
                s_add_u32 s{s_t0}, s{s_t0}, s{s_t1}
                s_lshl_b32 s{s_t0}, s{s_t0}, 15
                s_lshl_b32 s{s_t1}, s{s_ct}, 7
                s_add_u32 s{s_t0}, s{s_t0}, s{s_t1}
                s_lshr_b32 s{s_t1}, s{s_w}, 1
                s_lshl_b32 s{s_t1}, s{s_t1}, 6
                s_add_u32 s{s_t0}, s{s_t0}, s{s_t1}
                v_and_b32 v{t0}, 31, v{lane}
                v_lshlrev_b32 v{t0}, 10, v{t0}
                v_add_u32 v{t0}, s{s_t0}, v{t0}
                v_lshrrev_b32 v{t1}, 5, v{lane}
                v_lshl_add_u32 v{vO}, v{t1}, 4, v{t0}
                v_lshl_add_u32 v{vXr}, v{t1}, 3, v{t0}
                s_lshl_b32 s{s_poll}, s{s_rb}, 10
                s_add_u32 s{s_poll}, s{s_poll}, {FL_OFF + 512*128}
                s_lshl_b32 s{s_t0}, s{s_ct}, 7
                s_add_u32 s{s_fl}, s{s_poll}, s{s_t0}
                v_and_b32 v{vfa}, 7, v{lane}
                v_lshlrev_b32 v{vfa}, 7, v{vfa}""")
        ACC = V.alloc(16, 4); FA = V.alloc(32, 4); FB = V.alloc(32, 4)
        XR = V.alloc(8, 2); vpoll = V.alloc(2, 2); T6 = V.alloc(6, 2)
        T0, T1 = FB, None
        p.wait(vm=['wphi'])
        p.I(f"ds_read_b64_tr_b16 {vr(WP,2)}, v{vphi}\n ds_read_b64_tr_b16 {vr(WP+2,2)}, v{vphi} offset:256")
        st.stamp(p, 'wp_in')
        p.I(f"v_mfma_f32_32x32x16_bf16 {vr(FA,16)}, {vr(WP,4)}, {vr(Q,4)}, 0")
        p.I(f"v_mfma_f32_32x32x16_bf16 {vr(FA+16,16)}, {vr(WP,4)}, {vr(Q+4,4)}, 0")
        for u in range(2):
            P = FA + 16*u
            softmax_pm(p, P, P+8, f"s[{s_l2}:{s_l2+1}]", T6)
            p.I(f"v_mfma_f32_32x32x16_bf16 {vr(FB+16*u,16)}, {vr(KZ,4)}, {vr(P,4)}, 0")
            p.I(f"v_mfma_f32_32x32x16_bf16 {vr(FB+16*u,16)}, {vr(KZ+4,4)}, {vr(P+8,4)}, {vr(FB+16*u,16)}")
        for u in range(2):
            D = FB + 16*u
            p.I(f"v_add_f32 v{ACC+u}, 0x358637bd, v{D+8}")
            p.I(f"v_rcp_f32 v{ACC+u}, v{ACC+u}")
            for i in range(8):
                p.I(f"v_mul_f32 v{D+i}, v{D+i}, v{ACC+u}")
            for i in range(4):
                p.I(f"v_cvt_pk_bf16_f32 v{Q+4*u+i}, v{D+2*i}, v{D+2*i+1}")
            p.I(f"buffer_store_dwordx4 {vr(Q+4*u,4)}, v{l16}, s[{S_WS}:{S_WS+3}], s{s_ooff} offen sc1", tag='ostore')
            if u == 0: p.I(f"s_add_u32 s{s_ooff}, s{s_ooff}, {HO_RU}")
        st.stamp(p, 'o_done')
        for q in range(4):
            p.I(f"buffer_load_dwordx2 {vr(XR+2*q,2)}, v{vXr}, s[{S_X}:{S_X+3}], 0 offen offset:{16*q}")
        for i in range(16):
            p.I(f"v_mov_b32 v{ACC+i}, 0")
        p.I(f"s_mov_b32 s{s_slotr}, 0\n s_mov_b32 s{s_it}, 0\n s_lshl_b32 s{s_wA}, s{s_w}, 8")
        FLAG_IT = 1
        POLL_IT = max(j for j in range(15) if max(8*j + BLAG_, B0_ + BSTEP_*j) <= 88)
        def compute(ACC, short):
            p.I(f"v_add_u32 v{aA}, s{s_slotr}, v{cA}\n v_add_u32 v{aB}, s{s_slotr}, v{cB}")
            def rd(e):
                p.I(f"ds_read_b128 {vr(FA+4*e,4)}, v{aA} offset:{(e>>1)*4096 + (e&1)*1024}")
                p.I(f"ds_read_b64_tr_b16 {vr(FB+4*e,2)}, v{aB} offset:{e*2048}")
                p.I(f"ds_read_b64_tr_b16 {vr(FB+4*e+2,2)}, v{aB} offset:{e*2048+1024}")
            def mf(e):
                p.I(f"v_mfma_f32_32x32x16_bf16 {vr(ACC,16)}, {vr(FB+4*e,4)}, {vr(FA+4*e,4)}, {vr(ACC,16)}")
            for e in range(4): rd(e)
            for e in range(6):
                mf(e)
                if e + 4 < 8: rd(e + 4)
            p.wait(lg_all=True)
            if short:
                p.I(f"s_cmp_eq_u32 s{s_it}, 10")
                p.cond(lambda r, it: it != 10, "s_cbranch_scc1", lambda: (mf(6), mf(7)))
            else:
                mf(6); mf(7)
        def body():
            p.I(f"s_add_u32 s{s_t2}, s{s_it}, s{s_wA}")
            p.I(f"s_cmp_eq_u32 s{s_t2}, {POLL_IT}")
            p.rare(lambda r, it: r['w'] == 0 and it == POLL_IT, "s_cbranch_scc1",
                   lambda: flag_wait(p, vpoll, vfa, S_WS, s_poll, s_non, s_t0))
            p.I(f"s_cmp_eq_u32 s{s_it}, {FLAG_IT}")
            p.rare(lambda r, it: it == FLAG_IT, "s_cbranch_scc1", lambda: p.wait(vm=['ostore']))
            p.I("s_barrier")
            p.I(f"s_cmp_eq_u32 s{s_t2}, {FLAG_IT}")
            p.rare(lambda r, it: r['w'] == 0 and it == FLAG_IT, "s_cbranch_scc1", lambda: flag_raise(p, T6, S_WS, s_fl, s_non))
            p.I(f"s_cmp_eq_u32 s{s_t2}, {POLL_IT-1}")
            p.rare(lambda r, it: r['w'] == 0 and it == POLL_IT - 1, "s_cbranch_scc1",
                   lambda: flag_sample(p, vpoll, vfa, S_WS, s_poll))
            compute(ACC, True)
            p.I(f"""s_add_u32 s{s_slotr}, s{s_slotr}, {SLOT}
                    s_cmp_ge_u32 s{s_slotr}, {5*SLOT}
                    s_cselect_b32 s{s_slotr}, 0, s{s_slotr}
                    s_add_u32 s{s_it}, s{s_it}, 1""")
        p.loop(15, body, f"{name}_cloop", f"s_cmp_lt_u32 s{s_it}, 15\n s_cbranch_scc1 {name}_cloop")
        st.stamp(p, 'loop_done')
        for i in range(8):
            p.I(f"v_lshlrev_b32 v{FA+2*i}, 16, v{XR+i}")
            p.I(f"v_and_b32 v{FA+2*i+1}, 0xffff0000, v{XR+i}")
        for i in range(0, 16, 2): p.I(pk("v_pk_add_f32", FA+i, FA+i, ACC+i))
        for i in range(8):
            p.I(f"v_cvt_pk_bf16_f32 v{FB+i}, v{FA+2*i}, v{FA+2*i+1}")
        for h in range(2):
            p.I(f"v_permlane32_swap_b32 v{FB+4*h}, v{FB+4*h+2}")
            p.I(f"v_permlane32_swap_b32 v{FB+4*h+1}, v{FB+4*h+3}")
            p.I(f"buffer_store_dwordx4 {vr(FB+4*h,4)}, v{vO}, s[{S_OUT}:{S_OUT+3}], 0 offen offset:{32*h}")
        st.stamp(p, 'end')
        st.flush(p, S_WS, t0, s_w)
    p.begin(); loader(); litems = p.end()
    p.ifelse(isC, "s_cbranch_scc0", consumer, lambda: p.extend(litems))
    p.label(f"{name}_end")
    p.I("s_endpgm")
    roles = [{'w': 0}, {'w': 0, 'slow': True}, {'w': 1}, {'w': 5}, {'w': 7}]
    lines = finalize(p.cur, roles)
    info = {}
    if stamps:
        info = {'cons': (list(range(256)), [0,1,2,3], st.names), 'load': (list(range(256)), [4,5,6,7], st.names2)}
    return lines, max(V.next, 64), info
```

```python
import re

REG_RE = re.compile(r'^(-|abs\(|\|)?([vsa])(\d+)\)?\|?$')
RNG_RE = re.compile(r'^(-|abs\(|\|)?([vsa])\[(\d+):(\d+)\]\)?\|?$')

def regs_of(tok):
    tok = tok.strip()
    m = REG_RE.match(tok)
    if m:
        return [m.group(2) + m.group(3)]
    m = RNG_RE.match(tok)
    if m:
        return [m.group(2) + str(i) for i in range(int(m.group(3)), int(m.group(4)) + 1)]
    if tok == 'vcc':
        return ['vcc']
    if tok == 'exec':
        return ['exec']
    if tok == 'm0':
        return ['m0']
    return []

def split_ops(s):
    out, depth, cur = [], 0, ''
    for ch in s:
        if ch in '[(':
            depth += 1
        if ch in '])':
            depth -= 1
        if ch == ',' and depth == 0:
            out.append(cur.strip()); cur = ''
        else:
            cur += ch
    if cur.strip():
        out.append(cur.strip())
    return out

TRANS = ('v_exp_f32', 'v_log_f32', 'v_rcp_f32', 'v_rsq_f32', 'v_sqrt_f32', 'v_sin_f32', 'v_cos_f32')
NO_DEF_SALU = ('s_cmp', 's_cbranch', 's_branch', 's_waitcnt', 's_barrier', 's_nop', 's_endpgm', 's_setprio', 's_sleep', 's_bitcmp')

class Ins:
    def __init__(self, text, tag=None, comment=None):
        self.text = text.strip()
        self.tag = tag
        self.comment = comment
        self.pre_vm = None
        self.pre_lg = None
        self.pre_nop = 0
        parts = self.text.split(None, 1)
        self.op = parts[0]
        rest = parts[1] if len(parts) > 1 else ''
        ops = split_ops(rest)
        mods = ''
        if ops:
            lp = ops[-1].split(None, 1)
            ops[-1] = lp[0]
            mods = lp[1] if len(lp) > 1 else ''
        self.ops = ops
        self.mods = mods
        op = self.op
        R = [regs_of(o) for o in ops]
        flat = lambda l: [r for x in l for r in x]
        self.defs, self.uses = [], []
        self.kind = 'other'
        self.srcc = []
        if op.startswith('v_mfma'):
            self.kind = 'mfma'
            self.defs = R[0]; self.uses = flat(R[1:]); self.srcab = R[1] + R[2]; self.srcc = R[3]
            self.passes = 8 if '32x32' in op else 4
        elif op.startswith('v_cmp'):
            self.kind = 'valu'; self.defs = R[0]; self.uses = flat(R[1:])
        elif op.startswith('v_readfirstlane') or op.startswith('v_readlane'):
            self.kind = 'valu'; self.defs = R[0]; self.uses = flat(R[1:])
        elif op.startswith('v_permlane') and 'swap' in op:
            self.kind = 'valu'; self.defs = R[0] + R[1]; self.uses = R[0] + R[1]
        elif op.startswith('v_dot2c') or op.startswith('v_dot2_'):
            self.kind = 'dot'; self.defs = R[0]; self.uses = flat(R[1:]) + (R[0] if op.startswith('v_dot2c') else [])
        elif op.startswith('v_fmac') or op.startswith('v_pk_fmac'):
            self.kind = 'valu'; self.defs = R[0]; self.uses = flat(R)
        elif op.startswith('v_add_co') or op.startswith('v_addc_co') or op.startswith('v_sub_co'):
            self.kind = 'valu'; self.defs = R[0] + R[1]; self.uses = flat(R[2:])
        elif op.startswith('v_nop'):
            self.kind = 'valu'
        elif op.startswith('v_'):
            self.kind = 'trans' if op.replace('_e32', '').replace('_e64', '') in TRANS else 'valu'
            self.defs = R[0]; self.uses = flat(R[1:])
        elif op.startswith('ds_read') or op.startswith('ds_bpermute') or op.startswith('ds_permute') or op.startswith('ds_swizzle'):
            self.kind = 'dsr'; self.defs = R[0]; self.uses = flat(R[1:])
        elif op.startswith('ds_'):
            self.kind = 'dsw'; self.uses = flat(R)
        elif op.startswith('buffer_load') or op.startswith('global_load'):
            if ' lds' in (' ' + mods) or op.startswith('global_load_lds'):
                self.kind = 'dma'; self.uses = flat(R) + ['m0']
            else:
                self.kind = 'vload'; self.defs = R[0]; self.uses = flat(R[1:])
                if 'd16' in op:
                    self.uses += R[0]
        elif op.startswith('buffer_store') or op.startswith('global_store'):
            self.kind = 'vstore'; self.uses = flat(R)
            self.wide = op.endswith('x4') or op.endswith('x3')
            self.sdata = R[0] if op.startswith('buffer') else R[1]
        elif op.startswith('buffer_atomic') or op.startswith('global_atomic'):
            self.kind = 'vstore'; self.uses = flat(R); self.wide = False
            if 'sc0' in mods:
                self.kind = 'vload'; self.defs = R[0]
        elif op.startswith('buffer_wbl2') or op.startswith('buffer_inv'):
            self.kind = 'vstore'; self.wide = False
        elif op.startswith('s_load') or op.startswith('s_memtime') or op.startswith('s_memrealtime'):
            self.kind = 'smem'; self.defs = R[0]; self.uses = flat(R[1:])
        elif op.startswith('s_'):
            self.kind = 'salu'
            if op.startswith(NO_DEF_SALU):
                self.uses = flat(R)
            else:
                self.defs = R[0]; self.uses = flat(R[1:])
                if 'saveexec' in op:
                    self.defs = self.defs + ['exec']
            if op == 's_barrier':
                self.kind = 'barrier'
        self.isvalu = self.kind in ('valu', 'trans', 'dot')
        self.states = 1
        if op == 's_nop':
            self.states = int(ops[0], 0) + 1

    def lines(self):
        out = []
        w = []
        if self.pre_vm is not None:
            w.append(f'vmcnt({min(self.pre_vm,63)})')
        if self.pre_lg is not None:
            w.append(f'lgkmcnt({min(self.pre_lg,15)})')
        if w:
            out.append('  s_waitcnt ' + ' '.join(w))
        n = self.pre_nop
        while n > 0:
            k = min(n, 16)
            out.append(f'  s_nop {k-1}')
            n -= k
        if self.text:
            out.append('  ' + self.text + (f'  ; {self.comment}' if self.comment else ''))
        return out

class Wait(Ins):
    def __init__(self, vm=None, lg_all=False, vm_all=False):
        super().__init__('s_nop 0')
        self.text = ''
        self.kind = 'wait'; self.states = 0
        self.vm_tags = vm or []
        self.lg_all = lg_all
        self.vm_all = vm_all

class Label:
    def __init__(self, name): self.name = name

class Loop:
    def __init__(self, items, n, first=0): self.items, self.n, self.first = items, n, first

class Cond:
    def __init__(self, pred, items): self.pred, self.items = pred, items

class CondOut(Cond):
    pass

class Prog:
    def __init__(self, prefix=''):
        self.stack = [[]]
        self.nlab = 0
        self.prefix = prefix
    @property
    def cur(self): return self.stack[-1]
    drop = ()
    def I(self, text, tag=None, comment=None, keep=False):
        for t in text.strip().split('\n'):
            t = t.split(';')[0].strip()
            if not t: continue
            ins = Ins(t, tag, comment)
            if ins.kind in self.drop and not keep: continue
            self.cur.append(ins)
    def wait(self, vm=None, lg_all=False, vm_all=False):
        self.cur.append(Wait(vm, lg_all, vm_all))
    def label(self, name): self.cur.append(Label(name))
    def newlabel(self, p='L'):
        self.nlab += 1
        return f'{self.prefix}{p}_{self.nlab}'
    def begin(self): self.stack.append([])
    def end(self): return self.stack.pop()
    def add(self, item): self.cur.append(item)
    def extend(self, items): self.cur.extend(items)
    def loop(self, n, body, label, close, first=0):
        self.begin(); self.label(label); body(); self.I(close); items = self.end()
        self.add(Loop(items, n, first))
    def cond(self, pred, skip_branch, body):
        lab = self.newlabel('Lskip')
        self.I(f'{skip_branch} {lab}')
        self.begin(); body(); items = self.end()
        self.add(Cond(pred, items)); self.label(lab)
    def rare(self, pred, take_branch, body):
        lo = self.newlabel('Lrare'); lb = self.newlabel('Lback')
        self.I(f'{take_branch} {lo}')
        self.begin(); self.label(lo); body(); self.I(f's_branch {lb}'); items = self.end()
        self.add(CondOut(pred, items)); self.label(lb)
    def rare_else(self, pred, take_branch, body, normal):
        lo = self.newlabel('Lrare'); lb = self.newlabel('Lback')
        self.I(f'{take_branch} {lo}')
        self.begin(); self.label(lo); body(); self.I(f's_branch {lb}'); items = self.end()
        self.add(CondOut(pred, items))
        self.begin(); normal(); n = self.end()
        self.add(Cond(lambda r, it: not pred(r, it), n)); self.label(lb)
    def ifelse(self, pred, else_branch, body1, body2):
        l_else = self.newlabel('Lelse'); l_end = self.newlabel('Lend')
        self.I(f'{else_branch} {l_else}')
        self.begin(); body1(); self.I(f's_branch {l_end}'); a = self.end()
        self.add(Cond(pred, a)); self.label(l_else)
        self.begin(); body2(); b = self.end()
        self.add(Cond(lambda r, it: not pred(r, it), b)); self.label(l_end)

def atoms(items):
    out, cur, in_exec, in_scc = [], [], False, False
    for x in items:
        if isinstance(x, Ins):
            reads_scc = x.op.startswith(('s_cselect', 's_cbranch', 's_addc'))
            if cur and not in_exec and not (in_scc and reads_scc):
                out.append(cur); cur = []
            cur.append(x)
            if 'exec' in x.defs: in_exec = not x.text.endswith('-1')
            in_scc = x.op.startswith(('s_cmp', 's_bitcmp')) or (in_scc and reads_scc)
            if x.op == 's_add_u32' and x.defs == ['m0']: in_scc = False
        else:
            cur.append(x)
    if cur: out.append(cur)
    return out

def trace(items, role, it=None, out=None):
    if out is None: out = []
    for x in items:
        if isinstance(x, Ins): out.append((x, it))
        elif isinstance(x, Loop):
            for k in range(x.first, x.first + x.n):
                trace(x.items, role, k, out)
        elif isinstance(x, Cond):
            if x.pred(role, it): trace(x.items, role, it, out)
    return out

def flat(items, out=None, rare=None):
    top = out is None
    if top: out, rare = [], []
    for x in items:
        if isinstance(x, Ins): out.extend(x.lines())
        elif isinstance(x, Label): out.append(f'{x.name}:')
        elif isinstance(x, CondOut): rare.append(x)
        else: flat(x.items, out, rare)
    if top:
        while rare:
            x = rare.pop(0)
            flat(x.items, out, rare)
    return out

def ev(tag, it):
    return tag(it) if callable(tag) else tag

def upd(cur, new):
    return new if cur is None else min(cur, new)

def resolve_waits(items, roles):
    for role in roles:
        tr = trace(items, role)
        vmq = []
        lgq = []
        vm_done = 0; lg_done = 0
        pend = {}
        wsrc = {}
        for ins, it in tr:
            need_vm = None; need_lg = None
            if ins.kind == 'wait':
                for t in ins.vm_tags:
                    tv = ev(t, it)
                    idx = [i for i, x in enumerate(vmq) if x == tv]
                    if idx and idx[-1] >= vm_done:
                        need_vm = upd(need_vm, len(vmq) - 1 - idx[-1])
                if ins.vm_all and vm_done < len(vmq): need_vm = 0
                if ins.lg_all and lg_done < len(lgq): need_lg = 0
            for r in set(ins.uses) | set(ins.defs):
                if r in pend:
                    k, i = pend[r]
                    if k == 'vm' and i >= vm_done:
                        if ins.kind == 'vload' and r in ins.defs: continue
                        need_vm = upd(need_vm, len(vmq) - 1 - i)
                    if k == 'lg' and i >= lg_done:
                        n = len(lgq) - 1 - i
                        if any(x == 'smem' for x in lgq[lg_done:]): n = 0
                        need_lg = upd(need_lg, n)
            if ins.kind == 'mfma':
                for r in ins.defs:
                    i = wsrc.get(r)
                    if i is not None and i >= lg_done: need_lg = upd(need_lg, len(lgq) - 1 - i)
            if need_vm is not None:
                ins.pre_vm = upd(ins.pre_vm, need_vm); vm_done = max(vm_done, len(vmq) - min(need_vm, 63))
            if need_lg is not None:
                ins.pre_lg = upd(ins.pre_lg, need_lg); lg_done = max(lg_done, len(lgq) - min(need_lg, 15))
            if ins.op == 's_waitcnt':
                m = re.search(r'vmcnt\((\d+)\)', ins.text)
                if m: vm_done = max(vm_done, len(vmq) - int(m.group(1)))
                m = re.search(r'lgkmcnt\((\d+)\)', ins.text)
                if m: lg_done = max(lg_done, len(lgq) - int(m.group(1)))
            if ins.kind in ('vload', 'vstore', 'dma'):
                vmq.append(ev(ins.tag, it))
                if ins.kind == 'vload':
                    for r in ins.defs: pend[r] = ('vm', len(vmq) - 1)
                if len(vmq) - vm_done > 63:
                    pass
                    raise RuntimeError(f'more than 63 vm ops outstanding at {ins.text} role {role}')
            elif ins.kind in ('dsr', 'dsw', 'smem'):
                lgq.append(ins.kind)
                if ins.kind == 'smem' and not ins.op.startswith('s_load_dword '): lgq.append('smem')
                for r in ins.defs: pend[r] = ('lg', len(lgq) - 1)
                if ins.kind == 'dsw':
                    for r in ins.uses: wsrc[r] = len(lgq) - 1
            else:
                for r in ins.defs: pend.pop(r, None)

MFMA_RD = {4: 8, 8: 12}
MFMA_OVL = {4: 6, 8: 10}
MFMA_WAR = {4: 3, 8: 7}

def need_states(p, c):
    n = 0
    pd, cd, cu = set(p.defs), set(c.defs), set(c.uses)
    vdefs = {r for r in pd if r[0] in 'va' and r != 'vcc'}
    sdefs = pd - vdefs
    if p.kind == 'mfma':
        if c.kind == 'mfma':
            if pd & set(c.srcab): n = max(n, MFMA_RD[p.passes])
            if pd & set(c.srcc):
                if not (p.defs == c.srcc and p.passes == c.passes): n = max(n, MFMA_OVL[p.passes])
            elif pd & cd: n = max(n, MFMA_OVL[p.passes])
        elif c.kind not in ('salu', 'barrier', 'wait', 'smem', 'other'):
            if pd & (cu | cd): n = max(n, MFMA_RD[p.passes])
        if c.isvalu and set(p.srcc) & cd: n = max(n, MFMA_WAR[p.passes])
    if p.isvalu:
        if c.kind == 'mfma' and vdefs & cu: n = max(n, 3 if p.kind == 'dot' else 2)
        if p.kind == 'trans' and c.isvalu and c.kind != 'trans' and vdefs & cu: n = max(n, 1)
        if p.kind == 'trans' and c.kind == 'mfma' and vdefs & cu: n = max(n, 2)
        if p.kind == 'dot':
            if c.kind == 'dot' and c.op == p.op:
                srcab = set(r for o in c.ops[1:3] for r in regs_of(o))
                if vdefs & srcab: n = max(n, 3)
            elif vdefs & (cu | cd) and c.kind not in ('salu', 'barrier', 'wait'): n = max(n, 3)
        if c.op.startswith('v_permlane') and vdefs & cu: n = max(n, 2)
        if (c.op.startswith('v_readfirstlane') or c.op.startswith('v_readlane')) and vdefs & cu: n = max(n, 1)
        if 'dpp' in c.op or 'row_' in c.mods or 'quad_perm' in c.mods:
            if vdefs & cu: n = max(n, 2)
        if sdefs:
            if c.isvalu and sdefs & cu: n = max(n, 2)
            if c.kind in ('vload', 'vstore', 'dma') and sdefs & cu: n = max(n, 5)
            if c.kind == 'salu' and sdefs & cu: n = max(n, 1)
        if 'sdwa' in p.op or 'op_sel' in p.mods and not p.op.startswith('v_pk'):
            if c.isvalu and vdefs & (cu | cd): n = max(n, 1)
    if p.kind == 'salu' and 'm0' in pd and (c.kind == 'dma' or 'addtid' in c.op): n = max(n, 1)
    if p.kind == 'vstore' and getattr(p, 'wide', False) and set(p.sdata) & cd:
        n = max(n, 2 if c.isvalu else 1)
    return n

def pad_hazards(items, roles):
    changed = True
    while changed:
        changed = False
        for role in roles:
            tr = [x for x, _ in trace(items, role)]
            for j, c in enumerate(tr):
                if c.kind == 'wait': continue
                dist = c.pre_nop + (1 if (c.pre_vm is not None or c.pre_lg is not None) else 0)
                for i in range(j - 1, max(-1, j - 24), -1):
                    p = tr[i]
                    n = need_states(p, c)
                    if n > dist:
                        c.pre_nop += n - dist
                        dist = n
                        changed = True
                    dist += p.states + p.pre_nop + (1 if (p.pre_vm is not None or p.pre_lg is not None) else 0)
                    if dist >= 13: break

def finalize(items, roles):
    resolve_waits(items, roles)
    pad_hazards(items, roles)
    return flat(items)

class Regs:
    def __init__(self, kind, start, limit):
        self.kind, self.next, self.limit = kind, start, limit
        self.names = {}
    def alloc(self, n=1, align=1, name=None):
        b = (self.next + align - 1) // align * align
        self.next = b + n
        assert self.next <= self.limit, f'out of {self.kind} regs at {name}'
        if name: self.names[name] = (b, n)
        return b

def vr(b, n=1):
    return f'v{b}' if n == 1 else f'v[{b}:{b+n-1}]'
def sr(b, n=1):
    return f's{b}' if n == 1 else f's[{b}:{b+n-1}]'
```

```python
from common import *
import os

MF = "v_mfma_f32_32x32x16_bf16"

def interleave(p, mains, fills):
    n, k = len(mains), 0
    for i, m in enumerate(mains):
        m()
        upto = (len(fills) * (i + 1) + n - 1) // n
        while k < upto:
            fills[k](); k += 1

def mix(*lists):
    items = []
    for li, l in enumerate(lists):
        for j, x in enumerate(l): items.append(((j + 0.5) / len(l), li, j, x))
    items.sort(key=lambda t: t[:3])
    return [t[3] for t in items]

def gen_kf(name, stamps=False):
    OPT = os.environ.get('K1OPT', '').split(',')
    HSC = '' if 'nohsc' in OPT else 'sc1'
    p = Prog('A')
    st = Stamper(stamps, 100, 0, 8)
    S_WS, S_X, S_W1, S_W3, S_WM, S_QKV, S_PHI, S_DBG = 28, 32, 36, 40, 44, 48, 52, 56
    (s_w, s_i, s_g, s_rb, s_grp, s_rot, s_t0, s_t1, s_t2, s_t3, s_ci, s_kc, s_xoff, s_woff, s_mslot, s_it,
     s_mA, s_mB, s_rd, s_hoff, s_ds, s_qoff, s_poff, s_fl, s_koff, s_voff, s_rslot, s_col, s_sto, s_flr) = range(60, 90)
    s_cso = 93; s_csg = 94; s_pf = 95; s_pair = 96
    s_ct2, s_rb2, s_rot2, s_bs0, s_bo = 26, 27, 3, 98, s_xoff
    S_W2 = S_W1; ABASE, BBASE = 0, 49152
    s_non = 90
    s_wit = 92
    lane, l16, t0, t1, t2, t3, t4, t5, vstamp, v9 = range(10)
    BASE = 10
    drop = tuple(x[5:] for x in OPT if x.startswith('drop_'))
    isA = lambda r, it: r['type'] == 'A'
    isF = lambda g: (lambda r, it: r['type'] == 'F' and r['g'] == g)
    isw0 = lambda r, it: r['w'] == 0
    isg0 = lambda r, it: r['g'] == 0
    p.I("s_cmp_ge_u32 s2, 256")
    p.I(f"s_cbranch_scc1 {name}_end")
    st.stamp(p, 'start')
    load_args(p)
    p.I(f"""v_lshrrev_b32 v{t0}, 6, v0
            v_and_b32 v{lane}, 63, v0
            s_and_b32 s{s_t0}, s2, 7
            s_lshr_b32 s{s_t1}, s2, 3
            v_readfirstlane_b32 s{s_w}, v{t0}
            s_and_b32 s{s_t2}, s{s_t1}, 7
            s_lshr_b32 s{s_ci}, s{s_t1}, 3
            s_and_b32 s{s_rb}, s{s_t0}, 1
            s_lshl_b32 s{s_rb}, s{s_rb}, 3
            s_add_u32 s{s_rb}, s{s_rb}, s{s_t2}
            s_and_b32 s{s_grp}, s{s_t0}, 6
            s_and_b32 s{s_t3}, s{s_ci}, 1
            s_add_u32 s{s_grp}, s{s_grp}, s{s_t3}
            s_lshr_b32 s{s_t0}, s{s_t0}, 1
            s_lshl_b32 s{s_t3}, s{s_t3}, 2
            s_add_u32 s{s_rot}, s{s_t0}, s{s_t3}
            s_and_b32 s{s_t3}, s{s_ci}, 2
            s_add_u32 s{s_rot}, s{s_rot}, s{s_t3}
            s_add_u32 s{s_rot}, s{s_rot}, s{s_t2}
            s_and_b32 s{s_rot}, s{s_rot}, 7
            s_and_b32 s{s_i}, s{s_w}, 3
            s_lshr_b32 s{s_g}, s{s_w}, 2
            v_lshlrev_b32 v{l16}, 4, v{lane}
            s_cmp_lg_u32 s{s_w}, 7""")
    def cpf():
        here = p.newlabel('Lpc')
        p.I(f"s_getpc_b64 s[{s_pair}:{s_pair+1}]")
        p.label(here)
        p.I(f"""s_lshl_b32 s{s_t0}, s{s_t1}, {os.environ.get('CPFSH', '11')}
                v_lshlrev_b32 v{t5}, 7, v{lane}
                v_add_u32 v{t5}, s{s_t0}, v{t5}
                v_min_u32 v{t5}, {name}_last-{here}, v{t5}
                s_mov_b64 exec, 0xffff""")
        p.I(f"global_load_dword v{v9}, v{t5}, s[{s_pair}:{s_pair+1}]")
        p.I("s_mov_b64 exec, -1")
    if 'nocpf' not in OPT: p.cond(lambda r, it: r['w'] == 7, "s_cbranch_scc1", cpf)
    p.I(f"""s_cmp_lt_u32 s{s_ci}, 2
            s_cbranch_scc1 {name}_proA
            s_cmp_lg_u32 s{s_g}, 0
            s_cbranch_scc1 {name}_proF1""")
    base_names = list(st.names)
    info = {}

    def xaddr_calc(xa):
        p.I(f"""v_and_b32 v{t0}, 31, v{lane}
                v_lshlrev_b32 v{t1}, 7, v{t0}
                s_lshl_b32 s{s_t0}, s{s_i}, 12
                v_add_u32 v{t1}, s{s_t0}, v{t1}
                v_bfe_u32 v{t0}, v{lane}, 1, 3
                v_lshrrev_b32 v{t2}, 5, v{lane}
                v_xor_b32 v{t0}, v{t0}, v{t2}
                v_lshl_add_u32 v{t1}, v{t0}, 4, v{t1}""")
        for t in range(4):
            p.I(f"""s_add_u32 s{s_t0}, s{s_i}, {t}
                    s_and_b32 s{s_t0}, s{s_t0}, 3
                    s_lshl_b32 s{s_t0}, s{s_t0}, 5
                    v_xor_b32 v{xa+t}, s{s_t0}, v{t1}""")
    def per_t(dst, src, ks_stride):
        for t in range(4):
            p.I(f"""s_add_u32 s{s_t0}, s{s_i}, {t}
                    s_and_b32 s{s_t0}, s{s_t0}, 3
                    s_mul_i32 s{s_t0}, s{s_t0}, {ks_stride}
                    v_add_u32 v{dst+t}, s{s_t0}, v{src}""")
    def sync_setup(typ):
        srd(p, S_WS, WS_P, WS_BYTES); srd(p, S_DBG, DBG_P, 256)
        p.I(f"""s_lshl_b32 s{s_t0}, s{s_rb}, 2
                s_add_u32 s{s_t0}, s{s_t0}, s{s_i}
                s_lshl_b32 s{s_sto}, s{s_t0}, 12
                s_add_u32 s{s_sto}, s{s_sto}, {ST_OFF + typ * 64 * 4096}
                s_lshl_b32 s{s_wit}, s{s_w}, 8
                s_lshl_b32 s{s_cso}, s{s_grp}, 1
                s_lshr_b32 s{s_t0}, s{s_rb}, 3
                s_add_u32 s{s_cso}, s{s_cso}, s{s_t0}
                s_lshl_b32 s{s_cso}, s{s_cso}, 15
                s_add_u32 s{s_cso}, s{s_cso}, {CS_OFF + typ * 16 * 32768}""")
    def nonce_pub():
        p.I(f"s_lshl_b32 s{s_t0}, s{s_w}, 8\n s_add_u32 s{s_t0}, s{s_t0}, s2\n s_cmp_eq_u32 s{s_t0}, 0")
        def pub():
            srd(p, S_DBG, DBG_P, 256)
            p.I(f"s_memrealtime s[{s_non}:{s_non+1}]\n s_waitcnt lgkmcnt(0)")
            p.I(f"""v_mov_b32 v{t0}, s{s_non}
                    v_mov_b32 v{t1}, s{s_non+1}
                    v_mov_b32 v{t2}, 0
                    s_mov_b64 exec, 1""")
            p.I(f"buffer_store_dwordx2 {vr(t0,2)}, v{t2}, s[{S_DBG}:{S_DBG+3}], 0 offen sc1")
            p.I("s_mov_b64 exec, -1")
        p.rare(lambda r, it: r.get('wg0', False), "s_cbranch_scc1", pub)
    def stat_ops(xr, sS, sQ):
        out = []
        for o in range(0, 4, 2):
            out += [f"v_lshlrev_b32 v{t0}, 16, v{xr+o}", f"v_and_b32 v{t1}, 0xffff0000, v{xr+o}",
                    f"v_lshlrev_b32 v{t2}, 16, v{xr+o+1}", f"v_and_b32 v{t3}, 0xffff0000, v{xr+o+1}",
                    f"v_add_f32 v{sS}, v{sS}, v{t0}", f"v_add_f32 v{sS+1}, v{sS+1}, v{t1}",
                    f"v_fmac_f32 v{sQ}, v{t0}, v{t0}", f"v_fmac_f32 v{sQ+1}, v{t1}, v{t1}",
                    f"v_add_f32 v{sS}, v{sS}, v{t2}", f"v_add_f32 v{sS+1}, v{sS+1}, v{t3}",
                    f"v_fmac_f32 v{sQ}, v{t2}, v{t2}", f"v_fmac_f32 v{sQ+1}, v{t3}, v{t3}"]
        return out
    def cs_pre(F, dst):
        for k in range(0, 16, 2):
            p.I(f"""v_lshlrev_b32 v{t0}, 16, v{F+k}
                    v_and_b32 v{t1}, 0xffff0000, v{F+k}
                    v_lshlrev_b32 v{t2}, 16, v{F+k+1}
                    v_and_b32 v{t3}, 0xffff0000, v{F+k+1}""")
            if k == 0: p.I(pk("v_pk_add_f32", t4, t0, t2))
            else:
                p.I(pk("v_pk_add_f32", t4, t4, t0)); p.I(pk("v_pk_add_f32", t4, t4, t2))
        p.I(f"""v_add_f32 v{t4}, v{t4}, v{t5}
                v_mov_b32 v{t5}, v{t4}
                v_permlane32_swap_b32 v{t4}, v{t5}
                v_add_f32 v{dst}, v{t4}, v{t5}""")
    def cs_publish(src, s_blk):
        p.I(f"""v_mov_b32 v{src+1}, s{s_non}
                s_lshl_b32 s{s_t0}, s{s_blk}, 11
                s_add_u32 s{s_t0}, s{s_t0}, s{s_cso}
                s_and_b32 s{s_t1}, s{s_rb}, 6
                s_lshl_b32 s{s_t1}, s{s_t1}, 8
                s_add_u32 s{s_t0}, s{s_t0}, s{s_t1}
                s_and_b32 s{s_t1}, s{s_rb}, 1
                s_lshl_b32 s{s_t1}, s{s_t1}, 3
                s_add_u32 s{s_t0}, s{s_t0}, s{s_t1}
                s_mov_b64 exec, 0xffffffff""")
        p.I(f"buffer_store_dwordx2 {vr(src,2)}, v{l16}, s[{S_WS}:{S_WS+3}], s{s_t0} offen sc1")
        p.I("s_mov_b64 exec, -1")
    def fetch(loads):
        last = None
        for q, sb, o in loads:
            hi = o // 4096
            if (sb, hi) != last:
                p.I(f"s_add_u32 s{s_t0}, s{sb}, {hi * 4096}"); last = (sb, hi)
            p.I(f"buffer_load_dwordx4 {vr(q,4)}, v{l16}, s[{S_WS}:{S_WS+3}], s{s_t0} offen offset:{o % 4096} sc1")
    def validate(loads):
        tags = [r for q, _, _ in loads for r in (q + 1, q + 3)]
        def test():
            for op, acc in (("min", t0), ("max", t1)):
                p.I(f"v_{op}_u32 v{acc}, v{tags[0]}, v{tags[1]}")
                for k in range(2, len(tags), 2): p.I(f"v_{op}3_u32 v{acc}, v{acc}, v{tags[k]}, v{tags[k+1]}")
            p.I(f"""v_cmp_eq_u32 vcc, s{s_non}, v{t0}
                    v_cmp_eq_u32 s[{s_pair}:{s_pair+1}], s{s_non}, v{t1}
                    s_and_b64 vcc, vcc, s[{s_pair}:{s_pair+1}]""")
        test()
        p.I("s_cmp_eq_u64 vcc, -1")
        def slow():
            lab = p.newlabel('Lval'); done = p.newlabel('Lvald')
            p.I(f"s_mov_b32 s{s_t1}, 0")
            p.label(lab)
            fetch(loads)
            p.I("s_waitcnt vmcnt(0)")
            test()
            p.I(f"""s_add_u32 s{s_t1}, s{s_t1}, 1
                    s_cmp_ge_u32 s{s_t1}, 0x40000
                    s_cbranch_scc1 {done}
                    s_cmp_eq_u64 vcc, -1
                    s_cbranch_scc0 {lab}""")
            p.label(done)
        p.rare(lambda r, it: r.get('slow', False), "s_cbranch_scc0", slow)
    def xhalf(a):
        p.I(f"""v_permlane32_swap_b32 v{a}, v{a+1}
                v_add_f32 v{a}, v{a}, v{a+1}
                v_mov_b32 v{a+1}, v{a}
                v_permlane32_swap_b32 v{a}, v{a+1}""")
    def stats_pre(sS, sQ, P):
        p.I(f"v_add_f32 v{sS}, v{sS}, v{sS+1}\n v_add_f32 v{sS+1}, v{sQ}, v{sQ+1}")
        xhalf(sS)
        p.I(f"v_mov_b32 v{P}, v{sS}\n v_mov_b32 v{P+2}, v{sS+1}")
    def stats_publish(P):
        p.I(f"""v_mov_b32 v{P+1}, s{s_non}
                v_mov_b32 v{P+3}, s{s_non}
                s_lshl_b32 s{s_t0}, s{s_grp}, 9
                s_add_u32 s{s_t0}, s{s_t0}, s{s_sto}
                s_mov_b64 exec, 0xffffffff""")
        p.I(f"buffer_store_dwordx4 {vr(P,4)}, v{l16}, s[{S_WS}:{S_WS+3}], s{s_t0} offen sc1")
        p.I("s_mov_b64 exec, -1")
    st_loads = lambda B: [(B + 4*j, s_sto, 1024*j) for j in range(4)]
    def st_addr(dst, base):
        p.I(f"""v_and_b32 v{dst}, 31, v{lane}
                v_lshlrev_b32 v{dst}, 3, v{dst}
                s_lshl_b32 s{s_t0}, s{s_i}, 8
                s_add_u32 s{s_t0}, s{s_t0}, {base}
                v_add_u32 v{dst}, s{s_t0}, v{dst}""")
    def f_consts(rstd, sd, c1, irs2):
        p.I(f"v_mul_f32 v{irs2}, v{sd}, v{sd}\n v_mul_f32 v{c1}, {0x80000000 | LOG2E}, v{rstd}")
    def stats_final(E, M, rstd, sd):
        T = t0
        p.I(f"""v_add_f32 v{E}, v{E}, v{E+4}
                v_add_f32 v{E+1}, v{E+2}, v{E+6}
                v_add_f32 v{E+8}, v{E+8}, v{E+12}
                v_add_f32 v{E+9}, v{E+10}, v{E+14}""")
        p.I(pk("v_pk_add_f32", E, E, E+8))
        xhalf(E)
        p.I(f"""v_mul_f32 v{E}, 0x3b000000, v{E}
                v_mul_f32 v{E+1}, 0x3b000000, v{E+1}
                v_fma_f32 v{E+1}, -v{E}, v{E}, v{E+1}
                v_cvt_pk_bf16_f32 v{M}, -v{E}, -v{E}
                v_max_f32 v{E+1}, 0, v{E+1}
                v_cvt_pk_bf16_f32 v{T}, v{E+1}, v{E+1}
                v_and_b32 v{T}, 0xffff0000, v{T}
                v_add_f32 v{T}, 0x3727c5ac, v{T}
                v_cvt_pk_bf16_f32 v{T}, v{T}, v{T}
                v_and_b32 v{T}, 0xffff0000, v{T}
                v_sqrt_f32 v{T}, v{T}
                v_cvt_pk_bf16_f32 v{T}, v{T}, v{T}
                v_and_b32 v{sd}, 0xffff0000, v{T}
                v_rcp_f32 v{rstd}, v{sd}""")
    def corr_prep(qa, qb, dst):
        T = t5
        p.I(f"""v_add_f32 v{qa}, v{qa}, v{qa+2}
                v_add_f32 v{qb}, v{qb}, v{qb+2}
                v_add_f32 v{qa}, v{qa}, v{qb}
                v_cvt_pk_bf16_f32 v{T}, v{qa}, v{qa}
                v_and_b32 v{T}, 0xffff0000, v{T}
                v_sub_f32 v{T}, v{qa}, v{T}
                v_cvt_pk_bf16_f32 v{dst}, v{qa}, v{T}""")
    def corr_mf(acc, src, C, M):
        p.I(f"v_mov_b32 v{C}, v{src}")
        p.I(f"{MF} {vr(acc,16)}, {vr(C,4)}, {vr(M,4)}, {vr(acc,16)}")
    def f_epi_list(acc, c1, irs2, T, soff, packed):
        L = []
        if packed:
            L += [pk("v_pk_mul_f32", T+i, acc+i, c1, bc=(1,)) for i in range(0, 8, 2)]
            L += [f"v_exp_f32 v{T+i}, v{T+i}" for i in range(8)]
            L += [pk("v_pk_mul_f32", acc+i, acc+i, acc+8+i) for i in range(0, 8, 2)]
            L += [pk("v_pk_fma_f32", T+i, T+i, irs2, irs2, bc=(1, 2)) for i in range(0, 8, 2)]
            L += [f"v_rcp_f32 v{T+i}, v{T+i}" for i in range(8)]
            L += [pk("v_pk_mul_f32", acc+i, acc+i, T+i) for i in range(0, 8, 2)]
        else:
            L += [f"v_mul_f32 v{T+i}, v{acc+i}, v{c1}" for i in range(8)]
            for i in range(8): L += [f"v_exp_f32 v{T+i}, v{T+i}", f"v_mul_f32 v{acc+i}, v{acc+i}, v{acc+8+i}"]
            L += [f"v_fma_f32 v{T+i}, v{T+i}, v{irs2}, v{irs2}" for i in range(8)]
            L += [f"v_rcp_f32 v{T+i}, v{T+i}" for i in range(2)]
            for i in range(8):
                if i + 2 < 8: L += [f"v_rcp_f32 v{T+i+2}, v{T+i+2}"]
                L += [f"v_mul_f32 v{acc+i}, v{acc+i}, v{T+i}"]
        L += [f"v_cvt_pk_bf16_f32 v{acc+i}, v{acc+2*i}, v{acc+2*i+1}" for i in range(4)]
        L += [f"buffer_store_dwordx4 {vr(acc,4)}, v{l16}, s[{S_WS}:{S_WS+3}], {soff} {HSC}"]
        return [lambda x=x: p.I(x, tag='hst' if x.startswith('buffer') else None) for x in L]
    def f_epilogue(acc, c1, irs2, T, soff):
        for f in f_epi_list(acc, c1, irs2, T, soff, True): f()
    def nonce_sample(vf):
        p.I(f"v_mov_b32 v{t0}, 0")
        p.I(f"buffer_load_dwordx2 {vr(vf,2)}, v{t0}, s[{S_DBG}:{S_DBG+3}], 0 offen sc1")
    def nonce_take(vf):
        p.I(f"v_mov_b32 v{t0}, 0")
        nonce_get(p, vf, t0, S_DBG, "0", s_non, s_t0)
    S_PF = S_PHI
    def pf_list(dummy):
        L = []
        def setup(ptr, nbytes, per):
            srd(p, S_PF, ptr, nbytes)
            p.I(f"""s_lshr_b32 s{s_pf}, s2, 3
                    s_mul_i32 s{s_pf}, s{s_pf}, {per}
                    s_add_u32 s{s_pf}, s{s_pf}, s{s_w}
                    s_lshl_b32 s{s_pf}, s{s_pf}, 10""")
        def ld():
            p.I(f"buffer_load_dwordx4 {vr(dummy,4)}, v{l16}, s[{S_PF}:{S_PF+3}], s{s_pf} offen")
            p.I(f"s_add_u32 s{s_pf}, s{s_pf}, 8192")
        if 'l2pf' not in OPT: return []
        L.append(lambda: (setup(W2_P, 1376*1024, 43), ld()))
        L += [ld] * 5
        L.append(lambda: (setup(WO_P, 512*1024, 16), ld()))
        L.append(ld)
        return L
    def mall_touch(dummy):
        if 'nomall' in OPT: return
        p.I(f"""s_lshl_b32 s{s_pf}, s2, 3
                s_add_u32 s{s_pf}, s{s_pf}, s{s_w}
                s_sub_u32 s{s_t0}, s{s_pf}, 1376
                s_cmp_lt_u32 s{s_pf}, 1376
                s_cselect_b32 s{s_pf}, s{s_pf}, s{s_t0}
                s_cselect_b64 s[{S_PF}:{S_PF+1}], s[{W2_P}:{W2_P+1}], s[{WO_P}:{WO_P+1}]
                s_mov_b32 s{s_t0}, {512*1024}
                s_cselect_b32 s{S_PF+2}, {1376*1024}, s{s_t0}
                s_mov_b32 s{S_PF+3}, 0x20000
                s_lshl_b32 s{s_pf}, s{s_pf}, 10""")
        p.I(f"buffer_load_dwordx4 {vr(dummy,4)}, v{l16}, s[{S_PF}:{S_PF+3}], s{s_pf} offen")
    def code_pf(label, dummy, piece_s=None):
        here = p.newlabel('Lpc')
        p.I(f"s_getpc_b64 s[{s_pair}:{s_pair+1}]")
        p.label(here)
        p.I(f"""s_add_u32 s{s_pair}, s{s_pair}, {label}-{here}
                s_addc_u32 s{s_pair+1}, s{s_pair+1}, {'0' if label.startswith('k2') else '-1'}
                v_lshlrev_b32 v{dummy}, 7, v{lane}""")
        if piece_s is not None: p.I(f"v_add_u32 v{dummy}, s{piece_s}, v{dummy}")
        p.I(f"global_load_dword v{dummy}, v{dummy}, s[{s_pair}:{s_pair+1}]")
    def kap0(s, dst):
        if s < 8:
            p.I(f"""s_add_u32 s{dst}, s{s_rot2}, {s}
                    s_and_b32 s{dst}, s{dst}, 7
                    s_lshl_b32 s{dst}, s{dst}, 3
                    s_add_u32 s{dst}, s{dst}, 16""")
        else: p.I(f"s_mov_b32 s{dst}, {[80, 0, 8, 86, 94, 102, 110][s-8]}")
    def p2_params(off):
        p.I(f"""s_lshr_b32 s{s_t0}, s2, 3
                s_and_b32 s{s_ct2}, s{s_t0}, 7
                s_and_b32 s{s_rb2}, s2, 1
                s_lshl_b32 s{s_rb2}, s{s_rb2}, 4
                s_and_b32 s{s_t0}, s2, 6
                s_lshl_b32 s{s_t0}, s{s_t0}, 1
                s_add_u32 s{s_rb2}, s{s_rb2}, s{s_t0}
                s_add_u32 s{s_rb2}, s{s_rb2}, s{s_ci}
                s_lshl_b32 s{s_rot2}, s{s_ci}, 1
                s_add_u32 s{s_rot2}, s{s_rot2}, s{s_ct2}
                s_mov_b32 s{s_bs0}, {off}""")
    def vb_calc(vB, n):
        p.I(f"""v_lshrrev_b32 v{t0}, 3, v{lane}
                v_lshlrev_b32 v{t0}, 10, v{t0}
                v_and_b32 v{t1}, 7, v{lane}
                v_bfe_u32 v{t2}, v{lane}, 4, 1
                v_lshlrev_b32 v{t2}, 2, v{t2}
                v_xor_b32 v{t1}, v{t1}, v{t2}
                v_lshl_add_u32 v{vB}, v{t1}, 4, v{t0}
                s_lshl_b32 s{s_t0}, s{s_ct2}, 7
                v_add_u32 v{vB}, s{s_t0}, v{vB}""")
        for m in range(1, n): p.I(f"v_add_u32 v{vB+m}, {7168*m}, v{vB}")
    def bpf_setup(vB, off):
        p2_params(off); vb_calc(vB, 2); srd(p, S_W2, W2_P, 1376*1024)
    def bpf(s, vB, off):
        def a():
            kap0(s, s_t1)
            p.I(f"""s_add_u32 s{s_t1}, s{s_t1}, s{s_w}
                    s_lshl_b32 s{s_bo}, s{s_t1}, 14
                    s_lshl_b32 s{s_t1}, s{s_w}, 11
                    s_add_u32 m0, s{s_t1}, {BBASE + ((s + off) % 7) * 16384}""")
            p.I(f"buffer_load_dwordx4 v{vB}, s[{S_W2}:{S_W2+3}], s{s_bo} offen lds")
            p.I(f"buffer_load_dwordx4 v{vB+1}, s[{S_W2}:{S_W2+3}], s{s_bo} offen offset:1024 lds")
        return [] if 'nobpf' in OPT else [a]
    def finish(typ):
        p.wait(vm=['hst'], lg_all=True)
        p.I("s_barrier")
        def fr():
            p.I(f"""s_lshl_b32 s{s_t1}, s{s_rb}, 3
                    s_add_u32 s{s_t1}, s{s_t1}, s{s_grp}
                    s_lshl_b32 s{s_t1}, s{s_t1}, 7
                    s_add_u32 s{s_t1}, s{s_t1}, {FL_OFF + typ * 128 * 128}""")
            flag_raise(p, t2, S_WS, s_t1, s_non)
        ifw(0, fr)
        st.stamp(p, 'ph1')
        p.I(f"s_branch {name}_ph2")
    def ifw(w, fn):
        p.I(f"s_cmp_lg_u32 s{s_w}, {w}"); p.cond(lambda r, it: r['w'] == w, "s_cbranch_scc1", fn)
    def rarew(w, fn):
        p.I(f"s_cmp_eq_u32 s{s_w}, {w}"); p.rare(lambda r, it: r['w'] == w, "s_cbranch_scc1", fn)

    FSLOT = 53376; FW1 = 16384; FW3 = 16384 + 18432 + 128
    FEX2 = 2 * FSLOT
    def ftype(g):
        V = Regs('v', BASE, 256)
        st.n = len(base_names); st.names = list(base_names)
        nb = 5 if g == 0 else 4
        b0 = 0 if g == 0 else 5
        nd = 6 if g == 0 else 7
        vd = V.alloc(7); xa = V.alloc(4); wa = V.alloc(4)
        ACC = V.alloc(16 * nb, 4)
        SET = [V.alloc(24, 4), V.alloc(24, 4)]
        XT = V.alloc(28, 4); WTB = V.alloc(32, 4)
        sS, sQ, PUBS, PUBC, PUB8, VF, vpre = WTB + 16, WTB + 18, XT + 16, XT + 20, XT + 22, XT + 24, XT + 26
        FEX = 2 * FSLOT
        floads = [(WTB, s_csg, 0), (WTB + 4, s_csg, 1024)] + (st_loads(XT) if g == 1 else [])
        floads8 = [(WTB + 8, s_cso, 16384), (WTB + 12, s_cso, 17408)]
        M = V.alloc(4, 4); C = V.alloc(4, 4); T = V.alloc(8, 4)
        c1 = V.alloc(1, 2); rstd = V.alloc(); irs2 = V.alloc(1, 2); C0 = V.alloc(5); PFD = V.alloc(4, 4)
        def dma(n, tag):
            if g == 0:
                if n == 0: p.I(f"s_add_u32 m0, s{s_mslot}, s{s_mA}")
                if n == 3: p.I(f"s_add_u32 m0, s{s_mslot}, s{s_mB}")
                S = S_W1 if n < 3 else S_W3
                p.I(f"buffer_load_dwordx4 v{vd + n % 3}, s[{S}:{S+3}], s{s_woff} offen offset:{1024*(n%3)} lds", tag=tag)
            else:
                if n == 0: p.I(f"s_add_u32 m0, s{s_mslot}, s{s_mA}")
                if n == 4: p.I(f"s_add_u32 m0, s{s_mslot}, s{s_mB}")
                if n < 4: p.I(f"buffer_load_dwordx4 v{vd+3+n}, s[{S_X}:{S_X+3}], s{s_xoff} offen offset:{1024*n} lds", tag=tag)
                else: p.I(f"buffer_load_dwordx4 v{vd+n-4}, s[{S_WM}:{S_WM+3}], s{s_woff} offen offset:{1024*(n-4)} lds", tag=tag)
        nxt = f"""s_add_u32 s{s_kc}, s{s_kc}, 1
                  s_and_b32 s{s_kc}, s{s_kc}, 7
                  s_lshl_b32 s{s_xoff}, s{s_kc}, 7
                  s_mul_i32 s{s_woff}, s{s_kc}, {64*2752}
                  s_add_u32 s{s_mslot}, s{s_mslot}, {FSLOT}
                  s_cmp_ge_u32 s{s_mslot}, {3*FSLOT}
                  s_cselect_b32 s{s_mslot}, 0, s{s_mslot}
                  s_add_u32 s{s_ds}, s{s_ds}, 1"""
        def prologue():
            p.label(f"{name}_proF{g}")
            p.I(f"""s_mul_i32 s{s_col}, s{s_grp}, 288
                    s_add_u32 s{s_col}, s{s_col}, 512
                    s_min_u32 s{s_col}, s{s_col}, 2464""")
            def wvoff(dst, q_s, m):
                p.I(f"""s_add_u32 s{s_t0}, s{q_s}, {m}
                        s_lshl_b32 s{s_t0}, s{s_t0}, 6
                        v_add_u32 v{t0}, s{s_t0}, v{lane}
                        v_mul_u32_u24 v{t1}, 3641, v{t0}
                        v_lshrrev_b32 v{t1}, 16, v{t1}
                        v_mul_u32_u24 v{t2}, {2752 - 18*16}, v{t1}
                        v_lshl_add_u32 v{t0}, v{t0}, 4, v{t2}
                        s_sub_u32 s{s_t0}, s{s_col}, {1024*m}
                        v_add_u32 v{dst}, s{s_t0}, v{t0}""")
            if g == 0:
                p.I(f"s_mul_i32 s{s_t2}, s{s_i}, 3")
                for m in range(3): wvoff(vd + m, s_t2, m)
                p.I(f"""s_lshl_b32 s{s_mA}, s{s_t2}, 10
                        s_add_u32 s{s_mB}, s{s_mA}, {FW3}
                        s_add_u32 s{s_mA}, s{s_mA}, {FW1}""")
            else:
                p.I(f"""s_lshl_b32 s{s_t0}, s{s_rb}, 2
                        s_add_u32 s{s_t0}, s{s_t0}, s{s_i}
                        s_lshl_b32 s{s_t0}, s{s_t0}, 15
                        v_lshrrev_b32 v{t0}, 3, v{lane}
                        v_lshlrev_b32 v{t0}, 10, v{t0}
                        v_add_u32 v{t0}, s{s_t0}, v{t0}
                        v_and_b32 v{t1}, 7, v{lane}
                        v_lshrrev_b32 v{t2}, 4, v{lane}
                        v_xor_b32 v{t1}, v{t1}, v{t2}
                        v_lshl_add_u32 v{vd+3}, v{t1}, 4, v{t0}
                        v_xor_b32 v{t0}, 64, v{vd+3}
                        v_add_u32 v{vd+4}, {7168}, v{t0}
                        v_add_u32 v{vd+5}, {2*7168}, v{vd+3}
                        v_add_u32 v{vd+6}, {3*7168}, v{t0}
                        s_and_b32 s{s_t2}, s{s_i}, 1
                        s_mul_i32 s{s_t2}, s{s_t2}, 3
                        s_add_u32 s{s_t2}, s{s_t2}, 12""")
                for m in range(3): wvoff(vd + m, s_t2, m)
                p.I(f"""s_lshl_b32 s{s_mB}, s{s_t2}, 10
                        s_lshr_b32 s{s_t0}, s{s_i}, 1
                        s_mul_i32 s{s_t0}, s{s_t0}, {FW3-FW1}
                        s_add_u32 s{s_mB}, s{s_mB}, s{s_t0}
                        s_add_u32 s{s_mB}, s{s_mB}, {FW1}
                        s_lshl_b32 s{s_mA}, s{s_i}, 12""")
            p.I(f"""s_mov_b32 s{s_kc}, s{s_rot}
                    s_lshl_b32 s{s_xoff}, s{s_kc}, 7
                    s_mul_i32 s{s_woff}, s{s_kc}, {64*2752}
                    s_mov_b32 s{s_mslot}, 0
                    s_mov_b32 s{s_ds}, 0""")
            p.I("s_waitcnt lgkmcnt(0)")
            if g == 0:
                srd(p, S_W1, W1_P, 512*2752); srd(p, S_W3, W3_P, 512*2752)
            else:
                srd(p, S_X, X_P, 2048*1024)
                p.I(f"""s_cmp_lt_u32 s{s_i}, 2
                        s_cselect_b64 s[{S_WM}:{S_WM+1}], s[{W1_P}:{W1_P+1}], s[{W3_P}:{W3_P+1}]
                        s_mov_b32 s{S_WM+2}, {512*2752}
                        s_mov_b32 s{S_WM+3}, 0x20000""")
            st.stamp(p, 'args')
            for n in range(nd): dma(n, ('d', 0))
            p.I(nxt)
            p.I(f"s_branch {name}_bodyF{g}")
        split = [int(x) for x in os.environ.get('FSPLIT%d' % g, '2,2,1,1' if g == 0 else '2,2,2,1').split(',')]
        assert sum(split) == nd
        ofs = [sum(split[:k]) for k in range(5)]
        def body():
            p.label(f"{name}_bodyF{g}")
            for n in range(nd): dma(n, ('d', 1))
            p.I(nxt)
            xaddr_calc(xa)
            p.I(f"""v_bfe_u32 v{t0}, v{lane}, 4, 1
                    v_mul_u32_u24 v{t0}, {FW3-FW1}, v{t0}
                    v_lshrrev_b32 v{t1}, 5, v{lane}
                    v_bfe_u32 v{t2}, v{lane}, 2, 2
                    v_lshl_add_u32 v{t1}, v{t1}, 3, v{t2}
                    v_mul_u32_u24 v{t1}, 288, v{t1}
                    v_add_u32 v{t0}, v{t0}, v{t1}
                    v_and_b32 v{t1}, 3, v{lane}
                    v_lshl_add_u32 v{t0}, v{t1}, 3, v{t0}
                    v_add_u32 v{t3}, {FW1 + 32*b0}, v{t0}
                    s_lshl_b32 s{s_t0}, s{s_w}, 5
                    s_add_u32 s{s_t0}, s{s_t0}, {FW1}
                    v_add_u32 v{vpre}, s{s_t0}, v{t0}""")
            per_t(wa, t3, 16 * 288)
            for i in range(0, 16 * nb, 2): p.I(f"v_mov_b64 {vr(ACC+i,2)}, 0")
            for r in [sS, sS+1, sQ, sQ+1, M+1, M+2, M+3, C+1, C+2, C+3]: p.I(f"v_mov_b32 v{r}, 0")
            sync_setup(1)
            p.I(f"""s_lshl_b32 s{s_hoff}, s{s_rb}, 2
                    s_add_u32 s{s_hoff}, s{s_hoff}, s{s_i}
                    s_mul_i32 s{s_hoff}, s{s_hoff}, 118
                    s_lshr_b32 s{s_t1}, s{s_col}, 5
                    s_add_u32 s{s_hoff}, s{s_hoff}, s{s_t1}
                    s_add_u32 s{s_hoff}, s{s_hoff}, {b0}
                    s_lshl_b32 s{s_hoff}, s{s_hoff}, 10
                    s_mov_b32 s{s_it}, 0
                    s_mov_b32 s{s_rslot}, 0
                    s_mov_b32 s{s_t3}, {FSLOT}""")
            def reads(S, t):
                out = [lambda: p.I(f"ds_read_b128 {vr(S,4)}, v{xa+t}")]
                for b in range(nb):
                    out.append(lambda b=b: p.I(f"ds_read_b64_tr_b16 {vr(S+4+4*b,2)}, v{wa+t} offset:{32*b}"))
                    out.append(lambda b=b: p.I(f"ds_read_b64_tr_b16 {vr(S+4+4*b+2,2)}, v{wa+t} offset:{32*b+1152}"))
                return out
            def mf(S):
                return [lambda b=b: p.I(f"{MF} {vr(ACC+16*b,16)}, {vr(S+4+4*b,4)}, {vr(S,4)}, {vr(ACC+16*b,16)}") for b in range(nb)]
            def dgroup(k, tagf, valid):
                lo, hi = ofs[k], ofs[k+1]
                if lo == hi: return []
                return [lambda: (p.I(f"s_cmp_gt_u32 s{s_ds}, 7"),
                                 p.cond(valid, "s_cbranch_scc1", lambda: [dma(n, tagf) for n in range(lo, hi)]))]
            def at_it(k, w0, fn):
                p.I(f"s_cmp_lg_u32 s{s_wit if w0 else s_it}, {k}")
                p.cond(lambda r, it: it == k and (not w0 or r['w'] == 0), "s_cbranch_scc1", fn)
            def special(its, fn):
                p.I(f"s_bitcmp1_b32 {sum(1 << k for k in its)}, s{s_it}")
                p.rare(lambda r, it: it in its, "s_cbranch_scc1", fn)
            p.I(f"s_lshl_b32 s{s_csg}, s{s_w}, 11\n s_add_u32 s{s_csg}, s{s_csg}, s{s_cso}")
            p.wait(vm=[('d', 0)])
            p.I("s_barrier")
            st.stamp(p, 'bar0')
            nonce_sample(VF)
            def pre_reads(extra):
                for t in range(4):
                    for h in range(2):
                        p.I(f"ds_read_b64_tr_b16 {vr(SET[1]+4*t+2*h,2)}, v{vpre} offset:{16*288*t + 1152*h + extra}")
            pre_reads(0)
            if g == 1:
                XS = [XT, XT + 4, XT + 8, XT + 12]
                for t in range(4): p.I(f"ds_read_b128 {vr(XS[t],4)}, v{xa+t}")
            for n in range(split[0]): dma(n, ('d', 2))
            cs_pre(SET[1], PUBC)
            if g == 1:
                for t in range(4): p.I("\n".join(stat_ops(XS[t], sS, sQ)))
                stats_pre(sS, sQ, PUBS)
            else:
                ifw(0, lambda: (pre_reads(256), cs_pre(SET[1], PUB8)))
            for r in reads(SET[0], 0): r()
            st.stamp(p, 'pre')
            FGET = int(os.environ.get('FGET', '3'))
            def lbody():
                v2 = lambda r, it: it + 2 <= 7
                v3 = lambda r, it: it + 3 <= 7
                tg2 = lambda it: ('d', it + 2)
                tg3 = lambda it: ('d', it + 3)
                interleave(p, mf(SET[0]), mix(reads(SET[1], 1), dgroup(1, tg2, v2)))
                interleave(p, mf(SET[1]), mix(reads(SET[0], 2), dgroup(2, tg2, v2)))
                slot = [lambda: p.I(nxt), lambda: p.I(f"""s_add_u32 s{s_rslot}, s{s_rslot}, {FSLOT}
                        s_cmp_ge_u32 s{s_rslot}, {3*FSLOT}
                        s_cselect_b32 s{s_rd}, {(-2*FSLOT) & 0xffffffff}, s{s_t3}
                        s_cselect_b32 s{s_rslot}, 0, s{s_rslot}""")]
                interleave(p, mf(SET[0]), mix(reads(SET[1], 3), dgroup(3, tg2, v2) + slot))
                w = lambda: p.wait(vm=[lambda it: ('d', it + 1)], lg_all=True)
                p.I(f"s_bitcmp1_b32 {(1 << 1) | (1 << (FGET + 1))}, s{s_it}")
                p.rare_else(lambda r, it: it in (1, FGET + 1), "s_cbranch_scc1", w, w)
                p.I("s_barrier")
                if 'fine' in OPT: st.stamp_dyn(p, 'b', s_it, 6)
                adr = [lambda t=t: p.I(f"v_add_u32 v{xa+t}, s{s_rd}, v{xa+t}\n v_add_u32 v{wa+t}, s{s_rd}, v{wa+t}") for t in range(4)]
                def publish():
                    nonce_take(VF)
                    cs_publish(PUBC, s_w)
                    mall_touch(PFD)
                    if g == 1: stats_publish(PUBS)
                    else: ifw(0, lambda: (p.I(f"s_mov_b32 s{s_t2}, 8"), cs_publish(PUB8, s_t2)))
                def get():
                    fetch(floads)
                    if g == 0: ifw(0, lambda: fetch(floads8))
                def digest():
                    validate(floads)
                    corr_prep(WTB, WTB + 4, t2)
                    p.I(f"""v_lshlrev_b32 v{t3}, 2, v{lane}
                            s_lshl_b32 s{s_t0}, s{s_w}, 8
                            s_add_u32 s{s_t0}, s{s_t0}, {FEX}
                            v_add_u32 v{t3}, s{s_t0}, v{t3}""")
                    p.I(f"ds_write_b32 v{t3}, v{t2}")
                    if g == 0:
                        ifw(0, lambda: (validate(floads8), corr_prep(WTB + 8, WTB + 12, t2), p.I(f"ds_write_b32 v{t3}, v{t2} offset:2048")))
                    else:
                        stats_final(XT, M, rstd, M + 1)
                        st_addr(t3, FEX + 2304)
                        p.I(f"ds_write_b64 v{t3}, {vr(M,2)}")
                def postsync():
                    def f():
                        at_it(0, False, publish)
                        at_it(FGET, False, get)
                        at_it(5, False, digest)
                    special((0, FGET, 5), f)
                interleave(p, mf(SET[1]), [adr[0]] + mix(reads(SET[0], 0), adr[1:], dgroup(0, tg3, v3)) + [postsync])
                p.I(f"s_add_u32 s{s_it}, s{s_it}, 1\n s_add_u32 s{s_wit}, s{s_wit}, 1")
            p.drop = drop
            p.loop(6, lbody, f"{name}_f{g}", f"s_cmp_lt_u32 s{s_it}, 6\n s_cbranch_scc1 {name}_f{g}")
            p.drop = ()
            st.stamp(p, 'loop')
            Xr = lambda s, t: SET[0] if (s, t) == (6, 0) else XT + 4 * (4 * (s - 6) + t - 1)
            order = [(0, 6), (1, 6), (2, 6), (0, 7), (1, 7), (2, 7)] + [(b, s) for b in range(3, nb) for s in (6, 7)]
            bufs = [SET[1], WTB, WTB + 16]
            ub = {u: bufs[k % 3] for k, u in enumerate(order)}
            Wr = lambda b, s, t: SET[0] + 4 + 4*b if (s, t) == (6, 0) else ub[(b, s)] + 4*t
            def wread(u):
                b, s = u
                return [lambda t=t, h=h: p.I(f"ds_read_b64_tr_b16 {vr(Wr(b,s,t)+2*h,2)}, v{wa+t} offset:{32*b + 1152*h + (s-6)*FSLOT}")
                        for t in range(4) if (s, t) != (6, 0) for h in range(2)]
            def unit(u):
                b, s = u
                return [lambda t=t: p.I(f"{MF} {vr(ACC+16*b,16)}, {vr(Wr(b,s,t),4)}, {vr(Xr(s,t),4)}, {vr(ACC+16*b,16)}") for t in range(4)]
            xread = lambda s: [lambda t=t: p.I(f"ds_read_b128 {vr(Xr(s,t),4)}, v{xa+t} offset:{(s-6)*FSLOT}") for t in range(4) if (s, t) != (6, 0)]
            cmf = lambda b: corr_mf(ACC + 16*b, C0 + b, C, M)
            def epi(b, packed):
                L = f_epi_list(ACC + 16*b, c1, irs2, T, f"s{s_qoff if (g == 0 and b < 2) else s_hoff} offen offset:{1024*b}" if b < 4 else f"s{s_t2} offen", packed)
                return L
            p.I(f"s_add_u32 s{s_t2}, s{s_hoff}, 4096")
            p.I(f"s_cmp_eq_u32 s{s_grp}, 7\n s_cselect_b32 s{s_qoff}, 0x7ff00000, s{s_hoff}")
            for f in xread(6) + wread(order[0]): f()
            interleave(p, unit(order[0]), wread(order[1]))
            interleave(p, unit(order[1]), wread(order[2]))
            p.wait(vm=[('d', 7)], lg_all=True)
            p.I("s_barrier")
            p.I(f"v_lshlrev_b32 v{t3}, 2, v{lane}\n v_add_u32 v{t3}, {FEX + 256*b0}, v{t3}")
            for b in range(nb): p.I(f"ds_read_b32 v{C0+b}, v{t3} offset:{256*b}")
            if g == 0:
                st_addr(t2, FEX + 2304)
                p.I(f"ds_read_b64 {vr(M,2)}, v{t2}")
            def consts():
                p.I(f"v_rcp_f32 v{rstd}, v{M+1}")
                f_consts(rstd, M + 1, c1, irs2)
                p.I(f"v_mov_b32 v{M+1}, 0")
            PKT = 'pktail' in OPT
            CH = int(os.environ.get('FCH', '30'))
            work = []
            pfl = pf_list(PFD)
            fresh = False
            for k in range(2, len(order)):
                u = order[k]
                nxtr = (xread(7) if k == 2 else []) + (wread(order[k + 1]) if k + 1 < len(order) else []) + ([consts] if k == 2 else [])
                take, work = work[:CH], work[CH:]
                nxtr, pfl = nxtr + pfl[:1], pfl[1:]
                ms = unit(u)
                if fresh:
                    interleave(p, ms[:2], nxtr); interleave(p, ms[2:], take)
                else:
                    interleave(p, ms, mix(nxtr, take))
                fresh = False
                if k + 1 == len(order) and g == 0:
                    p.wait(lg_all=True)
                    p.I("s_barrier")
                if u[1] == 7:
                    cmf(u[0])
                    fresh = not work
                    work = work + epi(u[0], PKT or k + 1 == len(order))
            assert not pfl
            lateb = [lambda: bpf_setup(vd, 0)] + [f for s in range(7) for f in bpf(s, vd, 0)]
            for f in work: f()
            if g == 1: p.I("s_barrier")
            for f in lateb: f()
            st.stamp(p, 'end')
            finish(1)
        p.begin(); prologue(); pro = p.end()
        p.begin(); body(); bod = p.end()
        info[f'F{g}'] = ([w for w in range(256) if (w >> 6) >= 2], [4*g + k for k in range(4)], list(st.names))
        return pro, bod, V.next

    def atype():
        V = Regs('v', BASE, 256)
        st.n = len(base_names); st.names = list(base_names)
        vx = V.alloc(2); vw = V.alloc(); vf = V.alloc()
        xa = V.alloc(4); wa = V.alloc(4); fa = V.alloc(4)
        cs = V.alloc(2, 2); vpre = V.alloc(2); sS = V.alloc(2, 2); sQ = V.alloc(2)
        rstd = V.alloc(1, 2); sd = V.alloc(); c1 = t0; irs2 = t2
        X = V.alloc(128, 4)
        AK, AV, AQ, AF = [V.alloc(16, 4) for _ in range(4)]
        SET = [V.alloc(8, 4), V.alloc(8, 4)]
        WP = V.alloc(8, 4); M = WP + 4
        C = V.alloc(4, 4)
        VF = AF + 8
        SL = 32768
        AGET = int(os.environ.get('AGET', '5')); APUB = int(os.environ.get('APUB', '2'))
        EX2, TP, TV = 36864, 40960, 73728
        p1base = lambda s: (s % 4) * SL
        p2base = lambda s: [4*SL, 4*SL+16384, 0, 16384, 3*SL, 3*SL+16384, 4*SL, 4*SL+16384][s]
        def kc_setup(s):
            p.I(f"s_add_u32 s{s_kc}, s{s_rot}, {s}\n s_and_b32 s{s_kc}, s{s_kc}, 7")
        dq = []
        def mk1(s):
            tag = ('d', s); b = p1base(s)
            def d0():
                kc_setup(s)
                p.I(f"s_lshl_b32 s{s_xoff}, s{s_kc}, 7\n s_add_u32 m0, s{s_mA}, {b}\n s_mul_i32 s{s_woff}, s{s_kc}, {64*3072}")
                p.I(f"buffer_load_dwordx4 v{vx}, s[{S_X}:{S_X+3}], s{s_xoff} offen lds", tag=tag)
            def d1(): p.I(f"buffer_load_dwordx4 v{vx+1}, s[{S_X}:{S_X+3}], s{s_xoff} offen offset:1024 lds", tag=tag)
            def d2():
                p.I(f"s_add_u32 m0, s{s_mB}, {b + 16384 - 1024}\n s_add_u32 s{s_voff}, s{s_woff}, 2048")
                p.I(f"buffer_load_dwordx4 v{vw}, s[{S_QKV}:{S_QKV+3}], s{s_woff} offen offset:1024 lds", tag=tag)
            def d3():
                p.I(f"s_add_u32 m0, s{s_mB}, {b + 24576}")
                p.I(f"buffer_load_dwordx4 v{vw}, s[{S_QKV}:{S_QKV+3}], s{s_voff} offen lds", tag=tag)
            need = None if s < 4 else s - 2
            return [(d0, need), (d1, need), (d2, need), (d3, need)]
        def mk2(s):
            tag = ('d', 8 + s); b = p2base(s)
            def d0():
                kc_setup(s)
                p.I(f"s_mul_i32 s{s_woff}, s{s_kc}, {64*3072}\n s_add_u32 m0, s{s_mB}, {b}\n s_mul_i32 s{s_voff}, s{s_kc}, {64*2752}")
                p.I(f"buffer_load_dwordx4 v{vw}, s[{S_QKV}:{S_QKV+3}], s{s_woff} offen lds", tag=tag)
            def d1():
                p.I(f"s_add_u32 m0, s{s_mB}, {b + 8192}")
                p.I(f"buffer_load_dwordx4 v{vf}, s[{S_WM}:{S_WM+3}], s{s_voff} offen lds", tag=tag)
            need = [None, 4, 6, 6, 10, 10, 11, 11][s]
            return [(d0, need), (d1, need)]
        dq += mk1(0) + mk1(1) + mk2(0)
        for s in range(2, 8): dq += mk1(s)
        for s in range(1, 8): dq += mk2(s)
        npop = [0]
        passed = [-1]
        def pop(n=1):
            for _ in range(n):
                if not dq: return
                f, need = dq[0]
                if need is not None and need > passed[0]: return
                dq.pop(0); f(); npop[0] += 1
        def prologue():
            p.label(f"{name}_proA")
            p.I(f"""s_lshl_b32 s{s_t0}, s{s_rb}, 3
                    s_add_u32 s{s_t0}, s{s_t0}, s{s_w}
                    s_lshl_b32 s{s_t0}, s{s_t0}, 14
                    v_lshrrev_b32 v{t0}, 3, v{lane}
                    v_lshlrev_b32 v{t1}, 10, v{t0}
                    v_add_u32 v{t1}, s{s_t0}, v{t1}
                    v_and_b32 v{t2}, 7, v{lane}
                    v_lshrrev_b32 v{t3}, 4, v{lane}
                    v_xor_b32 v{t3}, v{t2}, v{t3}
                    v_lshl_add_u32 v{vx}, v{t3}, 4, v{t1}
                    v_xor_b32 v{t1}, 64, v{vx}
                    v_add_u32 v{vx+1}, 7168, v{t1}
                    s_lshl_b32 s{s_t0}, s{s_w}, 3
                    v_add_u32 v{t0}, s{s_t0}, v{t0}
                    v_mul_u32_u24 v{t0}, 3072, v{t0}
                    v_bfe_u32 v{t1}, v{lane}, 4, 1
                    v_lshlrev_b32 v{t1}, 2, v{t1}
                    v_xor_b32 v{t1}, v{t1}, v{t2}
                    v_lshl_add_u32 v{t0}, v{t1}, 4, v{t0}
                    s_lshl_b32 s{s_t0}, s{s_grp}, 7
                    v_add_u32 v{vw}, s{s_t0}, v{t0}
                    s_lshl_b32 s{s_mA}, s{s_w}, 11
                    s_lshl_b32 s{s_mB}, s{s_w}, 10""")
            p.I("s_waitcnt lgkmcnt(0)")
            nonce_pub()
            srd(p, S_X, X_P, 2048*1024); srd(p, S_QKV, WQKV_P, 512*3072)
            st.stamp(p, 'args')
            pop(4)
        def body():
            sync_setup(0)
            pop(4)
            p.I(f"""v_lshrrev_b32 v{t0}, 2, v{lane}
                    s_lshl_b32 s{s_t0}, s{s_i}, 4
                    v_add_u32 v{t0}, s{s_t0}, v{t0}
                    v_mul_u32_u24 v{t0}, 2752, v{t0}
                    v_and_b32 v{t1}, 3, v{lane}
                    s_lshl_b32 s{s_t0}, s{s_g}, 1
                    v_xor_b32 v{t1}, s{s_t0}, v{t1}
                    v_lshl_add_u32 v{t0}, v{t1}, 4, v{t0}
                    s_lshl_b32 s{s_t0}, s{s_grp}, 6
                    v_add_u32 v{vf}, s{s_t0}, v{t0}
                    s_cmp_eq_u32 s{s_g}, 0
                    s_cselect_b64 s[{S_WM}:{S_WM+1}], s[{W1_P}:{W1_P+1}], s[{W3_P}:{W3_P+1}]
                    s_mov_b32 s{S_WM+2}, {512*2752}
                    s_mov_b32 s{S_WM+3}, 0x20000""")
            srd(p, S_PHI, WPHI_P, 32*512)
            xaddr_calc(xa)
            p.I(f"""v_lshrrev_b32 v{t0}, 5, v{lane}
                    v_bfe_u32 v{t1}, v{lane}, 2, 2
                    v_lshl_add_u32 v{t0}, v{t0}, 3, v{t1}
                    v_bfe_u32 v{t1}, v{lane}, 4, 1
                    v_bfe_u32 v{t2}, v{lane}, 1, 1
                    v_lshl_add_u32 v{t2}, v{t1}, 1, v{t2}
                    s_lshl_b32 s{s_t1}, s{s_g}, 2
                    v_add_u32 v{t2}, s{s_t1}, v{t2}
                    v_bfe_u32 v{t3}, v{lane}, 3, 1
                    v_lshlrev_b32 v{t3}, 2, v{t3}
                    v_xor_b32 v{t2}, v{t2}, v{t3}
                    v_lshlrev_b32 v{t2}, 4, v{t2}
                    v_lshl_add_u32 v{t2}, v{t0}, 7, v{t2}
                    v_and_b32 v{t3}, 1, v{lane}
                    v_lshl_add_u32 v{fa}, v{t3}, 3, v{t2}
                    s_lshr_b32 s{s_t1}, s{s_i}, 1
                    s_xor_b32 s{s_t1}, s{s_t1}, s{s_g}
                    s_lshl_b32 s{s_t2}, s{s_t1}, 6
                    v_xor_b32 v{vpre}, s{s_t2}, v{fa}
                    s_lshl_b32 s{s_t3}, s{s_t1}, 5""")
            per_t(wa, fa, 2048)
            p.I(f"""v_lshlrev_b32 v{t0}, 6, v{t0}
                    v_lshl_add_u32 v{t0}, v{t1}, 12, v{t0}
                    v_bfe_u32 v{t2}, v{lane}, 1, 1
                    s_lshl_b32 s{s_t1}, s{s_g}, 1
                    v_add_u32 v{t2}, s{s_t1}, v{t2}
                    v_lshlrev_b32 v{t1}, 1, v{t1}
                    v_xor_b32 v{t2}, v{t2}, v{t1}
                    v_lshl_add_u32 v{t0}, v{t2}, 4, v{t0}
                    v_lshl_add_u32 v{t3}, v{t3}, 3, v{t0}
                    v_xor_b32 v{vpre+1}, s{s_t3}, v{t3}""")
            per_t(fa, t3, 1024)
            for r in [sS, sS+1, sQ, sQ+1]: p.I(f"v_mov_b32 v{r}, 0")
            def wphi_read():
                p.I(f"""v_bfe_u32 v{t0}, v{lane}, 4, 1
                        v_lshlrev_b32 v{t0}, 9, v{t0}
                        v_lshrrev_b32 v{t1}, 5, v{lane}
                        v_lshl_add_u32 v{t0}, v{t1}, 7, v{t0}
                        v_and_b32 v{t1}, 15, v{lane}
                        v_lshl_add_u32 v{t0}, v{t1}, 3, v{t0}
                        s_lshl_b32 s{s_t0}, s{s_w}, 10
                        s_add_u32 s{s_t0}, s{s_t0}, {4*SL+16384}
                        v_add_u32 v{t0}, s{s_t0}, v{t0}""")
                p.wait(vm=['wphi'])
                p.I(f"ds_read_b64_tr_b16 {vr(WP,2)}, v{t0}\n ds_read_b64_tr_b16 {vr(WP+2,2)}, v{t0} offset:256")
            p.I(f"""s_lshl_b32 s{s_t0}, s{s_grp}, 1
                    s_add_u32 s{s_t0}, s{s_t0}, s{s_g}
                    s_lshl_b32 s{s_t0}, s{s_t0}, 10
                    s_add_u32 m0, s{s_mB}, {4*SL+16384}""")
            p.I(f"buffer_load_dwordx4 v{l16}, s[{S_PHI}:{S_PHI+3}], s{s_t0} offen lds", tag='wphi')
            win = {xa: 0, wa: 0, fa: 0}
            def off(reg, target):
                if not (0 <= target - win[reg] <= 65535 - 1024):
                    nw = target // 65536 * 65536
                    d = nw - win[reg]
                    for t in range(4): p.I(f"v_add_u32 v{reg+t}, {d & 0xffffffff}, v{reg+t}")
                    win[reg] = nw
                return target - win[reg]
            def reads(s, t, S):
                if s < 8:
                    b = p1base(s)
                    return [lambda: p.I(f"ds_read_b128 {vr(X+16*s+4*t,4)}, v{xa+t} offset:{off(xa,b)}"),
                            lambda: p.I(f"ds_read_b64_tr_b16 {vr(S,2)}, v{wa+t} offset:{off(wa,b+16384)}"),
                            lambda: p.I(f"ds_read_b64_tr_b16 {vr(S+2,2)}, v{wa+t} offset:{off(wa,b+16384+512)}"),
                            lambda: p.I(f"ds_read_b64_tr_b16 {vr(S+4,2)}, v{wa+t} offset:{off(wa,b+24576)}"),
                            lambda: p.I(f"ds_read_b64_tr_b16 {vr(S+6,2)}, v{wa+t} offset:{off(wa,b+24576+512)}")]
                b = p2base(s - 8)
                return [lambda: p.I(f"ds_read_b64_tr_b16 {vr(S,2)}, v{wa+t} offset:{off(wa,b)}"),
                        lambda: p.I(f"ds_read_b64_tr_b16 {vr(S+2,2)}, v{wa+t} offset:{off(wa,b+512)}"),
                        lambda: p.I(f"ds_read_b64_tr_b16 {vr(S+4,2)}, v{fa+t} offset:{off(fa,b+8192)}"),
                        lambda: p.I(f"ds_read_b64_tr_b16 {vr(S+6,2)}, v{fa+t} offset:{off(fa,b+8192+256)}")]
            def mf(s, t, S):
                a0, a1 = (AK, AV) if s < 8 else (AQ, AF)
                xr = X + 16 * (s % 8) + 4 * t
                first = (s % 8 == 0 and t == 0)
                return [lambda: p.I(f"{MF} {vr(a0,16)}, {vr(S,4)}, {vr(xr,4)}, {0 if first else vr(a0,16)}"),
                        lambda: p.I(f"{MF} {vr(a1,16)}, {vr(S+4,4)}, {vr(xr,4)}, {0 if first else vr(a1,16)}")]
            def ifg0(fn):
                p.I(f"s_cmp_lg_u32 s{s_g}, 0"); p.cond(isg0, "s_cbranch_scc1", fn)
            def barrier(j, pre=None, lg=False):
                if pre: pre()
                w = lambda: p.wait(vm=[('d', j)], lg_all=lg)
                if j >= 10:
                    p.I(f"s_cmp_lg_u32 s{s_g}, 0"); p.rare_else(lambda r, it: r['g'] == 1, "s_cbranch_scc1", w, w)
                else: w()
                p.I("s_barrier")
                passed[0] = j
                if str(j) in os.environ.get('AFINE', '').split(','): st.stamp(p, f'b{j}')
            AEX = SL
            loadsC = [(AQ, s_csg, 0), (AQ + 4, s_csg, 1024)]
            loadsC2 = [(AV + 8, s_csg, 8192), (AV + 12, s_csg, 9216)]
            RED = AEX + 2048
            loadsH1 = [(AK + 8*r + 4*k, s_poff, 32768*r + 1024*k) for r in range(2) for k in range(2)]
            loadsH2 = [(AK + 4*k, s_koff, 1024*k) for k in range(2)]
            def h1_get():
                p.I(f"""s_lshl_b32 s{s_poff}, s{s_grp}, 3
                        s_add_u32 s{s_poff}, s{s_poff}, s{s_w}
                        s_lshl_b32 s{s_poff}, s{s_poff}, 5
                        s_add_u32 s{s_poff}, s{s_poff}, s{s_rb}
                        s_lshl_b32 s{s_poff}, s{s_poff}, 11
                        s_add_u32 s{s_poff}, s{s_poff}, {PART_OFF}""")
                fetch(loadsH1)
            def h1_digest():
                validate(loadsH1)
                p.I(f"""v_add_f32 v{AK}, v{AK}, v{AK+8}
                        v_add_f32 v{AK+1}, v{AK+2}, v{AK+10}
                        v_add_f32 v{AK+2}, v{AK+4}, v{AK+12}
                        v_add_f32 v{AK+3}, v{AK+6}, v{AK+14}
                        s_lshl_b32 s{s_t0}, s{s_w}, 10
                        s_add_u32 s{s_t0}, s{s_t0}, {RED}
                        v_add_u32 v{t3}, s{s_t0}, v{l16}""")
                p.I(f"ds_write_b128 v{t3}, {vr(AK,4)}")
            def h1_reduce():
                p.I(f"v_add_u32 v{t3}, {RED}, v{l16}")
                for k in range(4): p.I(f"ds_read_b128 {vr(AK+4*k,4)}, v{t3} offset:{1024*k}")
                for k in range(1, 4):
                    for e in (0, 2): p.I(pk("v_pk_add_f32", AK+e, AK+e, AK+4*k+e))
                for k in range(1, 4): p.I(f"ds_read_b128 {vr(AK+4*k,4)}, v{t3} offset:{1024*(k+3)}")
                p.I(f"ds_read_b128 {vr(t0,4)}, v{t3} offset:7168")
                for k in range(1, 4):
                    for e in (0, 2): p.I(pk("v_pk_add_f32", AK+e, AK+e, AK+4*k+e))
                for e in (0, 2): p.I(pk("v_pk_add_f32", AK+e, AK+e, t0+e))
                p.I(f"""v_cvt_pk_bf16_f32 v{AK}, v{AK}, v{AK+1}
                        v_cvt_pk_bf16_f32 v{AK+2}, v{AK+2}, v{AK+3}
                        v_mov_b32 v{AK+1}, s{s_non}
                        v_mov_b32 v{AK+3}, s{s_non}
                        s_lshl_b32 s{s_t0}, s{s_grp}, 4
                        s_add_u32 s{s_t0}, s{s_t0}, s{s_rb}
                        s_lshl_b32 s{s_t0}, s{s_t0}, 10
                        s_add_u32 s{s_t0}, s{s_t0}, {KVZ_OFF}""")
                p.I(f"buffer_store_dwordx4 {vr(AK,4)}, v{l16}, s[{S_WS}:{S_WS+3}], s{s_t0} offen sc1")
            loadsS = st_loads(AQ)
            def c_digest(loads, val=True):
                if val: validate(loads)
                corr_prep(loads[0][0], loads[1][0], t2)
                p.I(f"""v_lshlrev_b32 v{t3}, 2, v{lane}
                        s_lshl_b32 s{s_t0}, s{s_i}, 8
                        s_add_u32 s{s_t0}, s{s_t0}, {AEX}
                        v_add_u32 v{t3}, s{s_t0}, v{t3}""")
                p.I(f"ds_write_b32 v{t3}, v{t2}")
            def s_digest():
                stats_final(AQ, M, rstd, M + 1)
                st_addr(t3, AEX + 1024)
                p.I(f"ds_write_b64 v{t3}, {vr(M,2)}")
            def c_read():
                p.I(f"""v_lshlrev_b32 v{t4}, 2, v{lane}
                        s_lshl_b32 s{s_t0}, s{s_g}, 9
                        s_add_u32 s{s_t0}, s{s_t0}, {AEX}
                        v_add_u32 v{t4}, s{s_t0}, v{t4}""")
                p.I(f"ds_read_b32 v{t2}, v{t4}\n ds_read_b32 v{t3}, v{t4} offset:256")
            def k_epilogue():
                E = SET[1]
                c_read()
                st_addr(t4, AEX + 1024)
                p.I(f"ds_read_b64 {vr(M,2)}, v{t4}")
                for r in (M+2, M+3, C+1, C+2, C+3): p.I(f"v_mov_b32 v{r}, 0")
                p.I(f"v_mov_b32 v{sd}, v{M+1}\n v_rcp_f32 v{rstd}, v{M+1}\n v_mov_b32 v{M+1}, 0")
                corr_mf(AK, t2, C, M)
                corr_mf(AV, t3, C, M)
                p.I(f"""v_and_b32 v{t0}, 31, v{lane}
                        s_lshl_b32 s{s_t0}, s{s_i}, 5
                        v_add_u32 v{t0}, s{s_t0}, v{t0}
                        v_lshrrev_b32 v{t1}, 5, v{lane}
                        v_mul_u32_u24 v{t2}, 40, v{t0}
                        v_lshl_add_u32 v{t2}, v{t1}, 3, v{t2}
                        s_mul_i32 s{s_t0}, s{s_g}, 10240
                        s_add_u32 s{s_t0}, s{s_t0}, {TV}
                        v_add_u32 v{sS}, s{s_t0}, v{t2}
                        v_bfe_u32 v{t2}, v{lane}, 1, 3
                        v_xor_b32 v{t2}, v{t2}, v{t1}
                        v_lshlrev_b32 v{t2}, 3, v{t2}
                        v_lshl_add_u32 v{t2}, v{t0}, 6, v{t2}
                        s_lshl_b32 s{s_t0}, s{s_g}, 14
                        s_add_u32 s{s_t0}, s{s_t0}, {TP}
                        v_add_u32 v{sS+1}, s{s_t0}, v{t2}
                        v_xor_b32 v{sQ+1}, 16, v{sS+1}
                        v_mul_f32 v{sQ}, {LOG2E}, v{rstd}
                        v_mov_b32 v{cs}, 0x3f803f80
                        v_mov_b32 v{cs+1}, 0x3f803f80""")
                KB = E
                for i in range(8): p.I(f"v_cvt_pk_bf16_f32 v{KB+i}, v{AK+2*i}, v{AK+2*i+1}")
                p.I(f"{MF} {vr(AK,16)}, {vr(WP,4)}, {vr(KB,4)}, 0")
                for i in range(0, 16, 2): p.I(pk("v_pk_mul_f32", AV+i, AV+i, rstd, bc=(1,)))
                for i in range(8): p.I(f"v_cvt_pk_bf16_f32 v{AV+i}, v{AV+2*i}, v{AV+2*i+1}")
                for h in range(2):
                    p.I(f"ds_write_b64 v{sS}, {vr(AV+4*h,2)} offset:{5120*h}")
                    p.I(f"ds_write_b64 v{sS}, {vr(AV+4*h+2,2)} offset:{5120*h+16}")
                p.I("s_mov_b64 exec, 0xffffffff")
                for h in range(2): p.I(f"ds_write_b64 v{sS}, {vr(cs,2)} offset:{5120*h+32}")
                p.I("s_mov_b64 exec, -1")
                p.I(f"{MF} {vr(AV,16)}, {vr(WP,4)}, {vr(KB+4,4)}, 0")
                for h, (P, Mi) in enumerate(((AK, AK + 8), (AV + 8, AV))):
                    softmax_pm(p, P, Mi, sQ, t0)
                    p.I(f"v_xor_b32 v{t0}, 32, v{sS+1}\n v_xor_b32 v{t1}, 32, v{sQ+1}")
                    p.I(f"ds_write_b64 v{sS+1}, {vr(P,2)} offset:{8192*h}")
                    p.I(f"ds_write_b64 v{sQ+1}, {vr(P+2,2)} offset:{8192*h}")
                    p.I(f"ds_write_b64 v{t0}, {vr(Mi,2)} offset:{8192*h}")
                    p.I(f"ds_write_b64 v{t1}, {vr(Mi+2,2)} offset:{8192*h}")
            def kv_addr():
                p.I(f"""v_lshrrev_b32 v{t0}, 5, v{lane}
                        v_bfe_u32 v{t1}, v{lane}, 2, 2
                        v_lshl_add_u32 v{t2}, v{t0}, 2, v{t1}
                        v_bfe_u32 v{t3}, v{lane}, 3, 1
                        v_lshl_add_u32 v{t0}, v{t0}, 1, v{t3}
                        v_and_b32 v{t1}, 3, v{lane}
                        v_bfe_u32 v{t3}, v{lane}, 4, 1
                        v_lshl_add_u32 v{sS}, v{t3}, 2, v{t1}
                        v_xor_b32 v{t0}, v{t0}, v{sS}
                        v_lshlrev_b32 v{t0}, 3, v{t0}
                        v_lshl_add_u32 v{t0}, v{t2}, 6, v{t0}
                        s_lshl_b32 s{s_t0}, s{s_i}, 13
                        s_add_u32 s{s_t0}, s{s_t0}, {TP}
                        v_add_u32 v{sS}, s{s_t0}, v{t0}
                        v_xor_b32 v{sS+1}, 32, v{sS}
                        v_mul_u32_u24 v{t2}, 40, v{t2}
                        v_lshlrev_b32 v{t1}, 3, v{t1}
                        v_cmp_eq_u32 vcc, 0, v{t3}
                        v_cndmask_b32 v{t1}, 32, v{t1}, vcc
                        v_add_u32 v{t2}, v{t2}, v{t1}
                        s_mul_i32 s{s_t0}, s{s_i}, 5120
                        s_add_u32 s{s_t0}, s{s_t0}, {TV}
                        v_add_u32 v{sQ}, s{s_t0}, v{t2}
                        s_lshl_b32 s{s_poff}, s{s_grp}, 4
                        s_add_u32 s{s_poff}, s{s_poff}, s{s_rb}
                        s_lshl_b32 s{s_poff}, s{s_poff}, 2
                        s_add_u32 s{s_poff}, s{s_poff}, s{s_i}
                        s_lshl_b32 s{s_poff}, s{s_poff}, 13
                        s_add_u32 s{s_poff}, s{s_poff}, {PART_OFF}""")
            def kv_phase():
                def rd(ks):
                    B = AV + 8 * (ks & 1)
                    p.I(f"""ds_read_b64_tr_b16 {vr(B,2)}, v{sS} offset:{1024*ks}
                            ds_read_b64_tr_b16 {vr(B+2,2)}, v{sS+1} offset:{1024*ks+512}
                            ds_read_b64_tr_b16 {vr(B+4,2)}, v{sQ} offset:{640*ks}
                            ds_read_b64_tr_b16 {vr(B+6,2)}, v{sQ} offset:{640*ks+320}""")
                rd(0); rd(1)
                for ks in range(8):
                    B = AV + 8 * (ks & 1)
                    p.I(f"{MF} {vr(AK,16)}, {vr(B,4)}, {vr(B+4,4)}, {vr(AK,16) if ks else 0}")
                    if ks + 2 < 8: rd(ks + 2)
                for r in (AV+9, AV+11, AV+13, AV+15): p.I(f"v_mov_b32 v{r}, s{s_non}")
                for q in range(8):
                    Q = AV + 8 + 4 * (q & 1)
                    p.I(f"v_mov_b32 v{Q}, v{AK+2*q}\n v_mov_b32 v{Q+2}, v{AK+2*q+1}")
                    if q == 4: p.I(f"s_add_u32 s{s_poff}, s{s_poff}, 4096")
                    p.I(f"buffer_store_dwordx4 {vr(Q,4)}, v{l16}, s[{S_WS}:{S_WS+3}], s{s_poff} offen offset:{1024*(q&3)} sc1")
            SPL = int(os.environ.get('ASPL', '40'))
            def sets(n):
                if n < 32: return [SET[0], AF, SET[1]][n % 3]
                if n < SPL + 2: return SET[n % 2]
                return [SET[0], SET[1], AV][(n - SPL) % 3]
            issue_at = {n: n - 2 for n in range(64)}
            issue_at.update({n: n - 1 for n in range(32, SPL)})
            issue_at.update({SPL: 'x', SPL + 1: 'x', SPL + 2: SPL})
            rd = lambda n: reads(n >> 2, n & 3, sets(n))
            p.I(f"s_lshl_b32 s{s_csg}, s{s_i}, 11\n s_add_u32 s{s_csg}, s{s_csg}, s{s_cso}")
            p.I(f"s_add_u32 s{s_koff}, s{s_sto}, 2048")
            pop(2)
            barrier(0)
            st.stamp(p, 'bar0')
            nonce_sample(VF)
            def pre_kv():
                p.I(f"s_and_b32 s{s_t0}, s{s_i}, 1\n s_lshl_b32 s{s_t0}, s{s_t0}, 13\n v_add_u32 v{t0}, s{s_t0}, v{vpre}")
                for t in range(4):
                    for h in range(2): p.I(f"ds_read_b64_tr_b16 {vr(AQ+4*t+2*h,2)}, v{t0} offset:{16384 + 2048*t + 512*h}")
                cs_pre(AQ, cs)
            def pre_st():
                for t in range(2, 4): p.I(f"ds_read_b128 {vr(X+4*t,4)}, v{xa+t}")
                for t in range(4): p.I("\n".join(stat_ops(X + 4 * t, sS, sQ)))
                stats_pre(sS, sQ, M)
            for r in rd(0) + rd(1): r()
            pop(2)
            p.I(f"s_cmp_lg_u32 s{s_g}, 0")
            p.ifelse(isg0, "s_cbranch_scc1", pre_kv, pre_st)
            st.stamp(p, 'pre')
            def pre_qf():
                b = p2base(0)
                def var(reg, base, ks, hs):
                    p.I(f"v_add_u32 v{t0}, {base}, v{reg}")
                    for t in range(4):
                        for h in range(2): p.I(f"ds_read_b64_tr_b16 {vr(AK+4*t+2*h,2)}, v{t0} offset:{ks*t + hs*h}")
                p.I(f"s_bitcmp1_b32 s{s_i}, 0")
                p.ifelse(lambda r, it: r['w'] % 2 == 0, "s_cbranch_scc1", lambda: var(vpre, b, 2048, 512), lambda: var(vpre + 1, b + 8192, 1024, 256))
                p.I(f"s_add_u32 s{s_t2}, s{s_i}, 4")
                cs_pre(AK, cs)
                cs_publish(cs, s_t2)
            def cap(fn):
                p.begin(); fn(); return atoms(p.end())
            def ifg(g, fn):
                p.I(f"s_cmp_lg_u32 s{s_g}, {g}"); p.cond(lambda r, it: r['g'] == g, "s_cbranch_scc1", fn)
            uloads = [(AQ, s_qoff, 0), (AQ + 4, s_qoff, 1024), (AQ + 8, s_hoff, 0), (AQ + 12, s_hoff, 1024)]
            def uget():
                p.I(f"s_cmp_eq_u32 s{s_g}, 0\n s_cselect_b32 s{s_qoff}, s{s_csg}, s{s_sto}\n s_cselect_b32 s{s_hoff}, s{s_csg}, s{s_koff}")
                fetch(uloads)
            env = lambda k, d: int(os.environ.get(k, d))
            H1G, H1D, UG = env('H1G', 50), env('H1D', 56), env('UG', 18)
            events = {
                3: [lambda: nonce_take(VF)], 4: [lambda: ifg(0, lambda: cs_publish(cs, s_i))], 5: [lambda: ifg(1, lambda: stats_publish(M))],
                6: [wphi_read], 10: [lambda: mall_touch(AF + 12)], UG: [uget],
                26: [lambda: validate(uloads)], 28: [lambda: ifg(1, s_digest)], 29: [lambda: ifg(0, lambda: c_digest(loadsC, False))],
                H1G: [h1_get], 52: [lambda: ifg(0, lambda: fetch(loadsC2))], H1D: [h1_digest],
                59: [lambda: rarew(4, h1_reduce)], 60: [lambda: ifg(0, lambda: c_digest(loadsC2))],
            }
            bg = []
            def popn(n):
                for _ in range(2):
                    if npop[0] < 13 + n: pop()
            def steps(n0, n1, extra_bg=()):
                bg.extend(extra_bg)
                for n in range(n0, n1):
                    todo = [m for m in range(64) if issue_at[m] == n]
                    for m in todo:
                        if m % 4 == 0 and not (32 < m < SPL):
                            j = m >> 2
                            if j in (8, 15):
                                while bg: p.extend(bg.pop(0))
                            if j == 8: p.wait(vm=[('d', k) for k in range(8, SPL // 4)])
                            barrier(j, None, lg=j in (8, 15))
                    for f in events.get(n, []): bg.extend(cap(f))
                    take = [bg.pop(0) for _ in range(min(len(bg), env('BGN', 8)))]
                    interleave(p, mf(n >> 2, n & 3, sets(n)),
                               mix([f for m in todo for f in rd(m)], [lambda: popn(n)], [lambda a=a: p.extend(a) for a in take]))
            steps(0, 32)
            st.stamp(p, 'p1')
            snap = (dict(win), list(dq), npop[0], passed[0])
            def restore():
                win.clear(); win.update(snap[0]); dq[:] = snap[1]; npop[0] = snap[2]; passed[0] = snap[3]
            def path0():
                k_epilogue()
                steps(32, SPL, cap(kv_addr))
                while bg: p.extend(bg.pop(0))
            def path1():
                restore()
                steps(32, SPL)
                k_epilogue()
            p.I(f"s_cmp_lg_u32 s{s_g}, 0")
            p.ifelse(isg0, "s_cbranch_scc1", path0, path1)
            st.stamp(p, 'kepi')
            barrier(SPL // 4, None, lg=True)
            for f in rd(SPL) + rd(SPL + 1): f()
            p.I(f"s_cmp_lg_u32 s{s_g}, 0")
            p.ifelse(isg0, "s_cbranch_scc1", kv_phase, pre_qf)
            st.stamp(p, 'kv')
            steps(SPL, 64)
            while bg: p.extend(bg.pop(0))
            assert not dq
            st.stamp(p, 'p2')
            p.I(f"""s_lshl_b32 s{s_hoff}, s{s_rb}, 2
                    s_add_u32 s{s_hoff}, s{s_hoff}, s{s_i}
                    s_mul_i32 s{s_hoff}, s{s_hoff}, 118
                    s_lshl_b32 s{s_t0}, s{s_grp}, 1
                    s_add_u32 s{s_t0}, s{s_t0}, s{s_g}
                    s_add_u32 s{s_qoff}, s{s_hoff}, s{s_t0}
                    s_add_u32 s{s_qoff}, s{s_qoff}, s{s_t0}
                    s_add_u32 s{s_qoff}, s{s_qoff}, 86
                    s_lshl_b32 s{s_qoff}, s{s_qoff}, 10
                    s_add_u32 s{s_hoff}, s{s_hoff}, s{s_t0}
                    s_lshl_b32 s{s_hoff}, s{s_hoff}, 10
                    s_lshl_b32 s{s_koff}, s{s_grp}, 3
                    s_add_u32 s{s_koff}, s{s_koff}, s{s_w}
                    s_lshl_b32 s{s_koff}, s{s_koff}, 11
                    s_add_u32 s{s_koff}, s{s_koff}, {KVZ_OFF}""")
            p.wait(lg_all=True)
            p.I("s_barrier")
            c_read()
            corr_mf(AQ, t2, C, M)
            corr_mf(AF, t3, C, M)
            late = [lambda: bpf_setup(vx, 0)] + [f for s in range(7) for f in bpf(s, vx, 0)]
            QB, D0, D1, KZ = X, X + 16, X + 32, X + 48
            for i in range(8): p.I(f"v_cvt_pk_bf16_f32 v{QB+i}, v{AQ+2*i}, v{AQ+2*i+1}")
            p.I(f"{MF} {vr(D0,16)}, {vr(WP,4)}, {vr(QB,4)}, 0")
            p.I(f"{MF} {vr(D1,16)}, {vr(WP,4)}, {vr(QB+4,4)}, 0")
            f_consts(rstd, sd, c1, irs2)
            f_epilogue(AF, c1, irs2, SET[1], f"s{s_hoff} offen")
            fetch(loadsH2)
            st.stamp(p, 'epi2')
            p.I(f"v_mul_f32 v{sQ}, {LOG2E}, v{rstd}")
            softmax_pm(p, D0, D0 + 8, sQ, t0)
            softmax_pm(p, D1 + 8, D1, sQ, t0)
            st.stamp(p, 'smq')
            validate(loadsH2)
            p.I(f"""v_mov_b32 v{AK+1}, v{AK+2}
                    v_mov_b32 v{AK+2}, v{AK+4}
                    v_mov_b32 v{AK+3}, v{AK+6}
                    s_lshl_b32 s{s_t0}, s{s_w}, 10
                    s_add_u32 s{s_t0}, s{s_t0}, {RED}
                    v_add_u32 v{t3}, s{s_t0}, v{l16}
                    s_lshl_b32 s{s_t0}, s{s_g}, 12
                    s_add_u32 s{s_t0}, s{s_t0}, {RED}
                    v_add_u32 v{t2}, s{s_t0}, v{l16}""")
            p.I(f"ds_write_b128 v{t3}, {vr(AK,4)}")
            p.wait(lg_all=True)
            p.I("s_barrier")
            for k in range(4): p.I(f"ds_read_b128 {vr(KZ+4*k,4)}, v{t2} offset:{1024*k}")
            for h, (P, Mi, O) in enumerate(((D0, D0 + 8, AQ), (D1 + 8, D1, AF))):
                p.I(f"{MF} {vr(O,16)}, {vr(KZ+8*h,4)}, {vr(P,4)}, 0")
                p.I(f"{MF} {vr(O,16)}, {vr(KZ+8*h+4,4)}, {vr(Mi,4)}, {vr(O,16)}")
            for h, O in enumerate((AQ, AF)):
                p.I(f"v_add_f32 v{t0}, 0x358637bd, v{O+8}\n v_rcp_f32 v{t0}, v{t0}")
                for i in range(0, 8, 2): p.I(pk("v_pk_mul_f32", O+i, O+i, t0, bc=(1,)))
                for i in range(4): p.I(f"v_cvt_pk_bf16_f32 v{O+i}, v{O+2*i}, v{O+2*i+1}")
                p.I(f"buffer_store_dwordx4 {vr(O,4)}, v{l16}, s[{S_WS}:{S_WS+3}], s{s_qoff} offen offset:{1024*h} sc1", tag='hst')
            st.stamp(p, 'end')
            for f in late: f()
            finish(0)
        p.begin(); prologue(); pro = p.end()
        p.begin(); body(); bod = p.end()
        A = [w for w in range(256) if (w >> 6) < 2]
        info['A0'] = (A, [0, 1, 2, 3], list(st.names)); info['A1'] = (A, [5, 6, 7], list(st.names)); info['Ared'] = (A, [4], list(st.names))
        return pro, bod, V.next

    def phase2():
        V = Regs('v', BASE, 256)
        S_A, S_B, S_OUT = S_QKV, S_W2, S_WM
        s_ao, s_bo2, s_as, s_bs, s_k0, s_fo = s_kc, s_woff, s_mslot, s_mA, s_mB, s_rd
        NST = 12
        p.label(f"{name}_ph2")
        p.I(f"s_cmp_lt_u32 s{s_w}, 4")
        nsteps = lambda s: 6 if s == 8 else 8
        def aloader():
            VF = V.alloc(2, 2); vfa = V.alloc()
            p.I(f"""v_and_b32 v{vfa}, 7, v{lane}
                    v_lshlrev_b32 v{vfa}, 7, v{vfa}
                    s_lshr_b32 s{s_fo}, s{s_rb2}, 1
                    s_lshl_b32 s{s_fo}, s{s_fo}, 10
                    s_add_u32 s{s_fo}, s{s_fo}, {FL_OFF + 128*128}""")
            flag_sample(p, VF, vfa, S_WS, s_fo)
            p.I(f"""s_lshl_b32 s{s_as}, s{s_rb2}, 1
                    s_and_b32 s{s_t0}, s{s_w}, 1
                    s_add_u32 s{s_as}, s{s_as}, s{s_t0}
                    s_mul_i32 s{s_as}, s{s_as}, {HO_RU}
                    s_lshl_b32 s{s_bs}, s{s_t0}, 13""")
            flag_wait(p, VF, vfa, S_WS, s_fo, s_non, s_t1)
            st.n = NST; st.stamp(p, 'flF')
            p.I(f"s_sub_u32 s{s_fo}, s{s_fo}, {128*128}")
            def issue(s):
                if s == 9:
                    flag_wait(p, VF, vfa, S_WS, s_fo, s_non, s_t1)
                    st.stamp(p, 'flA')
                kap0(s, s_k0)
                p.I(f"""s_lshl_b32 s{s_ao}, s{s_k0}, 10
                        s_add_u32 s{s_ao}, s{s_ao}, s{s_as}
                        s_add_u32 m0, s{s_bs}, {ABASE + (s % 3) * 16384}""")
                for e in range(nsteps(s)):
                    if e == 4: p.I(f"s_add_u32 s{s_ao}, s{s_ao}, 4096\n s_add_u32 m0, m0, 4096")
                    p.I(f"buffer_load_dwordx4 v{l16}, s[{S_WS}:{S_WS+3}], s{s_ao} offen offset:{1024*(e&3)} {'sc1' if 'asc1' in OPT else ''} lds", tag=('a', s))
                if s == 8: flag_sample(p, VF, vfa, S_WS, s_fo)
            for s in range(3): issue(s)
            for s in range(15):
                p.wait(vm=[('a', s)])
                p.I("s_barrier")
                if s >= 1 and s + 2 < 15: issue(s + 2)
            st.stamp(p, 'fin')
        def bloader():
            vB = V.alloc(4)
            vb_calc(vB, 4)
            p.wait(vm_all=True)
            p.I(f"s_and_b32 s{s_t0}, s{s_w}, 1\n s_lshl_b32 s{s_as}, s{s_t0}, 16\n s_lshl_b32 s{s_bs}, s{s_t0}, 13")
            p.I(f"s_mul_i32 s{s_fo}, s{s_bs0}, 16384")
            def issue(s):
                if s == 11: srd(p, S_B, WO_P, 512*1024)
                if s < 11:
                    kap0(s, s_k0); p.I(f"s_lshl_b32 s{s_bo2}, s{s_k0}, 14")
                else: p.I(f"s_mov_b32 s{s_bo2}, {(s - 11) * 8 * 16384}")
                p.I(f"""s_add_u32 s{s_bo2}, s{s_bo2}, s{s_as}
                        s_add_u32 m0, s{s_fo}, s{s_bs}
                        s_add_u32 m0, m0, {BBASE}
                        s_add_u32 s{s_fo}, s{s_fo}, 16384
                        s_cmp_ge_u32 s{s_fo}, {7*16384}
                        s_cselect_b32 s{s_fo}, 0, s{s_fo}""")
                for m in range(8):
                    if m == 4: p.I(f"s_add_u32 s{s_bo2}, s{s_bo2}, 32768\n s_add_u32 m0, m0, 4096")
                    p.I(f"buffer_load_dwordx4 v{vB+(m&3)}, s[{S_B}:{S_B+3}], s{s_bo2} offen offset:{1024*(m&3)} lds", tag=('b', s))
            for s in range(15):
                p.wait(vm=[('b', s)])
                p.I("s_barrier")
                if s >= 1 and s + 6 < 15: issue(s + 6)
            st.n = NST; st.stamp(p, 'fin')
        def consumer():
            cA = V.alloc(); cB = V.alloc(); aA = V.alloc(); aB = V.alloc(); vO = V.alloc(); vXr = V.alloc()
            ACC = V.alloc(16, 4); FA = V.alloc(32, 4); FB = V.alloc(32, 4); XR = V.alloc(8, 2)
            srd(p, S_X, X_P, 2048*1024); srd(p, S_OUT, OUT_P, 2048*1024)
            p.I(f"""s_lshl_b32 s{s_t0}, s{s_rb2}, 1
                    s_and_b32 s{s_t1}, s{s_w}, 1
                    s_add_u32 s{s_t0}, s{s_t0}, s{s_t1}
                    s_lshl_b32 s{s_t0}, s{s_t0}, 15
                    s_lshl_b32 s{s_t2}, s{s_ct2}, 7
                    s_add_u32 s{s_t0}, s{s_t0}, s{s_t2}
                    s_lshr_b32 s{s_t2}, s{s_w}, 1
                    s_lshl_b32 s{s_t3}, s{s_t2}, 6
                    s_add_u32 s{s_t0}, s{s_t0}, s{s_t3}
                    v_and_b32 v{t0}, 31, v{lane}
                    v_lshlrev_b32 v{t0}, 10, v{t0}
                    v_add_u32 v{t0}, s{s_t0}, v{t0}
                    v_lshrrev_b32 v{t1}, 5, v{lane}
                    v_lshl_add_u32 v{vO}, v{t1}, 4, v{t0}
                    v_lshl_add_u32 v{vXr}, v{t1}, 3, v{t0}""")
            for q in range(4):
                p.I(f"buffer_load_dwordx2 {vr(XR+2*q,2)}, v{vXr}, s[{S_X}:{S_X+3}], 0 offen offset:{16*q}")
            p.I(f"""s_lshl_b32 s{s_t1}, s{s_t1}, 13
                    v_add_u32 v{cA}, s{s_t1}, v{l16}
                    v_lshrrev_b32 v{t0}, 5, v{lane}
                    v_bfe_u32 v{t1}, v{lane}, 2, 2
                    v_lshl_add_u32 v{t0}, v{t0}, 2, v{t1}
                    v_lshlrev_b32 v{cB}, 7, v{t0}
                    v_bfe_u32 v{t0}, v{lane}, 4, 1
                    v_bfe_u32 v{t1}, v{lane}, 1, 1
                    v_lshl_add_u32 v{t0}, v{t0}, 1, v{t1}
                    s_lshl_b32 s{s_t2}, s{s_t2}, 2
                    v_add_u32 v{t0}, s{s_t2}, v{t0}
                    v_bfe_u32 v{t1}, v{lane}, 3, 1
                    v_lshlrev_b32 v{t1}, 2, v{t1}
                    v_xor_b32 v{t0}, v{t0}, v{t1}
                    v_lshl_add_u32 v{cB}, v{t0}, 4, v{cB}
                    v_and_b32 v{t0}, 1, v{lane}
                    v_lshl_add_u32 v{cB}, v{t0}, 3, v{cB}
                    v_add_u32 v{cB}, {BBASE}, v{cB}
                    s_mov_b32 s{s_as}, 0
                    s_mul_i32 s{s_bs}, s{s_bs0}, 16384
                    s_mov_b32 s{s_it}, 0""")
            for i in range(0, 16, 2): p.I(f"v_mov_b64 {vr(ACC+i,2)}, 0")
            for i in range(16, 32, 2): p.I(f"v_mov_b64 {vr(FA+i,2)}, 0\n v_mov_b64 {vr(FB+i,2)}, 0")
            p.wait(vm_all=True)
            def rd(e):
                p.I(f"ds_read_b128 {vr(FA+4*e,4)}, v{aA} offset:{1024*e}")
                p.I(f"ds_read_b64_tr_b16 {vr(FB+4*e,2)}, v{aB} offset:{e*2048}")
                p.I(f"ds_read_b64_tr_b16 {vr(FB+4*e+2,2)}, v{aB} offset:{e*2048+1024}")
            mf = lambda e: p.I(f"{MF} {vr(ACC,16)}, {vr(FB+4*e,4)}, {vr(FA+4*e,4)}, {vr(ACC,16)}")
            def body():
                p.I(f"v_add_u32 v{aA}, s{s_as}, v{cA}\n v_add_u32 v{aB}, s{s_bs}, v{cB}")
                p.wait(lg_all=True)
                p.I("s_barrier")
                for e in range(4): rd(e)
                mf(4); mf(5)
                p.I(f"s_cmp_eq_u32 s{s_it}, 9")
                p.cond(lambda r, it: it != 9, "s_cbranch_scc1", lambda: (mf(6), mf(7)))
                for e in range(4):
                    rd(4 + e)
                    mf(e)
                p.I(f"""s_add_u32 s{s_as}, s{s_as}, 16384
                        s_cmp_ge_u32 s{s_as}, {3*16384}
                        s_cselect_b32 s{s_as}, 0, s{s_as}
                        s_add_u32 s{s_bs}, s{s_bs}, 16384
                        s_cmp_ge_u32 s{s_bs}, {7*16384}
                        s_cselect_b32 s{s_bs}, 0, s{s_bs}
                        s_add_u32 s{s_it}, s{s_it}, 1""")
            p.loop(15, body, f"{name}_cl", f"s_cmp_lt_u32 s{s_it}, 15\n s_cbranch_scc1 {name}_cl")
            for e in range(4, 8): mf(e)
            for i in range(8):
                p.I(f"v_lshlrev_b32 v{FA+2*i}, 16, v{XR+i}")
                p.I(f"v_and_b32 v{FA+2*i+1}, 0xffff0000, v{XR+i}")
            for i in range(0, 16, 2): p.I(pk("v_pk_add_f32", FA+i, FA+i, ACC+i))
            for i in range(8): p.I(f"v_cvt_pk_bf16_f32 v{FB+i}, v{FA+2*i}, v{FA+2*i+1}")
            for h in range(2):
                p.I(f"v_permlane32_swap_b32 v{FB+4*h}, v{FB+4*h+2}")
                p.I(f"v_permlane32_swap_b32 v{FB+4*h+1}, v{FB+4*h+3}")
                p.I(f"buffer_store_dwordx4 {vr(FB+4*h,4)}, v{vO}, s[{S_OUT}:{S_OUT+3}], 0 offen offset:{32*h}")
            st.n = NST; st.stamp(p, 'fin')
        def loaders():
            p.I(f"s_cmp_lt_u32 s{s_w}, 6")
            p.ifelse(lambda r, it: r['w'] < 6, "s_cbranch_scc0", aloader, bloader)
        p.ifelse(lambda r, it: r['w'] < 4, "s_cbranch_scc0", consumer, loaders)
        st.flush(p, S_WS, t0, s_w)
    pf0, bf0, u0 = ftype(0); pf1, bf1, u1 = ftype(1); pa, ba, ua = atype()
    for pred, items in ((isF(0), pf0), (isF(1), pf1), (isA, pa), (isA, ba), (isF(0), bf0), (isF(1), bf1)):
        p.add(Cond(pred, items))
    st.names = []
    phase2()
    p.label(f"{name}_end")
    p.I("s_endpgm")
    roles = [dict(type=t, g=w >> 2, w=w, **x) for t in 'AF' for w in range(8) for x in ({}, {'slow': True})] + [dict(type='A', g=0, w=0, wg0=True)]
    lines = finalize(p.cur, roles) + [f'{name}_last:', '  s_endpgm']
    print("kf vgprs", u0, u1, ua)
    def pad(n, extra): return n + ['-'] * (12 - len(n)) + extra
    Aw, Fw = info['A0'][0], info['F0'][0]
    info = {'Acons': (Aw, [0,1,2,3], pad(info['A0'][2], ['fin'])), 'Aald': (Aw, [4,5], pad(info['A0'][2], ['flF', 'flA', 'fin'])), 'Abld': (Aw, [6,7], pad(info['A0'][2], ['fin'])),
            'Fcons': (Fw, [0,1,2,3], pad(info['F0'][2], ['fin'])), 'Fald': (Fw, [4,5], pad(info['F1'][2], ['flF', 'flA', 'fin'])), 'Fbld': (Fw, [6,7], pad(info['F1'][2], ['fin']))}
    return lines, max(u0, u1, ua), info
```

```python
from common import *
import os

MF = "v_mfma_f32_32x32x16_bf16"

def interleave(p, mains, fills):
    n, k = len(mains), 0
    for i, m in enumerate(mains):
        m()
        upto = (len(fills) * (i + 1) + n - 1) // n
        while k < upto:
            fills[k](); k += 1

def mix(*lists):
    items = []
    for li, l in enumerate(lists):
        for j, x in enumerate(l): items.append(((j + 0.5) / len(l), li, j, x))
    items.sort(key=lambda t: t[:3])
    return [t[3] for t in items]

def gen_kf(name, stamps=False):
    OPT = os.environ.get('K1OPT', '').split(',')
    HSC = '' if 'nohsc' in OPT else 'sc1'
    p = Prog('A')
    st = Stamper(stamps, 100, 0, 8)
    S_WS, S_X, S_W1, S_W3, S_WM, S_QKV, S_PHI, S_DBG = 28, 32, 36, 40, 44, 48, 52, 56
    (s_w, s_i, s_g, s_rb, s_grp, s_rot, s_t0, s_t1, s_t2, s_t3, s_ci, s_kc, s_xoff, s_woff, s_mslot, s_it,
     s_mA, s_mB, s_rd, s_hoff, s_ds, s_qoff, s_poff, s_fl, s_koff, s_voff, s_rslot, s_col, s_sto, s_flr) = range(60, 90)
    s_cso = 93; s_csg = 94; s_pf = 95; s_pair = 96
    s_ct2, s_rb2, s_rot2, s_bs0, s_bo = 26, 27, 3, 98, s_xoff
    S_W2 = S_W1; ABASE, BBASE = 0, 49152
    s_non = 90
    s_wit = 92
    lane, l16, t0, t1, t2, t3, t4, t5, vstamp, v9 = range(10)
    BASE = 10
    drop = tuple(x[5:] for x in OPT if x.startswith('drop_'))
    isA = lambda r, it: r['type'] == 'A'
    isF = lambda g: (lambda r, it: r['type'] == 'F' and r['g'] == g)
    isw0 = lambda r, it: r['w'] == 0
    isg0 = lambda r, it: r['g'] == 0
    p.I("s_cmp_ge_u32 s2, 256")
    p.I(f"s_cbranch_scc1 {name}_end")
    st.stamp(p, 'start')
    load_args(p)
    p.I(f"""v_lshrrev_b32 v{t0}, 6, v0
            v_and_b32 v{lane}, 63, v0
            s_getreg_b32 s{s_t2}, hwreg(HW_REG_XCC_ID)
            v_readfirstlane_b32 s{s_w}, v{t0}
            s_and_b32 s{s_t2}, s{s_t2}, 7
            s_lshr_b32 s{s_ci}, s2, 6
            v_mov_b32 v{t2}, 0
            v_lshlrev_b32 v{l16}, 4, v{lane}
            s_cmp_lg_u32 s{s_w}, 0""")
    def ticket():
        lab = p.newlabel('Ltk')
        p.I("s_waitcnt lgkmcnt(0)")
        srd(p, S_DBG, DBG_P, 256)
        p.I("s_cmp_eq_u32 s2, 0")
        def pub():
            p.I(f"s_memrealtime s[{s_non}:{s_non+1}]\n s_waitcnt lgkmcnt(0)")
            p.I(f"v_mov_b32 v{t0}, s{s_non}\n v_mov_b32 v{t1}, s{s_non+1}\n s_mov_b64 exec, 1")
            p.I(f"buffer_store_dwordx2 {vr(t0,2)}, v{t2}, s[{S_DBG}:{S_DBG+3}], 0 offen offset:128 sc1")
            p.I("s_mov_b64 exec, -1")
        p.rare(lambda r, it: r.get('wg0', False), "s_cbranch_scc1", pub)
        p.I(f"s_mov_b64 exec, 1\n s_sub_u32 s{s_t2}, s{s_t2}, 1\n s_mov_b32 s{s_t3}, 0")
        p.label(lab)
        p.I(f"""s_add_u32 s{s_t2}, s{s_t2}, 1
                s_and_b32 s{s_t2}, s{s_t2}, 7
                s_lshl_b32 s{s_t0}, s{s_t2}, 2
                s_add_u32 s{s_t0}, s{s_t0}, s{s_ci}
                s_lshl_b32 s{s_t0}, s{s_t0}, 2
                v_mov_b32 v{t3}, 1""")
        p.I(f"buffer_atomic_add v{t3}, v{t2}, s[{S_DBG}:{S_DBG+3}], s{s_t0} offen sc0 sc1")
        p.I(f"""v_readfirstlane_b32 s{s_t1}, v{t3}
                s_add_u32 s{s_t3}, s{s_t3}, 1
                s_cmp_ge_u32 s{s_t3}, 8
                s_cselect_b32 s{s_t0}, 0, s{s_t1}
                s_cmp_ge_u32 s{s_t0}, 8
                s_cbranch_scc1 {lab}
                s_and_b32 s{s_t1}, s{s_t1}, 7
                s_lshl_b32 s{s_t1}, s{s_t1}, 3
                s_add_u32 s{s_t1}, s{s_t1}, s{s_t2}
                v_mov_b32 v{t3}, s{s_t1}""")
        p.I(f"ds_write_b32 v{t2}, v{t3}")
        p.I("s_mov_b64 exec, -1")
        p.wait(lg_all=True)
    if 'noticket' not in OPT:
        p.cond(lambda r, it: r['w'] == 0, "s_cbranch_scc1", ticket)
        p.I("s_barrier")
        p.I(f"ds_read_b32 v{t3}, v{t2}")
        p.I(f"""v_readfirstlane_b32 s{s_t1}, v{t3}
                s_lshl_b32 s2, s{s_ci}, 6
                s_add_u32 s2, s2, s{s_t1}""")
        p.I("s_barrier")
    st.stamp(p, 'tkt')
    p.I(f"""s_nop 0
            s_and_b32 s{s_t0}, s2, 7
            s_lshr_b32 s{s_t1}, s2, 3
            s_and_b32 s{s_t2}, s{s_t1}, 7
            s_and_b32 s{s_rb}, s{s_t0}, 1
            s_lshl_b32 s{s_rb}, s{s_rb}, 3
            s_add_u32 s{s_rb}, s{s_rb}, s{s_t2}
            s_and_b32 s{s_grp}, s{s_t0}, 6
            s_and_b32 s{s_t3}, s{s_ci}, 1
            s_add_u32 s{s_grp}, s{s_grp}, s{s_t3}
            s_lshr_b32 s{s_t0}, s{s_t0}, 1
            s_lshl_b32 s{s_t3}, s{s_t3}, 2
            s_add_u32 s{s_rot}, s{s_t0}, s{s_t3}
            s_and_b32 s{s_t3}, s{s_ci}, 2
            s_add_u32 s{s_rot}, s{s_rot}, s{s_t3}
            s_add_u32 s{s_rot}, s{s_rot}, s{s_t2}
            s_and_b32 s{s_rot}, s{s_rot}, 7
            s_and_b32 s{s_i}, s{s_w}, 3
            s_lshr_b32 s{s_g}, s{s_w}, 2
            s_cmp_lg_u32 s{s_w}, 7""")
    def cpf():
        here = p.newlabel('Lpc')
        p.I(f"s_getpc_b64 s[{s_pair}:{s_pair+1}]")
        p.label(here)
        p.I(f"""s_lshl_b32 s{s_t0}, s{s_t1}, {os.environ.get('CPFSH', '11')}
                v_lshlrev_b32 v{t5}, 7, v{lane}
                v_add_u32 v{t5}, s{s_t0}, v{t5}
                v_min_u32 v{t5}, {name}_last-{here}, v{t5}
                s_mov_b64 exec, 0xffff""")
        p.I(f"global_load_dword v{v9}, v{t5}, s[{s_pair}:{s_pair+1}]")
        p.I("s_mov_b64 exec, -1")
    if 'nocpf' not in OPT: p.cond(lambda r, it: r['w'] == 7, "s_cbranch_scc1", cpf)
    p.I(f"""s_cmp_lt_u32 s{s_ci}, 2
            s_cbranch_scc1 {name}_proA
            s_cmp_lg_u32 s{s_g}, 0
            s_cbranch_scc1 {name}_proF1""")
    base_names = list(st.names)
    info = {}

    def xaddr_calc(xa):
        p.I(f"""v_and_b32 v{t0}, 31, v{lane}
                v_lshlrev_b32 v{t1}, 7, v{t0}
                s_lshl_b32 s{s_t0}, s{s_i}, 12
                v_add_u32 v{t1}, s{s_t0}, v{t1}
                v_bfe_u32 v{t0}, v{lane}, 1, 3
                v_lshrrev_b32 v{t2}, 5, v{lane}
                v_xor_b32 v{t0}, v{t0}, v{t2}
                v_lshl_add_u32 v{t1}, v{t0}, 4, v{t1}""")
        for t in range(4):
            p.I(f"""s_add_u32 s{s_t0}, s{s_i}, {t}
                    s_and_b32 s{s_t0}, s{s_t0}, 3
                    s_lshl_b32 s{s_t0}, s{s_t0}, 5
                    v_xor_b32 v{xa+t}, s{s_t0}, v{t1}""")
    def per_t(dst, src, ks_stride):
        for t in range(4):
            p.I(f"""s_add_u32 s{s_t0}, s{s_i}, {t}
                    s_and_b32 s{s_t0}, s{s_t0}, 3
                    s_mul_i32 s{s_t0}, s{s_t0}, {ks_stride}
                    v_add_u32 v{dst+t}, s{s_t0}, v{src}""")
    def sync_setup(typ):
        srd(p, S_WS, WS_P, WS_BYTES); srd(p, S_DBG, DBG_P, 256)
        p.I(f"""s_lshl_b32 s{s_t0}, s{s_rb}, 2
                s_add_u32 s{s_t0}, s{s_t0}, s{s_i}
                s_lshl_b32 s{s_sto}, s{s_t0}, 12
                s_add_u32 s{s_sto}, s{s_sto}, {ST_OFF + typ * 64 * 4096}
                s_lshl_b32 s{s_wit}, s{s_w}, 8
                s_lshl_b32 s{s_cso}, s{s_grp}, 1
                s_lshr_b32 s{s_t0}, s{s_rb}, 3
                s_add_u32 s{s_cso}, s{s_cso}, s{s_t0}
                s_lshl_b32 s{s_cso}, s{s_cso}, 15
                s_add_u32 s{s_cso}, s{s_cso}, {CS_OFF + typ * 16 * 32768}""")
    def stat_ops(xr, sS, sQ):
        out = []
        for o in range(0, 4, 2):
            out += [f"v_lshlrev_b32 v{t0}, 16, v{xr+o}", f"v_and_b32 v{t1}, 0xffff0000, v{xr+o}",
                    f"v_lshlrev_b32 v{t2}, 16, v{xr+o+1}", f"v_and_b32 v{t3}, 0xffff0000, v{xr+o+1}",
                    f"v_add_f32 v{sS}, v{sS}, v{t0}", f"v_add_f32 v{sS+1}, v{sS+1}, v{t1}",
                    f"v_fmac_f32 v{sQ}, v{t0}, v{t0}", f"v_fmac_f32 v{sQ+1}, v{t1}, v{t1}",
                    f"v_add_f32 v{sS}, v{sS}, v{t2}", f"v_add_f32 v{sS+1}, v{sS+1}, v{t3}",
                    f"v_fmac_f32 v{sQ}, v{t2}, v{t2}", f"v_fmac_f32 v{sQ+1}, v{t3}, v{t3}"]
        return out
    def cs_pre(F, dst):
        for k in range(0, 16, 2):
            p.I(f"""v_lshlrev_b32 v{t0}, 16, v{F+k}
                    v_and_b32 v{t1}, 0xffff0000, v{F+k}
                    v_lshlrev_b32 v{t2}, 16, v{F+k+1}
                    v_and_b32 v{t3}, 0xffff0000, v{F+k+1}""")
            if k == 0: p.I(pk("v_pk_add_f32", t4, t0, t2))
            else:
                p.I(pk("v_pk_add_f32", t4, t4, t0)); p.I(pk("v_pk_add_f32", t4, t4, t2))
        p.I(f"""v_add_f32 v{t4}, v{t4}, v{t5}
                v_mov_b32 v{t5}, v{t4}
                v_permlane32_swap_b32 v{t4}, v{t5}
                v_add_f32 v{dst}, v{t4}, v{t5}""")
    def cs_publish(src, s_blk):
        p.I(f"""v_mov_b32 v{src+1}, s{s_non}
                s_lshl_b32 s{s_t0}, s{s_blk}, 11
                s_add_u32 s{s_t0}, s{s_t0}, s{s_cso}
                s_and_b32 s{s_t1}, s{s_rb}, 6
                s_lshl_b32 s{s_t1}, s{s_t1}, 8
                s_add_u32 s{s_t0}, s{s_t0}, s{s_t1}
                s_and_b32 s{s_t1}, s{s_rb}, 1
                s_lshl_b32 s{s_t1}, s{s_t1}, 3
                s_add_u32 s{s_t0}, s{s_t0}, s{s_t1}
                s_mov_b64 exec, 0xffffffff""")
        p.I(f"buffer_store_dwordx2 {vr(src,2)}, v{l16}, s[{S_WS}:{S_WS+3}], s{s_t0} offen sc1")
        p.I("s_mov_b64 exec, -1")
    def fetch(loads):
        last = None
        for q, sb, o in loads:
            hi = o // 4096
            if (sb, hi) != last:
                p.I(f"s_add_u32 s{s_t0}, s{sb}, {hi * 4096}"); last = (sb, hi)
            p.I(f"buffer_load_dwordx4 {vr(q,4)}, v{l16}, s[{S_WS}:{S_WS+3}], s{s_t0} offen offset:{o % 4096} sc1")
    def validate(loads):
        tags = [r for q, _, _ in loads for r in (q + 1, q + 3)]
        def test():
            for op, acc in (("min", t0), ("max", t1)):
                p.I(f"v_{op}_u32 v{acc}, v{tags[0]}, v{tags[1]}")
                for k in range(2, len(tags), 2): p.I(f"v_{op}3_u32 v{acc}, v{acc}, v{tags[k]}, v{tags[k+1]}")
            p.I(f"""v_cmp_eq_u32 vcc, s{s_non}, v{t0}
                    v_cmp_eq_u32 s[{s_pair}:{s_pair+1}], s{s_non}, v{t1}
                    s_and_b64 vcc, vcc, s[{s_pair}:{s_pair+1}]""")
        test()
        p.I("s_cmp_eq_u64 vcc, -1")
        def slow():
            lab = p.newlabel('Lval'); done = p.newlabel('Lvald')
            p.I(f"s_mov_b32 s{s_t1}, 0")
            p.label(lab)
            fetch(loads)
            p.I("s_waitcnt vmcnt(0)")
            test()
            p.I(f"""s_add_u32 s{s_t1}, s{s_t1}, 1
                    s_cmp_ge_u32 s{s_t1}, 0x40000
                    s_cbranch_scc1 {done}
                    s_cmp_eq_u64 vcc, -1
                    s_cbranch_scc0 {lab}""")
            p.label(done)
        p.rare(lambda r, it: r.get('slow', False), "s_cbranch_scc0", slow)
    def xhalf(a):
        p.I(f"""v_permlane32_swap_b32 v{a}, v{a+1}
                v_add_f32 v{a}, v{a}, v{a+1}
                v_mov_b32 v{a+1}, v{a}
                v_permlane32_swap_b32 v{a}, v{a+1}""")
    def stats_pre(sS, sQ, P):
        p.I(f"v_add_f32 v{sS}, v{sS}, v{sS+1}\n v_add_f32 v{sS+1}, v{sQ}, v{sQ+1}")
        xhalf(sS)
        p.I(f"v_mov_b32 v{P}, v{sS}\n v_mov_b32 v{P+2}, v{sS+1}")
    def stats_publish(P):
        p.I(f"""v_mov_b32 v{P+1}, s{s_non}
                v_mov_b32 v{P+3}, s{s_non}
                s_lshl_b32 s{s_t0}, s{s_grp}, 9
                s_add_u32 s{s_t0}, s{s_t0}, s{s_sto}
                s_mov_b64 exec, 0xffffffff""")
        p.I(f"buffer_store_dwordx4 {vr(P,4)}, v{l16}, s[{S_WS}:{S_WS+3}], s{s_t0} offen sc1")
        p.I("s_mov_b64 exec, -1")
    st_loads = lambda B: [(B + 4*j, s_sto, 1024*j) for j in range(4)]
    def st_addr(dst, base):
        p.I(f"""v_and_b32 v{dst}, 31, v{lane}
                v_lshlrev_b32 v{dst}, 3, v{dst}
                s_lshl_b32 s{s_t0}, s{s_i}, 8
                s_add_u32 s{s_t0}, s{s_t0}, {base}
                v_add_u32 v{dst}, s{s_t0}, v{dst}""")
    def f_consts(rstd, sd, c1, irs2):
        p.I(f"v_mul_f32 v{irs2}, v{sd}, v{sd}\n v_mul_f32 v{c1}, {0x80000000 | LOG2E}, v{rstd}")
    def stats_final(E, M, rstd, sd):
        T = t0
        p.I(f"""v_add_f32 v{E}, v{E}, v{E+4}
                v_add_f32 v{E+1}, v{E+2}, v{E+6}
                v_add_f32 v{E+8}, v{E+8}, v{E+12}
                v_add_f32 v{E+9}, v{E+10}, v{E+14}""")
        p.I(pk("v_pk_add_f32", E, E, E+8))
        xhalf(E)
        p.I(f"""v_mul_f32 v{E}, 0x3b000000, v{E}
                v_mul_f32 v{E+1}, 0x3b000000, v{E+1}
                v_fma_f32 v{E+1}, -v{E}, v{E}, v{E+1}
                v_cvt_pk_bf16_f32 v{M}, -v{E}, -v{E}
                v_max_f32 v{E+1}, 0, v{E+1}
                v_cvt_pk_bf16_f32 v{T}, v{E+1}, v{E+1}
                v_and_b32 v{T}, 0xffff0000, v{T}
                v_add_f32 v{T}, 0x3727c5ac, v{T}
                v_cvt_pk_bf16_f32 v{T}, v{T}, v{T}
                v_and_b32 v{T}, 0xffff0000, v{T}
                v_sqrt_f32 v{T}, v{T}
                v_cvt_pk_bf16_f32 v{T}, v{T}, v{T}
                v_and_b32 v{sd}, 0xffff0000, v{T}
                v_rcp_f32 v{rstd}, v{sd}""")
    def corr_prep(qa, qb, dst):
        T = t5
        p.I(f"""v_add_f32 v{qa}, v{qa}, v{qa+2}
                v_add_f32 v{qb}, v{qb}, v{qb+2}
                v_add_f32 v{qa}, v{qa}, v{qb}
                v_cvt_pk_bf16_f32 v{T}, v{qa}, v{qa}
                v_and_b32 v{T}, 0xffff0000, v{T}
                v_sub_f32 v{T}, v{qa}, v{T}
                v_cvt_pk_bf16_f32 v{dst}, v{qa}, v{T}""")
    def corr_mf(acc, src, C, M):
        p.I(f"v_mov_b32 v{C}, v{src}")
        p.I(f"{MF} {vr(acc,16)}, {vr(C,4)}, {vr(M,4)}, {vr(acc,16)}")
    def f_epi_list(acc, c1, irs2, T, soff, packed):
        L = []
        if packed:
            L += [pk("v_pk_mul_f32", T+i, acc+i, c1, bc=(1,)) for i in range(0, 8, 2)]
            L += [f"v_exp_f32 v{T+i}, v{T+i}" for i in range(8)]
            L += [pk("v_pk_mul_f32", acc+i, acc+i, acc+8+i) for i in range(0, 8, 2)]
            L += [pk("v_pk_fma_f32", T+i, T+i, irs2, irs2, bc=(1, 2)) for i in range(0, 8, 2)]
            L += [f"v_rcp_f32 v{T+i}, v{T+i}" for i in range(8)]
            L += [pk("v_pk_mul_f32", acc+i, acc+i, T+i) for i in range(0, 8, 2)]
        else:
            L += [f"v_mul_f32 v{T+i}, v{acc+i}, v{c1}" for i in range(8)]
            for i in range(8): L += [f"v_exp_f32 v{T+i}, v{T+i}", f"v_mul_f32 v{acc+i}, v{acc+i}, v{acc+8+i}"]
            L += [f"v_fma_f32 v{T+i}, v{T+i}, v{irs2}, v{irs2}" for i in range(8)]
            L += [f"v_rcp_f32 v{T+i}, v{T+i}" for i in range(2)]
            for i in range(8):
                if i + 2 < 8: L += [f"v_rcp_f32 v{T+i+2}, v{T+i+2}"]
                L += [f"v_mul_f32 v{acc+i}, v{acc+i}, v{T+i}"]
        L += [f"v_cvt_pk_bf16_f32 v{acc+i}, v{acc+2*i}, v{acc+2*i+1}" for i in range(4)]
        L += [f"buffer_store_dwordx4 {vr(acc,4)}, v{l16}, s[{S_WS}:{S_WS+3}], {soff} {HSC}"]
        return [lambda x=x: p.I(x, tag='hst' if x.startswith('buffer') else None) for x in L]
    def f_epilogue(acc, c1, irs2, T, soff):
        for f in f_epi_list(acc, c1, irs2, T, soff, True): f()
    def nonce_sample(vf):
        p.I(f"v_mov_b32 v{t0}, 0")
        p.I(f"buffer_load_dwordx2 {vr(vf,2)}, v{t0}, s[{S_DBG}:{S_DBG+3}], 0 offen offset:128 sc1")
    def nonce_take(vf):
        p.I(f"v_mov_b32 v{t0}, 128")
        nonce_get(p, vf, t0, S_DBG, "0", s_non, s_t0)
    S_PF = S_PHI
    def pf_list(dummy):
        L = []
        def setup(ptr, nbytes, per):
            srd(p, S_PF, ptr, nbytes)
            p.I(f"""s_lshr_b32 s{s_pf}, s2, 3
                    s_mul_i32 s{s_pf}, s{s_pf}, {per}
                    s_add_u32 s{s_pf}, s{s_pf}, s{s_w}
                    s_lshl_b32 s{s_pf}, s{s_pf}, 10""")
        def ld():
            p.I(f"buffer_load_dwordx4 {vr(dummy,4)}, v{l16}, s[{S_PF}:{S_PF+3}], s{s_pf} offen")
            p.I(f"s_add_u32 s{s_pf}, s{s_pf}, 8192")
        if 'l2pf' not in OPT: return []
        L.append(lambda: (setup(W2_P, 1376*1024, 43), ld()))
        L += [ld] * 5
        L.append(lambda: (setup(WO_P, 512*1024, 16), ld()))
        L.append(ld)
        return L
    def mall_touch(dummy):
        if 'nomall' in OPT: return
        p.I(f"""s_lshl_b32 s{s_pf}, s2, 3
                s_add_u32 s{s_pf}, s{s_pf}, s{s_w}
                s_sub_u32 s{s_t0}, s{s_pf}, 1376
                s_cmp_lt_u32 s{s_pf}, 1376
                s_cselect_b32 s{s_pf}, s{s_pf}, s{s_t0}
                s_cselect_b64 s[{S_PF}:{S_PF+1}], s[{W2_P}:{W2_P+1}], s[{WO_P}:{WO_P+1}]
                s_mov_b32 s{s_t0}, {512*1024}
                s_cselect_b32 s{S_PF+2}, {1376*1024}, s{s_t0}
                s_mov_b32 s{S_PF+3}, 0x20000
                s_lshl_b32 s{s_pf}, s{s_pf}, 10""")
        p.I(f"buffer_load_dwordx4 {vr(dummy,4)}, v{l16}, s[{S_PF}:{S_PF+3}], s{s_pf} offen")
    def code_pf(label, dummy, piece_s=None):
        here = p.newlabel('Lpc')
        p.I(f"s_getpc_b64 s[{s_pair}:{s_pair+1}]")
        p.label(here)
        p.I(f"""s_add_u32 s{s_pair}, s{s_pair}, {label}-{here}
                s_addc_u32 s{s_pair+1}, s{s_pair+1}, {'0' if label.startswith('k2') else '-1'}
                v_lshlrev_b32 v{dummy}, 7, v{lane}""")
        if piece_s is not None: p.I(f"v_add_u32 v{dummy}, s{piece_s}, v{dummy}")
        p.I(f"global_load_dword v{dummy}, v{dummy}, s[{s_pair}:{s_pair+1}]")
    def kap0(s, dst):
        if s < 8:
            p.I(f"""s_add_u32 s{dst}, s{s_rot2}, {s}
                    s_and_b32 s{dst}, s{dst}, 7
                    s_lshl_b32 s{dst}, s{dst}, 3
                    s_add_u32 s{dst}, s{dst}, 16""")
        else: p.I(f"s_mov_b32 s{dst}, {[80, 0, 8, 86, 94, 102, 110][s-8]}")
    def p2_params(off):
        p.I(f"""s_lshr_b32 s{s_t0}, s2, 3
                s_and_b32 s{s_ct2}, s{s_t0}, 7
                s_and_b32 s{s_rb2}, s2, 1
                s_lshl_b32 s{s_rb2}, s{s_rb2}, 4
                s_and_b32 s{s_t0}, s2, 6
                s_lshl_b32 s{s_t0}, s{s_t0}, 1
                s_add_u32 s{s_rb2}, s{s_rb2}, s{s_t0}
                s_add_u32 s{s_rb2}, s{s_rb2}, s{s_ci}
                s_lshl_b32 s{s_rot2}, s{s_ci}, 1
                s_add_u32 s{s_rot2}, s{s_rot2}, s{s_ct2}
                s_mov_b32 s{s_bs0}, {off}""")
    def vb_calc(vB, n):
        p.I(f"""v_lshrrev_b32 v{t0}, 3, v{lane}
                v_lshlrev_b32 v{t0}, 10, v{t0}
                v_and_b32 v{t1}, 7, v{lane}
                v_bfe_u32 v{t2}, v{lane}, 4, 1
                v_lshlrev_b32 v{t2}, 2, v{t2}
                v_xor_b32 v{t1}, v{t1}, v{t2}
                v_lshl_add_u32 v{vB}, v{t1}, 4, v{t0}
                s_lshl_b32 s{s_t0}, s{s_ct2}, 7
                v_add_u32 v{vB}, s{s_t0}, v{vB}""")
        for m in range(1, n): p.I(f"v_add_u32 v{vB+m}, {7168*m}, v{vB}")
    def bpf_setup(vB, off):
        p2_params(off); vb_calc(vB, 2); srd(p, S_W2, W2_P, 1376*1024)
    def bpf(s, vB, off):
        def a():
            kap0(s, s_t1)
            p.I(f"""s_add_u32 s{s_t1}, s{s_t1}, s{s_w}
                    s_lshl_b32 s{s_bo}, s{s_t1}, 14
                    s_lshl_b32 s{s_t1}, s{s_w}, 11
                    s_add_u32 m0, s{s_t1}, {BBASE + ((s + off) % 7) * 16384}""")
            p.I(f"buffer_load_dwordx4 v{vB}, s[{S_W2}:{S_W2+3}], s{s_bo} offen lds")
            p.I(f"buffer_load_dwordx4 v{vB+1}, s[{S_W2}:{S_W2+3}], s{s_bo} offen offset:1024 lds")
        return [] if 'nobpf' in OPT else [a]
    def finish(typ):
        p.wait(vm=['hst'], lg_all=True)
        p.I("s_barrier")
        def fr():
            p.I(f"""s_lshl_b32 s{s_t1}, s{s_rb}, 3
                    s_add_u32 s{s_t1}, s{s_t1}, s{s_grp}
                    s_lshl_b32 s{s_t1}, s{s_t1}, 7
                    s_add_u32 s{s_t1}, s{s_t1}, {FL_OFF + typ * 128 * 128}""")
            flag_raise(p, t2, S_WS, s_t1, s_non)
        ifw(0, fr)
        st.stamp(p, 'ph1')
        p.I(f"s_branch {name}_ph2")
    def ifw(w, fn):
        p.I(f"s_cmp_lg_u32 s{s_w}, {w}"); p.cond(lambda r, it: r['w'] == w, "s_cbranch_scc1", fn)
    def rarew(w, fn):
        p.I(f"s_cmp_eq_u32 s{s_w}, {w}"); p.rare(lambda r, it: r['w'] == w, "s_cbranch_scc1", fn)

    FSLOT = 53376; FW1 = 16384; FW3 = 16384 + 18432 + 128
    FEX2 = 2 * FSLOT
    def ftype(g):
        V = Regs('v', BASE, 256)
        st.n = len(base_names); st.names = list(base_names)
        nb = 5 if g == 0 else 4
        b0 = 0 if g == 0 else 5
        nd = 6 if g == 0 else 7
        vd = V.alloc(7); xa = V.alloc(4); wa = V.alloc(4)
        ACC = V.alloc(16 * nb, 4)
        SET = [V.alloc(24, 4), V.alloc(24, 4)]
        XT = V.alloc(28, 4); WTB = V.alloc(32, 4)
        sS, sQ, PUBS, PUBC, PUB8, VF, vpre = WTB + 16, WTB + 18, XT + 16, XT + 20, XT + 22, XT + 24, XT + 26
        FEX = 2 * FSLOT
        floads = [(WTB, s_csg, 0), (WTB + 4, s_csg, 1024)] + (st_loads(XT) if g == 1 else [])
        floads8 = [(WTB + 8, s_cso, 16384), (WTB + 12, s_cso, 17408)]
        M = V.alloc(4, 4); C = V.alloc(4, 4); T = V.alloc(8, 4)
        c1 = V.alloc(1, 2); rstd = V.alloc(); irs2 = V.alloc(1, 2); C0 = V.alloc(5); PFD = V.alloc(4, 4)
        def dma(n, tag):
            if g == 0:
                if n == 0: p.I(f"s_add_u32 m0, s{s_mslot}, s{s_mA}")
                if n == 3: p.I(f"s_add_u32 m0, s{s_mslot}, s{s_mB}")
                S = S_W1 if n < 3 else S_W3
                p.I(f"buffer_load_dwordx4 v{vd + n % 3}, s[{S}:{S+3}], s{s_woff} offen offset:{1024*(n%3)} lds", tag=tag)
            else:
                if n == 0: p.I(f"s_add_u32 m0, s{s_mslot}, s{s_mA}")
                if n == 4: p.I(f"s_add_u32 m0, s{s_mslot}, s{s_mB}")
                if n < 4: p.I(f"buffer_load_dwordx4 v{vd+3+n}, s[{S_X}:{S_X+3}], s{s_xoff} offen offset:{1024*n} lds", tag=tag)
                else: p.I(f"buffer_load_dwordx4 v{vd+n-4}, s[{S_WM}:{S_WM+3}], s{s_woff} offen offset:{1024*(n-4)} lds", tag=tag)
        nxt = f"""s_add_u32 s{s_kc}, s{s_kc}, 1
                  s_and_b32 s{s_kc}, s{s_kc}, 7
                  s_lshl_b32 s{s_xoff}, s{s_kc}, 7
                  s_mul_i32 s{s_woff}, s{s_kc}, {64*2752}
                  s_add_u32 s{s_mslot}, s{s_mslot}, {FSLOT}
                  s_cmp_ge_u32 s{s_mslot}, {3*FSLOT}
                  s_cselect_b32 s{s_mslot}, 0, s{s_mslot}
                  s_add_u32 s{s_ds}, s{s_ds}, 1"""
        def prologue():
            p.label(f"{name}_proF{g}")
            p.I(f"""s_mul_i32 s{s_col}, s{s_grp}, 288
                    s_add_u32 s{s_col}, s{s_col}, 512
                    s_min_u32 s{s_col}, s{s_col}, 2464""")
            def wvoff(dst, q_s, m):
                p.I(f"""s_add_u32 s{s_t0}, s{q_s}, {m}
                        s_lshl_b32 s{s_t0}, s{s_t0}, 6
                        v_add_u32 v{t0}, s{s_t0}, v{lane}
                        v_mul_u32_u24 v{t1}, 3641, v{t0}
                        v_lshrrev_b32 v{t1}, 16, v{t1}
                        v_mul_u32_u24 v{t2}, {2752 - 18*16}, v{t1}
                        v_lshl_add_u32 v{t0}, v{t0}, 4, v{t2}
                        s_sub_u32 s{s_t0}, s{s_col}, {1024*m}
                        v_add_u32 v{dst}, s{s_t0}, v{t0}""")
            if g == 0:
                p.I(f"s_mul_i32 s{s_t2}, s{s_i}, 3")
                for m in range(3): wvoff(vd + m, s_t2, m)
                p.I(f"""s_lshl_b32 s{s_mA}, s{s_t2}, 10
                        s_add_u32 s{s_mB}, s{s_mA}, {FW3}
                        s_add_u32 s{s_mA}, s{s_mA}, {FW1}""")
            else:
                p.I(f"""s_lshl_b32 s{s_t0}, s{s_rb}, 2
                        s_add_u32 s{s_t0}, s{s_t0}, s{s_i}
                        s_lshl_b32 s{s_t0}, s{s_t0}, 15
                        v_lshrrev_b32 v{t0}, 3, v{lane}
                        v_lshlrev_b32 v{t0}, 10, v{t0}
                        v_add_u32 v{t0}, s{s_t0}, v{t0}
                        v_and_b32 v{t1}, 7, v{lane}
                        v_lshrrev_b32 v{t2}, 4, v{lane}
                        v_xor_b32 v{t1}, v{t1}, v{t2}
                        v_lshl_add_u32 v{vd+3}, v{t1}, 4, v{t0}
                        v_xor_b32 v{t0}, 64, v{vd+3}
                        v_add_u32 v{vd+4}, {7168}, v{t0}
                        v_add_u32 v{vd+5}, {2*7168}, v{vd+3}
                        v_add_u32 v{vd+6}, {3*7168}, v{t0}
                        s_and_b32 s{s_t2}, s{s_i}, 1
                        s_mul_i32 s{s_t2}, s{s_t2}, 3
                        s_add_u32 s{s_t2}, s{s_t2}, 12""")
                for m in range(3): wvoff(vd + m, s_t2, m)
                p.I(f"""s_lshl_b32 s{s_mB}, s{s_t2}, 10
                        s_lshr_b32 s{s_t0}, s{s_i}, 1
                        s_mul_i32 s{s_t0}, s{s_t0}, {FW3-FW1}
                        s_add_u32 s{s_mB}, s{s_mB}, s{s_t0}
                        s_add_u32 s{s_mB}, s{s_mB}, {FW1}
                        s_lshl_b32 s{s_mA}, s{s_i}, 12""")
            p.I(f"""s_mov_b32 s{s_kc}, s{s_rot}
                    s_lshl_b32 s{s_xoff}, s{s_kc}, 7
                    s_mul_i32 s{s_woff}, s{s_kc}, {64*2752}
                    s_mov_b32 s{s_mslot}, 0
                    s_mov_b32 s{s_ds}, 0""")
            p.I("s_waitcnt lgkmcnt(0)")
            if g == 0:
                srd(p, S_W1, W1_P, 512*2752); srd(p, S_W3, W3_P, 512*2752)
            else:
                srd(p, S_X, X_P, 2048*1024)
                p.I(f"""s_cmp_lt_u32 s{s_i}, 2
                        s_cselect_b64 s[{S_WM}:{S_WM+1}], s[{W1_P}:{W1_P+1}], s[{W3_P}:{W3_P+1}]
                        s_mov_b32 s{S_WM+2}, {512*2752}
                        s_mov_b32 s{S_WM+3}, 0x20000""")
            st.stamp(p, 'args')
            for n in range(nd): dma(n, ('d', 0))
            p.I(nxt)
            p.I(f"s_branch {name}_bodyF{g}")
        split = [int(x) for x in os.environ.get('FSPLIT%d' % g, '2,2,1,1' if g == 0 else '2,2,2,1').split(',')]
        assert sum(split) == nd
        ofs = [sum(split[:k]) for k in range(5)]
        def body():
            p.label(f"{name}_bodyF{g}")
            for n in range(nd): dma(n, ('d', 1))
            p.I(nxt)
            xaddr_calc(xa)
            p.I(f"""v_bfe_u32 v{t0}, v{lane}, 4, 1
                    v_mul_u32_u24 v{t0}, {FW3-FW1}, v{t0}
                    v_lshrrev_b32 v{t1}, 5, v{lane}
                    v_bfe_u32 v{t2}, v{lane}, 2, 2
                    v_lshl_add_u32 v{t1}, v{t1}, 3, v{t2}
                    v_mul_u32_u24 v{t1}, 288, v{t1}
                    v_add_u32 v{t0}, v{t0}, v{t1}
                    v_and_b32 v{t1}, 3, v{lane}
                    v_lshl_add_u32 v{t0}, v{t1}, 3, v{t0}
                    v_add_u32 v{t3}, {FW1 + 32*b0}, v{t0}
                    s_lshl_b32 s{s_t0}, s{s_w}, 5
                    s_add_u32 s{s_t0}, s{s_t0}, {FW1}
                    v_add_u32 v{vpre}, s{s_t0}, v{t0}""")
            per_t(wa, t3, 16 * 288)
            for i in range(0, 16 * nb, 2): p.I(f"v_mov_b64 {vr(ACC+i,2)}, 0")
            for r in [sS, sS+1, sQ, sQ+1, M+1, M+2, M+3, C+1, C+2, C+3]: p.I(f"v_mov_b32 v{r}, 0")
            sync_setup(1)
            p.I(f"""s_lshl_b32 s{s_hoff}, s{s_rb}, 2
                    s_add_u32 s{s_hoff}, s{s_hoff}, s{s_i}
                    s_mul_i32 s{s_hoff}, s{s_hoff}, 118
                    s_lshr_b32 s{s_t1}, s{s_col}, 5
                    s_add_u32 s{s_hoff}, s{s_hoff}, s{s_t1}
                    s_add_u32 s{s_hoff}, s{s_hoff}, {b0}
                    s_lshl_b32 s{s_hoff}, s{s_hoff}, 10
                    s_mov_b32 s{s_it}, 0
                    s_mov_b32 s{s_rslot}, 0
                    s_mov_b32 s{s_t3}, {FSLOT}""")
            def reads(S, t):
                out = [lambda: p.I(f"ds_read_b128 {vr(S,4)}, v{xa+t}")]
                for b in range(nb):
                    out.append(lambda b=b: p.I(f"ds_read_b64_tr_b16 {vr(S+4+4*b,2)}, v{wa+t} offset:{32*b}"))
                    out.append(lambda b=b: p.I(f"ds_read_b64_tr_b16 {vr(S+4+4*b+2,2)}, v{wa+t} offset:{32*b+1152}"))
                return out
            def mf(S):
                return [lambda b=b: p.I(f"{MF} {vr(ACC+16*b,16)}, {vr(S+4+4*b,4)}, {vr(S,4)}, {vr(ACC+16*b,16)}") for b in range(nb)]
            def dgroup(k, tagf, valid):
                lo, hi = ofs[k], ofs[k+1]
                if lo == hi: return []
                return [lambda: (p.I(f"s_cmp_gt_u32 s{s_ds}, 7"),
                                 p.cond(valid, "s_cbranch_scc1", lambda: [dma(n, tagf) for n in range(lo, hi)]))]
            def at_it(k, w0, fn):
                p.I(f"s_cmp_lg_u32 s{s_wit if w0 else s_it}, {k}")
                p.cond(lambda r, it: it == k and (not w0 or r['w'] == 0), "s_cbranch_scc1", fn)
            def special(its, fn):
                p.I(f"s_bitcmp1_b32 {sum(1 << k for k in its)}, s{s_it}")
                p.rare(lambda r, it: it in its, "s_cbranch_scc1", fn)
            p.I(f"s_lshl_b32 s{s_csg}, s{s_w}, 11\n s_add_u32 s{s_csg}, s{s_csg}, s{s_cso}")
            p.wait(vm=[('d', 0)])
            p.I("s_barrier")
            st.stamp(p, 'bar0')
            nonce_sample(VF)
            def pre_reads(extra):
                for t in range(4):
                    for h in range(2):
                        p.I(f"ds_read_b64_tr_b16 {vr(SET[1]+4*t+2*h,2)}, v{vpre} offset:{16*288*t + 1152*h + extra}")
            pre_reads(0)
            if g == 1:
                XS = [XT, XT + 4, XT + 8, XT + 12]
                for t in range(4): p.I(f"ds_read_b128 {vr(XS[t],4)}, v{xa+t}")
            for n in range(split[0]): dma(n, ('d', 2))
            cs_pre(SET[1], PUBC)
            if g == 1:
                for t in range(4): p.I("\n".join(stat_ops(XS[t], sS, sQ)))
                stats_pre(sS, sQ, PUBS)
            else:
                ifw(0, lambda: (pre_reads(256), cs_pre(SET[1], PUB8)))
            for r in reads(SET[0], 0): r()
            st.stamp(p, 'pre')
            FGET = int(os.environ.get('FGET', '3'))
            def lbody():
                v2 = lambda r, it: it + 2 <= 7
                v3 = lambda r, it: it + 3 <= 7
                tg2 = lambda it: ('d', it + 2)
                tg3 = lambda it: ('d', it + 3)
                interleave(p, mf(SET[0]), mix(reads(SET[1], 1), dgroup(1, tg2, v2)))
                interleave(p, mf(SET[1]), mix(reads(SET[0], 2), dgroup(2, tg2, v2)))
                slot = [lambda: p.I(nxt), lambda: p.I(f"""s_add_u32 s{s_rslot}, s{s_rslot}, {FSLOT}
                        s_cmp_ge_u32 s{s_rslot}, {3*FSLOT}
                        s_cselect_b32 s{s_rd}, {(-2*FSLOT) & 0xffffffff}, s{s_t3}
                        s_cselect_b32 s{s_rslot}, 0, s{s_rslot}""")]
                interleave(p, mf(SET[0]), mix(reads(SET[1], 3), dgroup(3, tg2, v2) + slot))
                w = lambda: p.wait(vm=[lambda it: ('d', it + 1)], lg_all=True)
                p.I(f"s_bitcmp1_b32 {(1 << 1) | (1 << (FGET + 1))}, s{s_it}")
                p.rare_else(lambda r, it: it in (1, FGET + 1), "s_cbranch_scc1", w, w)
                p.I("s_barrier")
                if 'fine' in OPT: st.stamp_dyn(p, 'b', s_it, 6)
                adr = [lambda t=t: p.I(f"v_add_u32 v{xa+t}, s{s_rd}, v{xa+t}\n v_add_u32 v{wa+t}, s{s_rd}, v{wa+t}") for t in range(4)]
                def publish():
                    nonce_take(VF)
                    cs_publish(PUBC, s_w)
                    mall_touch(PFD)
                    if g == 1: stats_publish(PUBS)
                    else: ifw(0, lambda: (p.I(f"s_mov_b32 s{s_t2}, 8"), cs_publish(PUB8, s_t2)))
                def get():
                    fetch(floads)
                    if g == 0: ifw(0, lambda: fetch(floads8))
                def digest():
                    validate(floads)
                    corr_prep(WTB, WTB + 4, t2)
                    p.I(f"""v_lshlrev_b32 v{t3}, 2, v{lane}
                            s_lshl_b32 s{s_t0}, s{s_w}, 8
                            s_add_u32 s{s_t0}, s{s_t0}, {FEX}
                            v_add_u32 v{t3}, s{s_t0}, v{t3}""")
                    p.I(f"ds_write_b32 v{t3}, v{t2}")
                    if g == 0:
                        ifw(0, lambda: (validate(floads8), corr_prep(WTB + 8, WTB + 12, t2), p.I(f"ds_write_b32 v{t3}, v{t2} offset:2048")))
                    else:
                        stats_final(XT, M, rstd, M + 1)
                        st_addr(t3, FEX + 2304)
                        p.I(f"ds_write_b64 v{t3}, {vr(M,2)}")
                def postsync():
                    def f():
                        at_it(0, False, publish)
                        at_it(FGET, False, get)
                        at_it(5, False, digest)
                    special((0, FGET, 5), f)
                interleave(p, mf(SET[1]), [adr[0]] + mix(reads(SET[0], 0), adr[1:], dgroup(0, tg3, v3)) + [postsync])
                p.I(f"s_add_u32 s{s_it}, s{s_it}, 1\n s_add_u32 s{s_wit}, s{s_wit}, 1")
            p.drop = drop
            p.loop(6, lbody, f"{name}_f{g}", f"s_cmp_lt_u32 s{s_it}, 6\n s_cbranch_scc1 {name}_f{g}")
            p.drop = ()
            st.stamp(p, 'loop')
            Xr = lambda s, t: SET[0] if (s, t) == (6, 0) else XT + 4 * (4 * (s - 6) + t - 1)
            order = [(0, 6), (1, 6), (2, 6), (0, 7), (1, 7), (2, 7)] + [(b, s) for b in range(3, nb) for s in (6, 7)]
            bufs = [SET[1], WTB, WTB + 16]
            ub = {u: bufs[k % 3] for k, u in enumerate(order)}
            Wr = lambda b, s, t: SET[0] + 4 + 4*b if (s, t) == (6, 0) else ub[(b, s)] + 4*t
            def wread(u):
                b, s = u
                return [lambda t=t, h=h: p.I(f"ds_read_b64_tr_b16 {vr(Wr(b,s,t)+2*h,2)}, v{wa+t} offset:{32*b + 1152*h + (s-6)*FSLOT}")
                        for t in range(4) if (s, t) != (6, 0) for h in range(2)]
            def unit(u):
                b, s = u
                return [lambda t=t: p.I(f"{MF} {vr(ACC+16*b,16)}, {vr(Wr(b,s,t),4)}, {vr(Xr(s,t),4)}, {vr(ACC+16*b,16)}") for t in range(4)]
            xread = lambda s: [lambda t=t: p.I(f"ds_read_b128 {vr(Xr(s,t),4)}, v{xa+t} offset:{(s-6)*FSLOT}") for t in range(4) if (s, t) != (6, 0)]
            cmf = lambda b: corr_mf(ACC + 16*b, C0 + b, C, M)
            def epi(b, packed):
                L = f_epi_list(ACC + 16*b, c1, irs2, T, f"s{s_qoff if (g == 0 and b < 2) else s_hoff} offen offset:{1024*b}" if b < 4 else f"s{s_t2} offen", packed)
                return L
            p.I(f"s_add_u32 s{s_t2}, s{s_hoff}, 4096")
            p.I(f"s_cmp_eq_u32 s{s_grp}, 7\n s_cselect_b32 s{s_qoff}, 0x7ff00000, s{s_hoff}")
            for f in xread(6) + wread(order[0]): f()
            interleave(p, unit(order[0]), wread(order[1]))
            interleave(p, unit(order[1]), wread(order[2]))
            p.wait(vm=[('d', 7)], lg_all=True)
            p.I("s_barrier")
            p.I(f"v_lshlrev_b32 v{t3}, 2, v{lane}\n v_add_u32 v{t3}, {FEX + 256*b0}, v{t3}")
            for b in range(nb): p.I(f"ds_read_b32 v{C0+b}, v{t3} offset:{256*b}")
            if g == 0:
                st_addr(t2, FEX + 2304)
                p.I(f"ds_read_b64 {vr(M,2)}, v{t2}")
            def consts():
                p.I(f"v_rcp_f32 v{rstd}, v{M+1}")
                f_consts(rstd, M + 1, c1, irs2)
                p.I(f"v_mov_b32 v{M+1}, 0")
            PKT = 'pktail' in OPT
            CH = int(os.environ.get('FCH', '30'))
            work = []
            pfl = pf_list(PFD)
            fresh = False
            for k in range(2, len(order)):
                u = order[k]
                nxtr = (xread(7) if k == 2 else []) + (wread(order[k + 1]) if k + 1 < len(order) else []) + ([consts] if k == 2 else [])
                take, work = work[:CH], work[CH:]
                nxtr, pfl = nxtr + pfl[:1], pfl[1:]
                ms = unit(u)
                if fresh:
                    interleave(p, ms[:2], nxtr); interleave(p, ms[2:], take)
                else:
                    interleave(p, ms, mix(nxtr, take))
                fresh = False
                if k + 1 == len(order) and g == 0:
                    p.wait(lg_all=True)
                    p.I("s_barrier")
                if u[1] == 7:
                    cmf(u[0])
                    fresh = not work
                    work = work + epi(u[0], PKT or k + 1 == len(order))
            assert not pfl
            lateb = [lambda: bpf_setup(vd, 0)] + [f for s in range(7) for f in bpf(s, vd, 0)]
            for f in work: f()
            if g == 1: p.I("s_barrier")
            for f in lateb: f()
            st.stamp(p, 'end')
            finish(1)
        p.begin(); prologue(); pro = p.end()
        p.begin(); body(); bod = p.end()
        info[f'F{g}'] = ([w for w in range(256) if (w >> 6) >= 2], [4*g + k for k in range(4)], list(st.names))
        return pro, bod, V.next

    def atype():
        V = Regs('v', BASE, 256)
        st.n = len(base_names); st.names = list(base_names)
        vx = V.alloc(2); vw = V.alloc(); vf = V.alloc()
        xa = V.alloc(4); wa = V.alloc(4); fa = V.alloc(4)
        cs = V.alloc(2, 2); vpre = V.alloc(2); sS = V.alloc(2, 2); sQ = V.alloc(2)
        rstd = V.alloc(1, 2); sd = V.alloc(); c1 = t0; irs2 = t2
        X = V.alloc(128, 4)
        AK, AV, AQ, AF = [V.alloc(16, 4) for _ in range(4)]
        SET = [V.alloc(8, 4), V.alloc(8, 4)]
        WP = V.alloc(8, 4); M = WP + 4
        C = V.alloc(4, 4)
        VF = AF + 8
        SL = 32768
        AGET = int(os.environ.get('AGET', '5')); APUB = int(os.environ.get('APUB', '2'))
        EX2, TP, TV = 36864, 40960, 73728
        p1base = lambda s: (s % 4) * SL
        p2base = lambda s: [4*SL, 4*SL+16384, 0, 16384, 3*SL, 3*SL+16384, 4*SL, 4*SL+16384][s]
        def kc_setup(s):
            p.I(f"s_add_u32 s{s_kc}, s{s_rot}, {s}\n s_and_b32 s{s_kc}, s{s_kc}, 7")
        dq = []
        def mk1(s):
            tag = ('d', s); b = p1base(s)
            def d0():
                kc_setup(s)
                p.I(f"s_lshl_b32 s{s_xoff}, s{s_kc}, 7\n s_add_u32 m0, s{s_mA}, {b}\n s_mul_i32 s{s_woff}, s{s_kc}, {64*3072}")
                p.I(f"buffer_load_dwordx4 v{vx}, s[{S_X}:{S_X+3}], s{s_xoff} offen lds", tag=tag)
            def d1(): p.I(f"buffer_load_dwordx4 v{vx+1}, s[{S_X}:{S_X+3}], s{s_xoff} offen offset:1024 lds", tag=tag)
            def d2():
                p.I(f"s_add_u32 m0, s{s_mB}, {b + 16384 - 1024}\n s_add_u32 s{s_voff}, s{s_woff}, 2048")
                p.I(f"buffer_load_dwordx4 v{vw}, s[{S_QKV}:{S_QKV+3}], s{s_woff} offen offset:1024 lds", tag=tag)
            def d3():
                p.I(f"s_add_u32 m0, s{s_mB}, {b + 24576}")
                p.I(f"buffer_load_dwordx4 v{vw}, s[{S_QKV}:{S_QKV+3}], s{s_voff} offen lds", tag=tag)
            need = None if s < 4 else s - 2
            return [(d0, need), (d1, need), (d2, need), (d3, need)]
        def mk2(s):
            tag = ('d', 8 + s); b = p2base(s)
            def d0():
                kc_setup(s)
                p.I(f"s_mul_i32 s{s_woff}, s{s_kc}, {64*3072}\n s_add_u32 m0, s{s_mB}, {b}\n s_mul_i32 s{s_voff}, s{s_kc}, {64*2752}")
                p.I(f"buffer_load_dwordx4 v{vw}, s[{S_QKV}:{S_QKV+3}], s{s_woff} offen lds", tag=tag)
            def d1():
                p.I(f"s_add_u32 m0, s{s_mB}, {b + 8192}")
                p.I(f"buffer_load_dwordx4 v{vf}, s[{S_WM}:{S_WM+3}], s{s_voff} offen lds", tag=tag)
            need = [None, 4, 6, 6, 10, 10, 11, 11][s]
            return [(d0, need), (d1, need)]
        dq += mk1(0) + mk1(1) + mk2(0)
        for s in range(2, 8): dq += mk1(s)
        for s in range(1, 8): dq += mk2(s)
        npop = [0]
        passed = [-1]
        def pop(n=1):
            for _ in range(n):
                if not dq: return
                f, need = dq[0]
                if need is not None and need > passed[0]: return
                dq.pop(0); f(); npop[0] += 1
        def prologue():
            p.label(f"{name}_proA")
            p.I(f"""s_lshl_b32 s{s_t0}, s{s_rb}, 3
                    s_add_u32 s{s_t0}, s{s_t0}, s{s_w}
                    s_lshl_b32 s{s_t0}, s{s_t0}, 14
                    v_lshrrev_b32 v{t0}, 3, v{lane}
                    v_lshlrev_b32 v{t1}, 10, v{t0}
                    v_add_u32 v{t1}, s{s_t0}, v{t1}
                    v_and_b32 v{t2}, 7, v{lane}
                    v_lshrrev_b32 v{t3}, 4, v{lane}
                    v_xor_b32 v{t3}, v{t2}, v{t3}
                    v_lshl_add_u32 v{vx}, v{t3}, 4, v{t1}
                    v_xor_b32 v{t1}, 64, v{vx}
                    v_add_u32 v{vx+1}, 7168, v{t1}
                    s_lshl_b32 s{s_t0}, s{s_w}, 3
                    v_add_u32 v{t0}, s{s_t0}, v{t0}
                    v_mul_u32_u24 v{t0}, 3072, v{t0}
                    v_bfe_u32 v{t1}, v{lane}, 4, 1
                    v_lshlrev_b32 v{t1}, 2, v{t1}
                    v_xor_b32 v{t1}, v{t1}, v{t2}
                    v_lshl_add_u32 v{t0}, v{t1}, 4, v{t0}
                    s_lshl_b32 s{s_t0}, s{s_grp}, 7
                    v_add_u32 v{vw}, s{s_t0}, v{t0}
                    s_lshl_b32 s{s_mA}, s{s_w}, 11
                    s_lshl_b32 s{s_mB}, s{s_w}, 10""")
            p.I("s_waitcnt lgkmcnt(0)")
            srd(p, S_X, X_P, 2048*1024); srd(p, S_QKV, WQKV_P, 512*3072)
            st.stamp(p, 'args')
            pop(4)
        def body():
            sync_setup(0)
            pop(4)
            p.I(f"""v_lshrrev_b32 v{t0}, 2, v{lane}
                    s_lshl_b32 s{s_t0}, s{s_i}, 4
                    v_add_u32 v{t0}, s{s_t0}, v{t0}
                    v_mul_u32_u24 v{t0}, 2752, v{t0}
                    v_and_b32 v{t1}, 3, v{lane}
                    s_lshl_b32 s{s_t0}, s{s_g}, 1
                    v_xor_b32 v{t1}, s{s_t0}, v{t1}
                    v_lshl_add_u32 v{t0}, v{t1}, 4, v{t0}
                    s_lshl_b32 s{s_t0}, s{s_grp}, 6
                    v_add_u32 v{vf}, s{s_t0}, v{t0}
                    s_cmp_eq_u32 s{s_g}, 0
                    s_cselect_b64 s[{S_WM}:{S_WM+1}], s[{W1_P}:{W1_P+1}], s[{W3_P}:{W3_P+1}]
                    s_mov_b32 s{S_WM+2}, {512*2752}
                    s_mov_b32 s{S_WM+3}, 0x20000""")
            srd(p, S_PHI, WPHI_P, 32*512)
            xaddr_calc(xa)
            p.I(f"""v_lshrrev_b32 v{t0}, 5, v{lane}
                    v_bfe_u32 v{t1}, v{lane}, 2, 2
                    v_lshl_add_u32 v{t0}, v{t0}, 3, v{t1}
                    v_bfe_u32 v{t1}, v{lane}, 4, 1
                    v_bfe_u32 v{t2}, v{lane}, 1, 1
                    v_lshl_add_u32 v{t2}, v{t1}, 1, v{t2}
                    s_lshl_b32 s{s_t1}, s{s_g}, 2
                    v_add_u32 v{t2}, s{s_t1}, v{t2}
                    v_bfe_u32 v{t3}, v{lane}, 3, 1
                    v_lshlrev_b32 v{t3}, 2, v{t3}
                    v_xor_b32 v{t2}, v{t2}, v{t3}
                    v_lshlrev_b32 v{t2}, 4, v{t2}
                    v_lshl_add_u32 v{t2}, v{t0}, 7, v{t2}
                    v_and_b32 v{t3}, 1, v{lane}
                    v_lshl_add_u32 v{fa}, v{t3}, 3, v{t2}
                    s_lshr_b32 s{s_t1}, s{s_i}, 1
                    s_xor_b32 s{s_t1}, s{s_t1}, s{s_g}
                    s_lshl_b32 s{s_t2}, s{s_t1}, 6
                    v_xor_b32 v{vpre}, s{s_t2}, v{fa}
                    s_lshl_b32 s{s_t3}, s{s_t1}, 5""")
            per_t(wa, fa, 2048)
            p.I(f"""v_lshlrev_b32 v{t0}, 6, v{t0}
                    v_lshl_add_u32 v{t0}, v{t1}, 12, v{t0}
                    v_bfe_u32 v{t2}, v{lane}, 1, 1
                    s_lshl_b32 s{s_t1}, s{s_g}, 1
                    v_add_u32 v{t2}, s{s_t1}, v{t2}
                    v_lshlrev_b32 v{t1}, 1, v{t1}
                    v_xor_b32 v{t2}, v{t2}, v{t1}
                    v_lshl_add_u32 v{t0}, v{t2}, 4, v{t0}
                    v_lshl_add_u32 v{t3}, v{t3}, 3, v{t0}
                    v_xor_b32 v{vpre+1}, s{s_t3}, v{t3}""")
            per_t(fa, t3, 1024)
            for r in [sS, sS+1, sQ, sQ+1]: p.I(f"v_mov_b32 v{r}, 0")
            def wphi_read():
                p.I(f"""v_bfe_u32 v{t0}, v{lane}, 4, 1
                        v_lshlrev_b32 v{t0}, 9, v{t0}
                        v_lshrrev_b32 v{t1}, 5, v{lane}
                        v_lshl_add_u32 v{t0}, v{t1}, 7, v{t0}
                        v_and_b32 v{t1}, 15, v{lane}
                        v_lshl_add_u32 v{t0}, v{t1}, 3, v{t0}
                        s_lshl_b32 s{s_t0}, s{s_w}, 10
                        s_add_u32 s{s_t0}, s{s_t0}, {4*SL+16384}
                        v_add_u32 v{t0}, s{s_t0}, v{t0}""")
                p.wait(vm=['wphi'])
                p.I(f"ds_read_b64_tr_b16 {vr(WP,2)}, v{t0}\n ds_read_b64_tr_b16 {vr(WP+2,2)}, v{t0} offset:256")
            p.I(f"""s_lshl_b32 s{s_t0}, s{s_grp}, 1
                    s_add_u32 s{s_t0}, s{s_t0}, s{s_g}
                    s_lshl_b32 s{s_t0}, s{s_t0}, 10
                    s_add_u32 m0, s{s_mB}, {4*SL+16384}""")
            p.I(f"buffer_load_dwordx4 v{l16}, s[{S_PHI}:{S_PHI+3}], s{s_t0} offen lds", tag='wphi')
            win = {xa: 0, wa: 0, fa: 0}
            def off(reg, target):
                if not (0 <= target - win[reg] <= 65535 - 1024):
                    nw = target // 65536 * 65536
                    d = nw - win[reg]
                    for t in range(4): p.I(f"v_add_u32 v{reg+t}, {d & 0xffffffff}, v{reg+t}")
                    win[reg] = nw
                return target - win[reg]
            def reads(s, t, S):
                if s < 8:
                    b = p1base(s)
                    return [lambda: p.I(f"ds_read_b128 {vr(X+16*s+4*t,4)}, v{xa+t} offset:{off(xa,b)}"),
                            lambda: p.I(f"ds_read_b64_tr_b16 {vr(S,2)}, v{wa+t} offset:{off(wa,b+16384)}"),
                            lambda: p.I(f"ds_read_b64_tr_b16 {vr(S+2,2)}, v{wa+t} offset:{off(wa,b+16384+512)}"),
                            lambda: p.I(f"ds_read_b64_tr_b16 {vr(S+4,2)}, v{wa+t} offset:{off(wa,b+24576)}"),
                            lambda: p.I(f"ds_read_b64_tr_b16 {vr(S+6,2)}, v{wa+t} offset:{off(wa,b+24576+512)}")]
                b = p2base(s - 8)
                return [lambda: p.I(f"ds_read_b64_tr_b16 {vr(S,2)}, v{wa+t} offset:{off(wa,b)}"),
                        lambda: p.I(f"ds_read_b64_tr_b16 {vr(S+2,2)}, v{wa+t} offset:{off(wa,b+512)}"),
                        lambda: p.I(f"ds_read_b64_tr_b16 {vr(S+4,2)}, v{fa+t} offset:{off(fa,b+8192)}"),
                        lambda: p.I(f"ds_read_b64_tr_b16 {vr(S+6,2)}, v{fa+t} offset:{off(fa,b+8192+256)}")]
            def mf(s, t, S):
                a0, a1 = (AK, AV) if s < 8 else (AQ, AF)
                xr = X + 16 * (s % 8) + 4 * t
                first = (s % 8 == 0 and t == 0)
                return [lambda: p.I(f"{MF} {vr(a0,16)}, {vr(S,4)}, {vr(xr,4)}, {0 if first else vr(a0,16)}"),
                        lambda: p.I(f"{MF} {vr(a1,16)}, {vr(S+4,4)}, {vr(xr,4)}, {0 if first else vr(a1,16)}")]
            def ifg0(fn):
                p.I(f"s_cmp_lg_u32 s{s_g}, 0"); p.cond(isg0, "s_cbranch_scc1", fn)
            def barrier(j, pre=None, lg=False):
                if pre: pre()
                w = lambda: p.wait(vm=[('d', j)], lg_all=lg)
                if j >= 10:
                    p.I(f"s_cmp_lg_u32 s{s_g}, 0"); p.rare_else(lambda r, it: r['g'] == 1, "s_cbranch_scc1", w, w)
                else: w()
                p.I("s_barrier")
                passed[0] = j
                if str(j) in os.environ.get('AFINE', '').split(','): st.stamp(p, f'b{j}')
            AEX = SL
            loadsC = [(AQ, s_csg, 0), (AQ + 4, s_csg, 1024)]
            loadsC2 = [(AV + 8, s_csg, 8192), (AV + 12, s_csg, 9216)]
            RED = AEX + 2048
            loadsH1 = [(AK + 8*r + 4*k, s_poff, 32768*r + 1024*k) for r in range(2) for k in range(2)]
            loadsH2 = [(AK + 4*k, s_koff, 1024*k) for k in range(2)]
            def h1_get():
                p.I(f"""s_lshl_b32 s{s_poff}, s{s_grp}, 3
                        s_add_u32 s{s_poff}, s{s_poff}, s{s_w}
                        s_lshl_b32 s{s_poff}, s{s_poff}, 5
                        s_add_u32 s{s_poff}, s{s_poff}, s{s_rb}
                        s_lshl_b32 s{s_poff}, s{s_poff}, 11
                        s_add_u32 s{s_poff}, s{s_poff}, {PART_OFF}""")
                fetch(loadsH1)
            def h1_digest():
                validate(loadsH1)
                p.I(f"""v_add_f32 v{AK}, v{AK}, v{AK+8}
                        v_add_f32 v{AK+1}, v{AK+2}, v{AK+10}
                        v_add_f32 v{AK+2}, v{AK+4}, v{AK+12}
                        v_add_f32 v{AK+3}, v{AK+6}, v{AK+14}
                        s_lshl_b32 s{s_t0}, s{s_w}, 10
                        s_add_u32 s{s_t0}, s{s_t0}, {RED}
                        v_add_u32 v{t3}, s{s_t0}, v{l16}""")
                p.I(f"ds_write_b128 v{t3}, {vr(AK,4)}")
            def h1_reduce():
                p.I(f"v_add_u32 v{t3}, {RED}, v{l16}")
                for k in range(4): p.I(f"ds_read_b128 {vr(AK+4*k,4)}, v{t3} offset:{1024*k}")
                for k in range(1, 4):
                    for e in (0, 2): p.I(pk("v_pk_add_f32", AK+e, AK+e, AK+4*k+e))
                for k in range(1, 4): p.I(f"ds_read_b128 {vr(AK+4*k,4)}, v{t3} offset:{1024*(k+3)}")
                p.I(f"ds_read_b128 {vr(t0,4)}, v{t3} offset:7168")
                for k in range(1, 4):
                    for e in (0, 2): p.I(pk("v_pk_add_f32", AK+e, AK+e, AK+4*k+e))
                for e in (0, 2): p.I(pk("v_pk_add_f32", AK+e, AK+e, t0+e))
                p.I(f"""v_cvt_pk_bf16_f32 v{AK}, v{AK}, v{AK+1}
                        v_cvt_pk_bf16_f32 v{AK+2}, v{AK+2}, v{AK+3}
                        v_mov_b32 v{AK+1}, s{s_non}
                        v_mov_b32 v{AK+3}, s{s_non}
                        s_lshl_b32 s{s_t0}, s{s_grp}, 4
                        s_add_u32 s{s_t0}, s{s_t0}, s{s_rb}
                        s_lshl_b32 s{s_t0}, s{s_t0}, 10
                        s_add_u32 s{s_t0}, s{s_t0}, {KVZ_OFF}""")
                p.I(f"buffer_store_dwordx4 {vr(AK,4)}, v{l16}, s[{S_WS}:{S_WS+3}], s{s_t0} offen sc1")
            loadsS = st_loads(AQ)
            def c_digest(loads, val=True):
                if val: validate(loads)
                corr_prep(loads[0][0], loads[1][0], t2)
                p.I(f"""v_lshlrev_b32 v{t3}, 2, v{lane}
                        s_lshl_b32 s{s_t0}, s{s_i}, 8
                        s_add_u32 s{s_t0}, s{s_t0}, {AEX}
                        v_add_u32 v{t3}, s{s_t0}, v{t3}""")
                p.I(f"ds_write_b32 v{t3}, v{t2}")
            def s_digest():
                stats_final(AQ, M, rstd, M + 1)
                st_addr(t3, AEX + 1024)
                p.I(f"ds_write_b64 v{t3}, {vr(M,2)}")
            def c_read():
                p.I(f"""v_lshlrev_b32 v{t4}, 2, v{lane}
                        s_lshl_b32 s{s_t0}, s{s_g}, 9
                        s_add_u32 s{s_t0}, s{s_t0}, {AEX}
                        v_add_u32 v{t4}, s{s_t0}, v{t4}""")
                p.I(f"ds_read_b32 v{t2}, v{t4}\n ds_read_b32 v{t3}, v{t4} offset:256")
            def k_epilogue():
                E = SET[1]
                c_read()
                st_addr(t4, AEX + 1024)
                p.I(f"ds_read_b64 {vr(M,2)}, v{t4}")
                for r in (M+2, M+3, C+1, C+2, C+3): p.I(f"v_mov_b32 v{r}, 0")
                p.I(f"v_mov_b32 v{sd}, v{M+1}\n v_rcp_f32 v{rstd}, v{M+1}\n v_mov_b32 v{M+1}, 0")
                corr_mf(AK, t2, C, M)
                corr_mf(AV, t3, C, M)
                p.I(f"""v_and_b32 v{t0}, 31, v{lane}
                        s_lshl_b32 s{s_t0}, s{s_i}, 5
                        v_add_u32 v{t0}, s{s_t0}, v{t0}
                        v_lshrrev_b32 v{t1}, 5, v{lane}
                        v_mul_u32_u24 v{t2}, 40, v{t0}
                        v_lshl_add_u32 v{t2}, v{t1}, 3, v{t2}
                        s_mul_i32 s{s_t0}, s{s_g}, 10240
                        s_add_u32 s{s_t0}, s{s_t0}, {TV}
                        v_add_u32 v{sS}, s{s_t0}, v{t2}
                        v_bfe_u32 v{t2}, v{lane}, 1, 3
                        v_xor_b32 v{t2}, v{t2}, v{t1}
                        v_lshlrev_b32 v{t2}, 3, v{t2}
                        v_lshl_add_u32 v{t2}, v{t0}, 6, v{t2}
                        s_lshl_b32 s{s_t0}, s{s_g}, 14
                        s_add_u32 s{s_t0}, s{s_t0}, {TP}
                        v_add_u32 v{sS+1}, s{s_t0}, v{t2}
                        v_xor_b32 v{sQ+1}, 16, v{sS+1}
                        v_mul_f32 v{sQ}, {LOG2E}, v{rstd}
                        v_mov_b32 v{cs}, 0x3f803f80
                        v_mov_b32 v{cs+1}, 0x3f803f80""")
                KB = E
                for i in range(8): p.I(f"v_cvt_pk_bf16_f32 v{KB+i}, v{AK+2*i}, v{AK+2*i+1}")
                p.I(f"{MF} {vr(AK,16)}, {vr(WP,4)}, {vr(KB,4)}, 0")
                for i in range(0, 16, 2): p.I(pk("v_pk_mul_f32", AV+i, AV+i, rstd, bc=(1,)))
                for i in range(8): p.I(f"v_cvt_pk_bf16_f32 v{AV+i}, v{AV+2*i}, v{AV+2*i+1}")
                for h in range(2):
                    p.I(f"ds_write_b64 v{sS}, {vr(AV+4*h,2)} offset:{5120*h}")
                    p.I(f"ds_write_b64 v{sS}, {vr(AV+4*h+2,2)} offset:{5120*h+16}")
                p.I("s_mov_b64 exec, 0xffffffff")
                for h in range(2): p.I(f"ds_write_b64 v{sS}, {vr(cs,2)} offset:{5120*h+32}")
                p.I("s_mov_b64 exec, -1")
                p.I(f"{MF} {vr(AV,16)}, {vr(WP,4)}, {vr(KB+4,4)}, 0")
                for h, (P, Mi) in enumerate(((AK, AK + 8), (AV + 8, AV))):
                    softmax_pm(p, P, Mi, sQ, t0)
                    p.I(f"v_xor_b32 v{t0}, 32, v{sS+1}\n v_xor_b32 v{t1}, 32, v{sQ+1}")
                    p.I(f"ds_write_b64 v{sS+1}, {vr(P,2)} offset:{8192*h}")
                    p.I(f"ds_write_b64 v{sQ+1}, {vr(P+2,2)} offset:{8192*h}")
                    p.I(f"ds_write_b64 v{t0}, {vr(Mi,2)} offset:{8192*h}")
                    p.I(f"ds_write_b64 v{t1}, {vr(Mi+2,2)} offset:{8192*h}")
            def kv_addr():
                p.I(f"""v_lshrrev_b32 v{t0}, 5, v{lane}
                        v_bfe_u32 v{t1}, v{lane}, 2, 2
                        v_lshl_add_u32 v{t2}, v{t0}, 2, v{t1}
                        v_bfe_u32 v{t3}, v{lane}, 3, 1
                        v_lshl_add_u32 v{t0}, v{t0}, 1, v{t3}
                        v_and_b32 v{t1}, 3, v{lane}
                        v_bfe_u32 v{t3}, v{lane}, 4, 1
                        v_lshl_add_u32 v{sS}, v{t3}, 2, v{t1}
                        v_xor_b32 v{t0}, v{t0}, v{sS}
                        v_lshlrev_b32 v{t0}, 3, v{t0}
                        v_lshl_add_u32 v{t0}, v{t2}, 6, v{t0}
                        s_lshl_b32 s{s_t0}, s{s_i}, 13
                        s_add_u32 s{s_t0}, s{s_t0}, {TP}
                        v_add_u32 v{sS}, s{s_t0}, v{t0}
                        v_xor_b32 v{sS+1}, 32, v{sS}
                        v_mul_u32_u24 v{t2}, 40, v{t2}
                        v_lshlrev_b32 v{t1}, 3, v{t1}
                        v_cmp_eq_u32 vcc, 0, v{t3}
                        v_cndmask_b32 v{t1}, 32, v{t1}, vcc
                        v_add_u32 v{t2}, v{t2}, v{t1}
                        s_mul_i32 s{s_t0}, s{s_i}, 5120
                        s_add_u32 s{s_t0}, s{s_t0}, {TV}
                        v_add_u32 v{sQ}, s{s_t0}, v{t2}
                        s_lshl_b32 s{s_poff}, s{s_grp}, 4
                        s_add_u32 s{s_poff}, s{s_poff}, s{s_rb}
                        s_lshl_b32 s{s_poff}, s{s_poff}, 2
                        s_add_u32 s{s_poff}, s{s_poff}, s{s_i}
                        s_lshl_b32 s{s_poff}, s{s_poff}, 13
                        s_add_u32 s{s_poff}, s{s_poff}, {PART_OFF}""")
            def kv_phase():
                def rd(ks):
                    B = AV + 8 * (ks & 1)
                    p.I(f"""ds_read_b64_tr_b16 {vr(B,2)}, v{sS} offset:{1024*ks}
                            ds_read_b64_tr_b16 {vr(B+2,2)}, v{sS+1} offset:{1024*ks+512}
                            ds_read_b64_tr_b16 {vr(B+4,2)}, v{sQ} offset:{640*ks}
                            ds_read_b64_tr_b16 {vr(B+6,2)}, v{sQ} offset:{640*ks+320}""")
                rd(0); rd(1)
                for ks in range(8):
                    B = AV + 8 * (ks & 1)
                    p.I(f"{MF} {vr(AK,16)}, {vr(B,4)}, {vr(B+4,4)}, {vr(AK,16) if ks else 0}")
                    if ks + 2 < 8: rd(ks + 2)
                for r in (AV+9, AV+11, AV+13, AV+15): p.I(f"v_mov_b32 v{r}, s{s_non}")
                for q in range(8):
                    Q = AV + 8 + 4 * (q & 1)
                    p.I(f"v_mov_b32 v{Q}, v{AK+2*q}\n v_mov_b32 v{Q+2}, v{AK+2*q+1}")
                    if q == 4: p.I(f"s_add_u32 s{s_poff}, s{s_poff}, 4096")
                    p.I(f"buffer_store_dwordx4 {vr(Q,4)}, v{l16}, s[{S_WS}:{S_WS+3}], s{s_poff} offen offset:{1024*(q&3)} sc1")
            SPL = int(os.environ.get('ASPL', '40'))
            def sets(n):
                if n < 32: return [SET[0], AF, SET[1]][n % 3]
                if n < SPL + 2: return SET[n % 2]
                return [SET[0], SET[1], AV][(n - SPL) % 3]
            issue_at = {n: n - 2 for n in range(64)}
            issue_at.update({n: n - 1 for n in range(32, SPL)})
            issue_at.update({SPL: 'x', SPL + 1: 'x', SPL + 2: SPL})
            rd = lambda n: reads(n >> 2, n & 3, sets(n))
            p.I(f"s_lshl_b32 s{s_csg}, s{s_i}, 11\n s_add_u32 s{s_csg}, s{s_csg}, s{s_cso}")
            p.I(f"s_add_u32 s{s_koff}, s{s_sto}, 2048")
            pop(2)
            barrier(0)
            st.stamp(p, 'bar0')
            nonce_sample(VF)
            def pre_kv():
                p.I(f"s_and_b32 s{s_t0}, s{s_i}, 1\n s_lshl_b32 s{s_t0}, s{s_t0}, 13\n v_add_u32 v{t0}, s{s_t0}, v{vpre}")
                for t in range(4):
                    for h in range(2): p.I(f"ds_read_b64_tr_b16 {vr(AQ+4*t+2*h,2)}, v{t0} offset:{16384 + 2048*t + 512*h}")
                cs_pre(AQ, cs)
            def pre_st():
                for t in range(2, 4): p.I(f"ds_read_b128 {vr(X+4*t,4)}, v{xa+t}")
                for t in range(4): p.I("\n".join(stat_ops(X + 4 * t, sS, sQ)))
                stats_pre(sS, sQ, M)
            for r in rd(0) + rd(1): r()
            pop(2)
            p.I(f"s_cmp_lg_u32 s{s_g}, 0")
            p.ifelse(isg0, "s_cbranch_scc1", pre_kv, pre_st)
            st.stamp(p, 'pre')
            def pre_qf():
                b = p2base(0)
                def var(reg, base, ks, hs):
                    p.I(f"v_add_u32 v{t0}, {base}, v{reg}")
                    for t in range(4):
                        for h in range(2): p.I(f"ds_read_b64_tr_b16 {vr(AK+4*t+2*h,2)}, v{t0} offset:{ks*t + hs*h}")
                p.I(f"s_bitcmp1_b32 s{s_i}, 0")
                p.ifelse(lambda r, it: r['w'] % 2 == 0, "s_cbranch_scc1", lambda: var(vpre, b, 2048, 512), lambda: var(vpre + 1, b + 8192, 1024, 256))
                p.I(f"s_add_u32 s{s_t2}, s{s_i}, 4")
                cs_pre(AK, cs)
                cs_publish(cs, s_t2)
            def cap(fn):
                p.begin(); fn(); return atoms(p.end())
            def ifg(g, fn):
                p.I(f"s_cmp_lg_u32 s{s_g}, {g}"); p.cond(lambda r, it: r['g'] == g, "s_cbranch_scc1", fn)
            uloads = [(AQ, s_qoff, 0), (AQ + 4, s_qoff, 1024), (AQ + 8, s_hoff, 0), (AQ + 12, s_hoff, 1024)]
            def uget():
                p.I(f"s_cmp_eq_u32 s{s_g}, 0\n s_cselect_b32 s{s_qoff}, s{s_csg}, s{s_sto}\n s_cselect_b32 s{s_hoff}, s{s_csg}, s{s_koff}")
                fetch(uloads)
            env = lambda k, d: int(os.environ.get(k, d))
            H1G, H1D, UG = env('H1G', 50), env('H1D', 56), env('UG', 18)
            events = {
                3: [lambda: nonce_take(VF)], 4: [lambda: ifg(0, lambda: cs_publish(cs, s_i))], 5: [lambda: ifg(1, lambda: stats_publish(M))],
                6: [wphi_read], 10: [lambda: mall_touch(AF + 12)], UG: [uget],
                26: [lambda: validate(uloads)], 28: [lambda: ifg(1, s_digest)], 29: [lambda: ifg(0, lambda: c_digest(loadsC, False))],
                H1G: [h1_get], 52: [lambda: ifg(0, lambda: fetch(loadsC2))], H1D: [h1_digest],
                59: [lambda: rarew(4, h1_reduce)], 60: [lambda: ifg(0, lambda: c_digest(loadsC2))],
            }
            bg = []
            def popn(n):
                for _ in range(2):
                    if npop[0] < 13 + n: pop()
            def steps(n0, n1, extra_bg=()):
                bg.extend(extra_bg)
                for n in range(n0, n1):
                    todo = [m for m in range(64) if issue_at[m] == n]
                    for m in todo:
                        if m % 4 == 0 and not (32 < m < SPL):
                            j = m >> 2
                            if j in (8, 15):
                                while bg: p.extend(bg.pop(0))
                            if j == 8: p.wait(vm=[('d', k) for k in range(8, SPL // 4)])
                            barrier(j, None, lg=j in (8, 15))
                    for f in events.get(n, []): bg.extend(cap(f))
                    take = [bg.pop(0) for _ in range(min(len(bg), env('BGN', 8)))]
                    interleave(p, mf(n >> 2, n & 3, sets(n)),
                               mix([f for m in todo for f in rd(m)], [lambda: popn(n)], [lambda a=a: p.extend(a) for a in take]))
            steps(0, 32)
            st.stamp(p, 'p1')
            snap = (dict(win), list(dq), npop[0], passed[0])
            def restore():
                win.clear(); win.update(snap[0]); dq[:] = snap[1]; npop[0] = snap[2]; passed[0] = snap[3]
            def path0():
                k_epilogue()
                steps(32, SPL, cap(kv_addr))
                while bg: p.extend(bg.pop(0))
            def path1():
                restore()
                steps(32, SPL)
                k_epilogue()
            p.I(f"s_cmp_lg_u32 s{s_g}, 0")
            p.ifelse(isg0, "s_cbranch_scc1", path0, path1)
            st.stamp(p, 'kepi')
            barrier(SPL // 4, None, lg=True)
            for f in rd(SPL) + rd(SPL + 1): f()
            p.I(f"s_cmp_lg_u32 s{s_g}, 0")
            p.ifelse(isg0, "s_cbranch_scc1", kv_phase, pre_qf)
            st.stamp(p, 'kv')
            steps(SPL, 64)
            while bg: p.extend(bg.pop(0))
            assert not dq
            st.stamp(p, 'p2')
            p.I(f"""s_lshl_b32 s{s_hoff}, s{s_rb}, 2
                    s_add_u32 s{s_hoff}, s{s_hoff}, s{s_i}
                    s_mul_i32 s{s_hoff}, s{s_hoff}, 118
                    s_lshl_b32 s{s_t0}, s{s_grp}, 1
                    s_add_u32 s{s_t0}, s{s_t0}, s{s_g}
                    s_add_u32 s{s_qoff}, s{s_hoff}, s{s_t0}
                    s_add_u32 s{s_qoff}, s{s_qoff}, s{s_t0}
                    s_add_u32 s{s_qoff}, s{s_qoff}, 86
                    s_lshl_b32 s{s_qoff}, s{s_qoff}, 10
                    s_add_u32 s{s_hoff}, s{s_hoff}, s{s_t0}
                    s_lshl_b32 s{s_hoff}, s{s_hoff}, 10
                    s_lshl_b32 s{s_koff}, s{s_grp}, 3
                    s_add_u32 s{s_koff}, s{s_koff}, s{s_w}
                    s_lshl_b32 s{s_koff}, s{s_koff}, 11
                    s_add_u32 s{s_koff}, s{s_koff}, {KVZ_OFF}""")
            p.wait(lg_all=True)
            p.I("s_barrier")
            c_read()
            corr_mf(AQ, t2, C, M)
            corr_mf(AF, t3, C, M)
            late = [lambda: bpf_setup(vx, 0)] + [f for s in range(7) for f in bpf(s, vx, 0)]
            QB, D0, D1, KZ = X, X + 16, X + 32, X + 48
            for i in range(8): p.I(f"v_cvt_pk_bf16_f32 v{QB+i}, v{AQ+2*i}, v{AQ+2*i+1}")
            p.I(f"{MF} {vr(D0,16)}, {vr(WP,4)}, {vr(QB,4)}, 0")
            p.I(f"{MF} {vr(D1,16)}, {vr(WP,4)}, {vr(QB+4,4)}, 0")
            f_consts(rstd, sd, c1, irs2)
            f_epilogue(AF, c1, irs2, SET[1], f"s{s_hoff} offen")
            fetch(loadsH2)
            st.stamp(p, 'epi2')
            p.I(f"v_mul_f32 v{sQ}, {LOG2E}, v{rstd}")
            softmax_pm(p, D0, D0 + 8, sQ, t0)
            softmax_pm(p, D1 + 8, D1, sQ, t0)
            st.stamp(p, 'smq')
            validate(loadsH2)
            p.I(f"""v_mov_b32 v{AK+1}, v{AK+2}
                    v_mov_b32 v{AK+2}, v{AK+4}
                    v_mov_b32 v{AK+3}, v{AK+6}
                    s_lshl_b32 s{s_t0}, s{s_w}, 10
                    s_add_u32 s{s_t0}, s{s_t0}, {RED}
                    v_add_u32 v{t3}, s{s_t0}, v{l16}
                    s_lshl_b32 s{s_t0}, s{s_g}, 12
                    s_add_u32 s{s_t0}, s{s_t0}, {RED}
                    v_add_u32 v{t2}, s{s_t0}, v{l16}""")
            p.I(f"ds_write_b128 v{t3}, {vr(AK,4)}")
            p.wait(lg_all=True)
            p.I("s_barrier")
            for k in range(4): p.I(f"ds_read_b128 {vr(KZ+4*k,4)}, v{t2} offset:{1024*k}")
            for h, (P, Mi, O) in enumerate(((D0, D0 + 8, AQ), (D1 + 8, D1, AF))):
                p.I(f"{MF} {vr(O,16)}, {vr(KZ+8*h,4)}, {vr(P,4)}, 0")
                p.I(f"{MF} {vr(O,16)}, {vr(KZ+8*h+4,4)}, {vr(Mi,4)}, {vr(O,16)}")
            for h, O in enumerate((AQ, AF)):
                p.I(f"v_add_f32 v{t0}, 0x358637bd, v{O+8}\n v_rcp_f32 v{t0}, v{t0}")
                for i in range(0, 8, 2): p.I(pk("v_pk_mul_f32", O+i, O+i, t0, bc=(1,)))
                for i in range(4): p.I(f"v_cvt_pk_bf16_f32 v{O+i}, v{O+2*i}, v{O+2*i+1}")
                p.I(f"buffer_store_dwordx4 {vr(O,4)}, v{l16}, s[{S_WS}:{S_WS+3}], s{s_qoff} offen offset:{1024*h} sc1", tag='hst')
            st.stamp(p, 'end')
            for f in late: f()
            finish(0)
        p.begin(); prologue(); pro = p.end()
        p.begin(); body(); bod = p.end()
        A = [w for w in range(256) if (w >> 6) < 2]
        info['A0'] = (A, [0, 1, 2, 3], list(st.names)); info['A1'] = (A, [5, 6, 7], list(st.names)); info['Ared'] = (A, [4], list(st.names))
        return pro, bod, V.next

    def phase2():
        V = Regs('v', BASE, 256)
        S_A, S_B, S_OUT = S_QKV, S_W2, S_WM
        s_ao, s_bo2, s_as, s_bs, s_k0, s_fo = s_kc, s_woff, s_mslot, s_mA, s_mB, s_rd
        NST = 12
        p.label(f"{name}_ph2")
        p.I(f"s_cmp_lt_u32 s{s_w}, 4")
        nsteps = lambda s: 6 if s == 8 else 8
        def aloader():
            VF = V.alloc(2, 2); vfa = V.alloc()
            p.I(f"""v_and_b32 v{vfa}, 7, v{lane}
                    v_lshlrev_b32 v{vfa}, 7, v{vfa}
                    s_lshr_b32 s{s_fo}, s{s_rb2}, 1
                    s_lshl_b32 s{s_fo}, s{s_fo}, 10
                    s_add_u32 s{s_fo}, s{s_fo}, {FL_OFF + 128*128}""")
            flag_sample(p, VF, vfa, S_WS, s_fo)
            p.I(f"""s_lshl_b32 s{s_as}, s{s_rb2}, 1
                    s_and_b32 s{s_t0}, s{s_w}, 1
                    s_add_u32 s{s_as}, s{s_as}, s{s_t0}
                    s_mul_i32 s{s_as}, s{s_as}, {HO_RU}
                    s_lshl_b32 s{s_bs}, s{s_t0}, 13""")
            flag_wait(p, VF, vfa, S_WS, s_fo, s_non, s_t1)
            st.n = NST; st.stamp(p, 'flF')
            p.I(f"s_sub_u32 s{s_fo}, s{s_fo}, {128*128}")
            def issue(s):
                if s == 9:
                    flag_wait(p, VF, vfa, S_WS, s_fo, s_non, s_t1)
                    st.stamp(p, 'flA')
                kap0(s, s_k0)
                p.I(f"""s_lshl_b32 s{s_ao}, s{s_k0}, 10
                        s_add_u32 s{s_ao}, s{s_ao}, s{s_as}
                        s_add_u32 m0, s{s_bs}, {ABASE + (s % 3) * 16384}""")
                for e in range(nsteps(s)):
                    if e == 4: p.I(f"s_add_u32 s{s_ao}, s{s_ao}, 4096\n s_add_u32 m0, m0, 4096")
                    p.I(f"buffer_load_dwordx4 v{l16}, s[{S_WS}:{S_WS+3}], s{s_ao} offen offset:{1024*(e&3)} {'sc1' if 'asc1' in OPT else ''} lds", tag=('a', s))
                if s == 8: flag_sample(p, VF, vfa, S_WS, s_fo)
            for s in range(3): issue(s)
            for s in range(15):
                p.wait(vm=[('a', s)])
                p.I("s_barrier")
                if s >= 1 and s + 2 < 15: issue(s + 2)
            st.stamp(p, 'fin')
        def bloader():
            vB = V.alloc(4)
            vb_calc(vB, 4)
            p.wait(vm_all=True)
            p.I(f"s_and_b32 s{s_t0}, s{s_w}, 1\n s_lshl_b32 s{s_as}, s{s_t0}, 16\n s_lshl_b32 s{s_bs}, s{s_t0}, 13")
            p.I(f"s_mul_i32 s{s_fo}, s{s_bs0}, 16384")
            def issue(s):
                if s == 11: srd(p, S_B, WO_P, 512*1024)
                if s < 11:
                    kap0(s, s_k0); p.I(f"s_lshl_b32 s{s_bo2}, s{s_k0}, 14")
                else: p.I(f"s_mov_b32 s{s_bo2}, {(s - 11) * 8 * 16384}")
                p.I(f"""s_add_u32 s{s_bo2}, s{s_bo2}, s{s_as}
                        s_add_u32 m0, s{s_fo}, s{s_bs}
                        s_add_u32 m0, m0, {BBASE}
                        s_add_u32 s{s_fo}, s{s_fo}, 16384
                        s_cmp_ge_u32 s{s_fo}, {7*16384}
                        s_cselect_b32 s{s_fo}, 0, s{s_fo}""")
                for m in range(8):
                    if m == 4: p.I(f"s_add_u32 s{s_bo2}, s{s_bo2}, 32768\n s_add_u32 m0, m0, 4096")
                    p.I(f"buffer_load_dwordx4 v{vB+(m&3)}, s[{S_B}:{S_B+3}], s{s_bo2} offen offset:{1024*(m&3)} lds", tag=('b', s))
            for s in range(15):
                p.wait(vm=[('b', s)])
                p.I("s_barrier")
                if s >= 1 and s + 6 < 15: issue(s + 6)
            st.n = NST; st.stamp(p, 'fin')
        def consumer():
            cA = V.alloc(); cB = V.alloc(); aA = V.alloc(); aB = V.alloc(); vO = V.alloc(); vXr = V.alloc()
            ACC = V.alloc(16, 4); FA = V.alloc(32, 4); FB = V.alloc(32, 4); XR = V.alloc(8, 2)
            srd(p, S_X, X_P, 2048*1024); srd(p, S_OUT, OUT_P, 2048*1024)
            p.I(f"""s_lshl_b32 s{s_t0}, s{s_rb2}, 1
                    s_and_b32 s{s_t1}, s{s_w}, 1
                    s_add_u32 s{s_t0}, s{s_t0}, s{s_t1}
                    s_lshl_b32 s{s_t0}, s{s_t0}, 15
                    s_lshl_b32 s{s_t2}, s{s_ct2}, 7
                    s_add_u32 s{s_t0}, s{s_t0}, s{s_t2}
                    s_lshr_b32 s{s_t2}, s{s_w}, 1
                    s_lshl_b32 s{s_t3}, s{s_t2}, 6
                    s_add_u32 s{s_t0}, s{s_t0}, s{s_t3}
                    v_and_b32 v{t0}, 31, v{lane}
                    v_lshlrev_b32 v{t0}, 10, v{t0}
                    v_add_u32 v{t0}, s{s_t0}, v{t0}
                    v_lshrrev_b32 v{t1}, 5, v{lane}
                    v_lshl_add_u32 v{vO}, v{t1}, 4, v{t0}
                    v_lshl_add_u32 v{vXr}, v{t1}, 3, v{t0}""")
            for q in range(4):
                p.I(f"buffer_load_dwordx2 {vr(XR+2*q,2)}, v{vXr}, s[{S_X}:{S_X+3}], 0 offen offset:{16*q}")
            p.I(f"""s_lshl_b32 s{s_t1}, s{s_t1}, 13
                    v_add_u32 v{cA}, s{s_t1}, v{l16}
                    v_lshrrev_b32 v{t0}, 5, v{lane}
                    v_bfe_u32 v{t1}, v{lane}, 2, 2
                    v_lshl_add_u32 v{t0}, v{t0}, 2, v{t1}
                    v_lshlrev_b32 v{cB}, 7, v{t0}
                    v_bfe_u32 v{t0}, v{lane}, 4, 1
                    v_bfe_u32 v{t1}, v{lane}, 1, 1
                    v_lshl_add_u32 v{t0}, v{t0}, 1, v{t1}
                    s_lshl_b32 s{s_t2}, s{s_t2}, 2
                    v_add_u32 v{t0}, s{s_t2}, v{t0}
                    v_bfe_u32 v{t1}, v{lane}, 3, 1
                    v_lshlrev_b32 v{t1}, 2, v{t1}
                    v_xor_b32 v{t0}, v{t0}, v{t1}
                    v_lshl_add_u32 v{cB}, v{t0}, 4, v{cB}
                    v_and_b32 v{t0}, 1, v{lane}
                    v_lshl_add_u32 v{cB}, v{t0}, 3, v{cB}
                    v_add_u32 v{cB}, {BBASE}, v{cB}
                    s_mov_b32 s{s_as}, 0
                    s_mul_i32 s{s_bs}, s{s_bs0}, 16384
                    s_mov_b32 s{s_it}, 0""")
            for i in range(0, 16, 2): p.I(f"v_mov_b64 {vr(ACC+i,2)}, 0")
            for i in range(16, 32, 2): p.I(f"v_mov_b64 {vr(FA+i,2)}, 0\n v_mov_b64 {vr(FB+i,2)}, 0")
            p.wait(vm_all=True)
            def rd(e):
                p.I(f"ds_read_b128 {vr(FA+4*e,4)}, v{aA} offset:{1024*e}")
                p.I(f"ds_read_b64_tr_b16 {vr(FB+4*e,2)}, v{aB} offset:{e*2048}")
                p.I(f"ds_read_b64_tr_b16 {vr(FB+4*e+2,2)}, v{aB} offset:{e*2048+1024}")
            mf = lambda e: p.I(f"{MF} {vr(ACC,16)}, {vr(FB+4*e,4)}, {vr(FA+4*e,4)}, {vr(ACC,16)}")
            def body():
                p.I(f"v_add_u32 v{aA}, s{s_as}, v{cA}\n v_add_u32 v{aB}, s{s_bs}, v{cB}")
                p.wait(lg_all=True)
                p.I("s_barrier")
                for e in range(4): rd(e)
                mf(4); mf(5)
                p.I(f"s_cmp_eq_u32 s{s_it}, 9")
                p.cond(lambda r, it: it != 9, "s_cbranch_scc1", lambda: (mf(6), mf(7)))
                for e in range(4):
                    rd(4 + e)
                    mf(e)
                p.I(f"""s_add_u32 s{s_as}, s{s_as}, 16384
                        s_cmp_ge_u32 s{s_as}, {3*16384}
                        s_cselect_b32 s{s_as}, 0, s{s_as}
                        s_add_u32 s{s_bs}, s{s_bs}, 16384
                        s_cmp_ge_u32 s{s_bs}, {7*16384}
                        s_cselect_b32 s{s_bs}, 0, s{s_bs}
                        s_add_u32 s{s_it}, s{s_it}, 1""")
            p.loop(15, body, f"{name}_cl", f"s_cmp_lt_u32 s{s_it}, 15\n s_cbranch_scc1 {name}_cl")
            for e in range(4, 8): mf(e)
            for i in range(8):
                p.I(f"v_lshlrev_b32 v{FA+2*i}, 16, v{XR+i}")
                p.I(f"v_and_b32 v{FA+2*i+1}, 0xffff0000, v{XR+i}")
            for i in range(0, 16, 2): p.I(pk("v_pk_add_f32", FA+i, FA+i, ACC+i))
            for i in range(8): p.I(f"v_cvt_pk_bf16_f32 v{FB+i}, v{FA+2*i}, v{FA+2*i+1}")
            for h in range(2):
                p.I(f"v_permlane32_swap_b32 v{FB+4*h}, v{FB+4*h+2}")
                p.I(f"v_permlane32_swap_b32 v{FB+4*h+1}, v{FB+4*h+3}")
                p.I(f"buffer_store_dwordx4 {vr(FB+4*h,4)}, v{vO}, s[{S_OUT}:{S_OUT+3}], 0 offen offset:{32*h}")
            st.n = NST; st.stamp(p, 'fin')
        def loaders():
            p.I(f"s_cmp_lt_u32 s{s_w}, 6")
            p.ifelse(lambda r, it: r['w'] < 6, "s_cbranch_scc0", aloader, bloader)
        p.ifelse(lambda r, it: r['w'] < 4, "s_cbranch_scc0", consumer, loaders)
        st.flush(p, S_WS, t0, s_w)
    pf0, bf0, u0 = ftype(0); pf1, bf1, u1 = ftype(1); pa, ba, ua = atype()
    for pred, items in ((isF(0), pf0), (isF(1), pf1), (isA, pa), (isA, ba), (isF(0), bf0), (isF(1), bf1)):
        p.add(Cond(pred, items))
    st.names = []
    phase2()
    p.label(f"{name}_end")
    p.I("s_endpgm")
    roles = [dict(type=t, g=w >> 2, w=w, **x) for t in 'AF' for w in range(8) for x in ({}, {'slow': True})] + [dict(type='A', g=0, w=0, wg0=True)]
    lines = finalize(p.cur, roles) + [f'{name}_last:', '  s_endpgm']
    print("kf vgprs", u0, u1, ua)
    def pad(n, extra): return n + ['-'] * (12 - len(n)) + extra
    Aw, Fw = info['A0'][0], info['F0'][0]
    info = {'Acons': (Aw, [0,1,2,3], pad(info['A0'][2], ['fin'])), 'Aald': (Aw, [4,5], pad(info['A0'][2], ['flF', 'flA', 'fin'])), 'Abld': (Aw, [6,7], pad(info['A0'][2], ['fin'])),
            'Fcons': (Fw, [0,1,2,3], pad(info['F0'][2], ['fin'])), 'Fald': (Fw, [4,5], pad(info['F1'][2], ['flF', 'flA', 'fin'])), 'Fbld': (Fw, [6,7], pad(info['F1'][2], ['fin']))}
    return lines, max(u0, u1, ua), info
```

```python
from common import *
import os

MF = "v_mfma_f32_32x32x16_bf16"

def interleave(p, mains, fills):
    n, k = len(mains), 0
    for i, m in enumerate(mains):
        m()
        upto = (len(fills) * (i + 1) + n - 1) // n
        while k < upto:
            fills[k](); k += 1

def mix(*lists):
    items = []
    for li, l in enumerate(lists):
        for j, x in enumerate(l): items.append(((j + 0.5) / len(l), li, j, x))
    items.sort(key=lambda t: t[:3])
    return [t[3] for t in items]

def gen_kf(name, stamps=False):
    OPT = os.environ.get('K1OPT', '').split(',')
    HSC = '' if 'nohsc' in OPT else 'sc1'
    p = Prog('A')
    st = Stamper(stamps, 100, 0, 8)
    S_WS, S_X, S_W1, S_W3, S_WM, S_QKV, S_PHI, S_DBG = 28, 32, 36, 40, 44, 48, 52, 56
    (s_w, s_i, s_g, s_rb, s_grp, s_rot, s_t0, s_t1, s_t2, s_t3, s_ci, s_kc, s_xoff, s_woff, s_mslot, s_it,
     s_mA, s_mB, s_rd, s_hoff, s_ds, s_qoff, s_poff, s_fl, s_koff, s_voff, s_rslot, s_col, s_sto, s_flr) = range(60, 90)
    s_cso = 93; s_csg = 94; s_pf = 95; s_pair = 96
    s_ct2, s_rb2, s_rot2, s_bs0, s_bo = 26, 27, 3, 98, s_xoff
    S_W2 = S_W1; ABASE, BBASE = 0, 49152
    s_non = 90
    s_wit = 92
    lane, l16, t0, t1, t2, t3, t4, t5, vstamp, v9 = range(10)
    BASE = 10
    drop = tuple(x[5:] for x in OPT if x.startswith('drop_'))
    isA = lambda r, it: r['type'] == 'A'
    isF = lambda g: (lambda r, it: r['type'] == 'F' and r['g'] == g)
    isw0 = lambda r, it: r['w'] == 0
    isg0 = lambda r, it: r['g'] == 0
    p.I("s_cmp_ge_u32 s2, 256")
    p.I(f"s_cbranch_scc1 {name}_end")
    st.stamp(p, 'start')
    load_args(p)
    p.I(f"""v_lshrrev_b32 v{t0}, 6, v0
            v_and_b32 v{lane}, 63, v0
            s_getreg_b32 s{s_t2}, hwreg(HW_REG_XCC_ID)
            v_readfirstlane_b32 s{s_w}, v{t0}
            s_and_b32 s{s_t2}, s{s_t2}, 7
            s_lshr_b32 s{s_ci}, s2, 6
            v_mov_b32 v{t2}, 0
            v_lshlrev_b32 v{l16}, 4, v{lane}
            s_cmp_lg_u32 s{s_w}, 0""")
    def ticket():
        lab = p.newlabel('Ltk')
        p.I("s_waitcnt lgkmcnt(0)")
        srd(p, S_DBG, DBG_P, 256)
        p.I("s_cmp_eq_u32 s2, 0")
        def pub():
            p.I(f"s_memrealtime s[{s_non}:{s_non+1}]\n s_waitcnt lgkmcnt(0)")
            p.I(f"v_mov_b32 v{t0}, s{s_non}\n v_mov_b32 v{t1}, s{s_non+1}\n s_mov_b64 exec, 1")
            p.I(f"buffer_store_dwordx2 {vr(t0,2)}, v{t2}, s[{S_DBG}:{S_DBG+3}], 0 offen offset:128 sc1")
            p.I("s_mov_b64 exec, -1")
        p.rare(lambda r, it: r.get('wg0', False), "s_cbranch_scc1", pub)
        p.I(f"s_mov_b64 exec, 1\n s_sub_u32 s{s_t2}, s{s_t2}, 1\n s_mov_b32 s{s_t3}, 0")
        p.label(lab)
        p.I(f"""s_add_u32 s{s_t2}, s{s_t2}, 1
                s_and_b32 s{s_t2}, s{s_t2}, 7
                s_lshl_b32 s{s_t0}, s{s_t2}, 2
                s_add_u32 s{s_t0}, s{s_t0}, s{s_ci}
                s_lshl_b32 s{s_t0}, s{s_t0}, 2
                v_mov_b32 v{t3}, 1""")
        p.I(f"buffer_atomic_add v{t3}, v{t2}, s[{S_DBG}:{S_DBG+3}], s{s_t0} offen sc0 sc1")
        p.I(f"""v_readfirstlane_b32 s{s_t1}, v{t3}
                s_add_u32 s{s_t3}, s{s_t3}, 1
                s_cmp_ge_u32 s{s_t3}, 8
                s_cselect_b32 s{s_t0}, 0, s{s_t1}
                s_cmp_ge_u32 s{s_t0}, 8
                s_cbranch_scc1 {lab}
                s_and_b32 s{s_t1}, s{s_t1}, 7
                s_lshl_b32 s{s_t1}, s{s_t1}, 3
                s_add_u32 s{s_t1}, s{s_t1}, s{s_t2}
                v_mov_b32 v{t3}, s{s_t1}""")
        p.I(f"ds_write_b32 v{t2}, v{t3}")
        p.I("s_mov_b64 exec, -1")
        p.wait(lg_all=True)
    if 'ticket' in OPT:
        p.cond(lambda r, it: r['w'] == 0, "s_cbranch_scc1", ticket)
        p.I("s_barrier")
        p.I(f"ds_read_b32 v{t3}, v{t2}")
        p.I(f"""v_readfirstlane_b32 s{s_t1}, v{t3}
                s_lshl_b32 s2, s{s_ci}, 6
                s_add_u32 s2, s2, s{s_t1}""")
        p.I("s_barrier")
    else:
        p.I(f"s_lshl_b32 s{s_t0}, s{s_w}, 8\n s_add_u32 s{s_t0}, s{s_t0}, s2\n s_cmp_eq_u32 s{s_t0}, 0")
        def pub0():
            p.I("s_waitcnt lgkmcnt(0)")
            srd(p, S_DBG, DBG_P, 256)
            p.I(f"s_memrealtime s[{s_non}:{s_non+1}]\n s_waitcnt lgkmcnt(0)")
            p.I(f"v_mov_b32 v{t0}, s{s_non}\n v_mov_b32 v{t1}, s{s_non+1}\n s_mov_b64 exec, 1")
            p.I(f"buffer_store_dwordx2 {vr(t0,2)}, v{t2}, s[{S_DBG}:{S_DBG+3}], 0 offen offset:128 sc1")
            p.I("s_mov_b64 exec, -1")
        p.rare(lambda r, it: r.get('wg0', False), "s_cbranch_scc1", pub0)
    p.I(f"""s_nop 0
            s_and_b32 s{s_t0}, s2, 7
            s_lshr_b32 s{s_t1}, s2, 3
            s_and_b32 s{s_t2}, s{s_t1}, 7
            s_and_b32 s{s_rb}, s{s_t0}, 1
            s_lshl_b32 s{s_rb}, s{s_rb}, 3
            s_add_u32 s{s_rb}, s{s_rb}, s{s_t2}
            s_and_b32 s{s_grp}, s{s_t0}, 6
            s_and_b32 s{s_t3}, s{s_ci}, 1
            s_add_u32 s{s_grp}, s{s_grp}, s{s_t3}
            s_lshr_b32 s{s_t0}, s{s_t0}, 1
            s_lshl_b32 s{s_t3}, s{s_t3}, 2
            s_add_u32 s{s_rot}, s{s_t0}, s{s_t3}
            s_and_b32 s{s_t3}, s{s_ci}, 2
            s_add_u32 s{s_rot}, s{s_rot}, s{s_t3}
            s_add_u32 s{s_rot}, s{s_rot}, s{s_t2}
            s_and_b32 s{s_rot}, s{s_rot}, 7
            s_and_b32 s{s_i}, s{s_w}, 3
            s_lshr_b32 s{s_g}, s{s_w}, 2
            s_cmp_lg_u32 s{s_w}, 7""")
    def cpf():
        here = p.newlabel('Lpc')
        p.I(f"s_getpc_b64 s[{s_pair}:{s_pair+1}]")
        p.label(here)
        p.I(f"""s_lshl_b32 s{s_t0}, s{s_t1}, {os.environ.get('CPFSH', '11')}
                v_lshlrev_b32 v{t5}, 7, v{lane}
                v_add_u32 v{t5}, s{s_t0}, v{t5}
                v_min_u32 v{t5}, {name}_last-{here}, v{t5}
                s_mov_b64 exec, 0xffff""")
        p.I(f"global_load_dword v{v9}, v{t5}, s[{s_pair}:{s_pair+1}]")
        p.I("s_mov_b64 exec, -1")
    if 'nocpf' not in OPT: p.cond(lambda r, it: r['w'] == 7, "s_cbranch_scc1", cpf)
    p.I(f"""s_cmp_lt_u32 s{s_ci}, 2
            s_cbranch_scc1 {name}_proA
            s_cmp_lg_u32 s{s_g}, 0
            s_cbranch_scc1 {name}_proF1""")
    base_names = list(st.names)
    info = {}

    def xaddr_calc(xa):
        p.I(f"""v_and_b32 v{t0}, 31, v{lane}
                v_lshlrev_b32 v{t1}, 7, v{t0}
                s_lshl_b32 s{s_t0}, s{s_i}, 12
                v_add_u32 v{t1}, s{s_t0}, v{t1}
                v_bfe_u32 v{t0}, v{lane}, 1, 3
                v_lshrrev_b32 v{t2}, 5, v{lane}
                v_xor_b32 v{t0}, v{t0}, v{t2}
                v_lshl_add_u32 v{t1}, v{t0}, 4, v{t1}""")
        for t in range(4):
            p.I(f"""s_add_u32 s{s_t0}, s{s_i}, {t}
                    s_and_b32 s{s_t0}, s{s_t0}, 3
                    s_lshl_b32 s{s_t0}, s{s_t0}, 5
                    v_xor_b32 v{xa+t}, s{s_t0}, v{t1}""")
    def per_t(dst, src, ks_stride):
        for t in range(4):
            p.I(f"""s_add_u32 s{s_t0}, s{s_i}, {t}
                    s_and_b32 s{s_t0}, s{s_t0}, 3
                    s_mul_i32 s{s_t0}, s{s_t0}, {ks_stride}
                    v_add_u32 v{dst+t}, s{s_t0}, v{src}""")
    def sync_setup(typ):
        srd(p, S_WS, WS_P, WS_BYTES); srd(p, S_DBG, DBG_P, 256)
        def tlb():
            p.I(f"v_lshlrev_b32 v{t5}, 20, v{lane}\n s_mov_b64 exec, 0xffff")
            p.I(f"buffer_load_dword v{v9}, v{t5}, s[{S_WS}:{S_WS+3}], 0 offen")
            p.I("s_mov_b64 exec, 3")
            for ptr in (OUT_P, W2_P):
                p.I(f"global_load_dword v{v9}, v{t5}, s[{ptr}:{ptr+1}]")
            p.I("s_mov_b64 exec, 1")
            p.I(f"global_load_dword v{v9}, v{t5}, s[{WO_P}:{WO_P+1}]")
            p.I("s_mov_b64 exec, -1")
        if 'tlb' in OPT: ifw(6, tlb)
        p.I(f"""s_lshl_b32 s{s_t0}, s{s_rb}, 2
                s_add_u32 s{s_t0}, s{s_t0}, s{s_i}
                s_lshl_b32 s{s_sto}, s{s_t0}, 12
                s_add_u32 s{s_sto}, s{s_sto}, {ST_OFF + typ * 64 * 4096}
                s_lshl_b32 s{s_wit}, s{s_w}, 8
                s_lshl_b32 s{s_cso}, s{s_grp}, 1
                s_lshr_b32 s{s_t0}, s{s_rb}, 3
                s_add_u32 s{s_cso}, s{s_cso}, s{s_t0}
                s_lshl_b32 s{s_cso}, s{s_cso}, 15
                s_add_u32 s{s_cso}, s{s_cso}, {CS_OFF + typ * 16 * 32768}""")
    def stat_ops(xr, sS, sQ):
        out = []
        for o in range(0, 4, 2):
            out += [f"v_lshlrev_b32 v{t0}, 16, v{xr+o}", f"v_and_b32 v{t1}, 0xffff0000, v{xr+o}",
                    f"v_lshlrev_b32 v{t2}, 16, v{xr+o+1}", f"v_and_b32 v{t3}, 0xffff0000, v{xr+o+1}",
                    f"v_add_f32 v{sS}, v{sS}, v{t0}", f"v_add_f32 v{sS+1}, v{sS+1}, v{t1}",
                    f"v_fmac_f32 v{sQ}, v{t0}, v{t0}", f"v_fmac_f32 v{sQ+1}, v{t1}, v{t1}",
                    f"v_add_f32 v{sS}, v{sS}, v{t2}", f"v_add_f32 v{sS+1}, v{sS+1}, v{t3}",
                    f"v_fmac_f32 v{sQ}, v{t2}, v{t2}", f"v_fmac_f32 v{sQ+1}, v{t3}, v{t3}"]
        return out
    def cs_pre(F, dst):
        for k in range(0, 16, 2):
            p.I(f"""v_lshlrev_b32 v{t0}, 16, v{F+k}
                    v_and_b32 v{t1}, 0xffff0000, v{F+k}
                    v_lshlrev_b32 v{t2}, 16, v{F+k+1}
                    v_and_b32 v{t3}, 0xffff0000, v{F+k+1}""")
            if k == 0: p.I(pk("v_pk_add_f32", t4, t0, t2))
            else:
                p.I(pk("v_pk_add_f32", t4, t4, t0)); p.I(pk("v_pk_add_f32", t4, t4, t2))
        p.I(f"""v_add_f32 v{t4}, v{t4}, v{t5}
                v_mov_b32 v{t5}, v{t4}
                v_permlane32_swap_b32 v{t4}, v{t5}
                v_add_f32 v{dst}, v{t4}, v{t5}""")
    def cs_publish(src, s_blk):
        p.I(f"""v_mov_b32 v{src+1}, s{s_non}
                s_lshl_b32 s{s_t0}, s{s_blk}, 11
                s_add_u32 s{s_t0}, s{s_t0}, s{s_cso}
                s_and_b32 s{s_t1}, s{s_rb}, 6
                s_lshl_b32 s{s_t1}, s{s_t1}, 8
                s_add_u32 s{s_t0}, s{s_t0}, s{s_t1}
                s_and_b32 s{s_t1}, s{s_rb}, 1
                s_lshl_b32 s{s_t1}, s{s_t1}, 3
                s_add_u32 s{s_t0}, s{s_t0}, s{s_t1}
                s_mov_b64 exec, 0xffffffff""")
        p.I(f"buffer_store_dwordx2 {vr(src,2)}, v{l16}, s[{S_WS}:{S_WS+3}], s{s_t0} offen sc1")
        p.I("s_mov_b64 exec, -1")
    def fetch(loads):
        last = None
        for q, sb, o in loads:
            hi = o // 4096
            if (sb, hi) != last:
                p.I(f"s_add_u32 s{s_t0}, s{sb}, {hi * 4096}"); last = (sb, hi)
            p.I(f"buffer_load_dwordx4 {vr(q,4)}, v{l16}, s[{S_WS}:{S_WS+3}], s{s_t0} offen offset:{o % 4096} sc1")
    def validate(loads):
        tags = [r for q, _, _ in loads for r in (q + 1, q + 3)]
        def test():
            for op, acc in (("min", t0), ("max", t1)):
                p.I(f"v_{op}_u32 v{acc}, v{tags[0]}, v{tags[1]}")
                for k in range(2, len(tags), 2): p.I(f"v_{op}3_u32 v{acc}, v{acc}, v{tags[k]}, v{tags[k+1]}")
            p.I(f"""v_cmp_eq_u32 vcc, s{s_non}, v{t0}
                    v_cmp_eq_u32 s[{s_pair}:{s_pair+1}], s{s_non}, v{t1}
                    s_and_b64 vcc, vcc, s[{s_pair}:{s_pair+1}]""")
        test()
        p.I("s_cmp_eq_u64 vcc, -1")
        def slow():
            lab = p.newlabel('Lval'); done = p.newlabel('Lvald')
            p.I(f"s_mov_b32 s{s_t1}, 0")
            p.label(lab)
            fetch(loads)
            p.I("s_waitcnt vmcnt(0)")
            test()
            p.I(f"""s_add_u32 s{s_t1}, s{s_t1}, 1
                    s_cmp_ge_u32 s{s_t1}, 0x40000
                    s_cbranch_scc1 {done}
                    s_cmp_eq_u64 vcc, -1
                    s_cbranch_scc0 {lab}""")
            p.label(done)
        p.rare(lambda r, it: r.get('slow', False), "s_cbranch_scc0", slow)
    def xhalf(a):
        p.I(f"""v_permlane32_swap_b32 v{a}, v{a+1}
                v_add_f32 v{a}, v{a}, v{a+1}
                v_mov_b32 v{a+1}, v{a}
                v_permlane32_swap_b32 v{a}, v{a+1}""")
    def stats_pre(sS, sQ, P):
        p.I(f"v_add_f32 v{sS}, v{sS}, v{sS+1}\n v_add_f32 v{sS+1}, v{sQ}, v{sQ+1}")
        xhalf(sS)
        p.I(f"v_mov_b32 v{P}, v{sS}\n v_mov_b32 v{P+2}, v{sS+1}")
    def stats_publish(P):
        p.I(f"""v_mov_b32 v{P+1}, s{s_non}
                v_mov_b32 v{P+3}, s{s_non}
                s_lshl_b32 s{s_t0}, s{s_grp}, 9
                s_add_u32 s{s_t0}, s{s_t0}, s{s_sto}
                s_mov_b64 exec, 0xffffffff""")
        p.I(f"buffer_store_dwordx4 {vr(P,4)}, v{l16}, s[{S_WS}:{S_WS+3}], s{s_t0} offen sc1")
        p.I("s_mov_b64 exec, -1")
    st_loads = lambda B: [(B + 4*j, s_sto, 1024*j) for j in range(4)]
    def st_addr(dst, base):
        p.I(f"""v_and_b32 v{dst}, 31, v{lane}
                v_lshlrev_b32 v{dst}, 3, v{dst}
                s_lshl_b32 s{s_t0}, s{s_i}, 8
                s_add_u32 s{s_t0}, s{s_t0}, {base}
                v_add_u32 v{dst}, s{s_t0}, v{dst}""")
    def f_consts(rstd, sd, c1, irs2):
        p.I(f"v_mul_f32 v{irs2}, v{sd}, v{sd}\n v_mul_f32 v{c1}, {0x80000000 | LOG2E}, v{rstd}")
    def stats_final(E, M, rstd, sd):
        T = t0
        p.I(f"""v_add_f32 v{E}, v{E}, v{E+4}
                v_add_f32 v{E+1}, v{E+2}, v{E+6}
                v_add_f32 v{E+8}, v{E+8}, v{E+12}
                v_add_f32 v{E+9}, v{E+10}, v{E+14}""")
        p.I(pk("v_pk_add_f32", E, E, E+8))
        xhalf(E)
        p.I(f"""v_mul_f32 v{E}, 0x3b000000, v{E}
                v_mul_f32 v{E+1}, 0x3b000000, v{E+1}
                v_fma_f32 v{E+1}, -v{E}, v{E}, v{E+1}
                v_cvt_pk_bf16_f32 v{M}, -v{E}, -v{E}
                v_max_f32 v{E+1}, 0, v{E+1}
                v_cvt_pk_bf16_f32 v{T}, v{E+1}, v{E+1}
                v_and_b32 v{T}, 0xffff0000, v{T}
                v_add_f32 v{T}, 0x3727c5ac, v{T}
                v_cvt_pk_bf16_f32 v{T}, v{T}, v{T}
                v_and_b32 v{T}, 0xffff0000, v{T}
                v_sqrt_f32 v{T}, v{T}
                v_cvt_pk_bf16_f32 v{T}, v{T}, v{T}
                v_and_b32 v{sd}, 0xffff0000, v{T}
                v_rcp_f32 v{rstd}, v{sd}""")
    def corr_prep(qa, qb, dst):
        T = t5
        p.I(f"""v_add_f32 v{qa}, v{qa}, v{qa+2}
                v_add_f32 v{qb}, v{qb}, v{qb+2}
                v_add_f32 v{qa}, v{qa}, v{qb}
                v_cvt_pk_bf16_f32 v{T}, v{qa}, v{qa}
                v_and_b32 v{T}, 0xffff0000, v{T}
                v_sub_f32 v{T}, v{qa}, v{T}
                v_cvt_pk_bf16_f32 v{dst}, v{qa}, v{T}""")
    def corr_mf(acc, src, C, M):
        p.I(f"v_mov_b32 v{C}, v{src}")
        p.I(f"{MF} {vr(acc,16)}, {vr(C,4)}, {vr(M,4)}, {vr(acc,16)}")
    def f_epi_list(acc, c1, irs2, T, soff, packed):
        L = []
        if packed:
            L += [pk("v_pk_mul_f32", T+i, acc+i, c1, bc=(1,)) for i in range(0, 8, 2)]
            L += [f"v_exp_f32 v{T+i}, v{T+i}" for i in range(8)]
            L += [pk("v_pk_mul_f32", acc+i, acc+i, acc+8+i) for i in range(0, 8, 2)]
            L += [pk("v_pk_fma_f32", T+i, T+i, irs2, irs2, bc=(1, 2)) for i in range(0, 8, 2)]
            L += [f"v_rcp_f32 v{T+i}, v{T+i}" for i in range(8)]
            L += [pk("v_pk_mul_f32", acc+i, acc+i, T+i) for i in range(0, 8, 2)]
        else:
            L += [f"v_mul_f32 v{T+i}, v{acc+i}, v{c1}" for i in range(8)]
            for i in range(8): L += [f"v_exp_f32 v{T+i}, v{T+i}", f"v_mul_f32 v{acc+i}, v{acc+i}, v{acc+8+i}"]
            L += [f"v_fma_f32 v{T+i}, v{T+i}, v{irs2}, v{irs2}" for i in range(8)]
            L += [f"v_rcp_f32 v{T+i}, v{T+i}" for i in range(2)]
            for i in range(8):
                if i + 2 < 8: L += [f"v_rcp_f32 v{T+i+2}, v{T+i+2}"]
                L += [f"v_mul_f32 v{acc+i}, v{acc+i}, v{T+i}"]
        L += [f"v_cvt_pk_bf16_f32 v{acc+i}, v{acc+2*i}, v{acc+2*i+1}" for i in range(4)]
        L += [f"buffer_store_dwordx4 {vr(acc,4)}, v{l16}, s[{S_WS}:{S_WS+3}], {soff} {HSC}"]
        return [lambda x=x: p.I(x, tag='hst' if x.startswith('buffer') else None) for x in L]
    def f_epilogue(acc, c1, irs2, T, soff):
        for f in f_epi_list(acc, c1, irs2, T, soff, True): f()
    def nonce_sample(vf):
        p.I(f"v_mov_b32 v{t0}, 0")
        p.I(f"buffer_load_dwordx2 {vr(vf,2)}, v{t0}, s[{S_DBG}:{S_DBG+3}], 0 offen offset:128 sc1")
    def nonce_take(vf):
        p.I(f"v_mov_b32 v{t0}, 128")
        nonce_get(p, vf, t0, S_DBG, "0", s_non, s_t0)
    S_PF = S_PHI
    def pf_list(dummy):
        L = []
        def setup(ptr, nbytes, per):
            srd(p, S_PF, ptr, nbytes)
            p.I(f"""s_lshr_b32 s{s_pf}, s2, 3
                    s_mul_i32 s{s_pf}, s{s_pf}, {per}
                    s_add_u32 s{s_pf}, s{s_pf}, s{s_w}
                    s_lshl_b32 s{s_pf}, s{s_pf}, 10""")
        def ld():
            p.I(f"buffer_load_dwordx4 {vr(dummy,4)}, v{l16}, s[{S_PF}:{S_PF+3}], s{s_pf} offen")
            p.I(f"s_add_u32 s{s_pf}, s{s_pf}, 8192")
        if 'l2pf' not in OPT: return []
        L.append(lambda: (setup(W2_P, 1376*1024, 43), ld()))
        L += [ld] * 5
        L.append(lambda: (setup(WO_P, 512*1024, 16), ld()))
        L.append(ld)
        return L
    def mall_touch(dummy):
        if 'nomall' in OPT: return
        p.I(f"""s_lshl_b32 s{s_pf}, s2, 3
                s_add_u32 s{s_pf}, s{s_pf}, s{s_w}
                s_sub_u32 s{s_t0}, s{s_pf}, 1376
                s_cmp_lt_u32 s{s_pf}, 1376
                s_cselect_b32 s{s_pf}, s{s_pf}, s{s_t0}
                s_cselect_b64 s[{S_PF}:{S_PF+1}], s[{W2_P}:{W2_P+1}], s[{WO_P}:{WO_P+1}]
                s_mov_b32 s{s_t0}, {512*1024}
                s_cselect_b32 s{S_PF+2}, {1376*1024}, s{s_t0}
                s_mov_b32 s{S_PF+3}, 0x20000
                s_lshl_b32 s{s_pf}, s{s_pf}, 10""")
        p.I(f"buffer_load_dwordx4 {vr(dummy,4)}, v{l16}, s[{S_PF}:{S_PF+3}], s{s_pf} offen")
    def code_pf(label, dummy, piece_s=None):
        here = p.newlabel('Lpc')
        p.I(f"s_getpc_b64 s[{s_pair}:{s_pair+1}]")
        p.label(here)
        p.I(f"""s_add_u32 s{s_pair}, s{s_pair}, {label}-{here}
                s_addc_u32 s{s_pair+1}, s{s_pair+1}, {'0' if label.startswith('k2') else '-1'}
                v_lshlrev_b32 v{dummy}, 7, v{lane}""")
        if piece_s is not None: p.I(f"v_add_u32 v{dummy}, s{piece_s}, v{dummy}")
        p.I(f"global_load_dword v{dummy}, v{dummy}, s[{s_pair}:{s_pair+1}]")
    def kap0(s, dst):
        if s < 8:
            p.I(f"""s_add_u32 s{dst}, s{s_rot2}, {s}
                    s_and_b32 s{dst}, s{dst}, 7
                    s_lshl_b32 s{dst}, s{dst}, 3
                    s_add_u32 s{dst}, s{dst}, 16""")
        else: p.I(f"s_mov_b32 s{dst}, {[80, 0, 8, 86, 94, 102, 110][s-8]}")
    def p2_params(off):
        p.I(f"""s_lshr_b32 s{s_t0}, s2, 3
                s_and_b32 s{s_ct2}, s{s_t0}, 7
                s_and_b32 s{s_rb2}, s2, 1
                s_lshl_b32 s{s_rb2}, s{s_rb2}, 4
                s_and_b32 s{s_t0}, s2, 6
                s_lshl_b32 s{s_t0}, s{s_t0}, 1
                s_add_u32 s{s_rb2}, s{s_rb2}, s{s_t0}
                s_add_u32 s{s_rb2}, s{s_rb2}, s{s_ci}
                s_lshl_b32 s{s_rot2}, s{s_ci}, 1
                s_add_u32 s{s_rot2}, s{s_rot2}, s{s_ct2}
                s_mov_b32 s{s_bs0}, {off}""")
    def vb_calc(vB, n):
        p.I(f"""v_lshrrev_b32 v{t0}, 3, v{lane}
                v_lshlrev_b32 v{t0}, 10, v{t0}
                v_and_b32 v{t1}, 7, v{lane}
                v_bfe_u32 v{t2}, v{lane}, 4, 1
                v_lshlrev_b32 v{t2}, 2, v{t2}
                v_xor_b32 v{t1}, v{t1}, v{t2}
                v_lshl_add_u32 v{vB}, v{t1}, 4, v{t0}
                s_lshl_b32 s{s_t0}, s{s_ct2}, 7
                v_add_u32 v{vB}, s{s_t0}, v{vB}""")
        for m in range(1, n): p.I(f"v_add_u32 v{vB+m}, {7168*m}, v{vB}")
    def bpf_setup(vB, off):
        p2_params(off); vb_calc(vB, 2); srd(p, S_W2, W2_P, 1376*1024)
    def bpf(s, vB, off):
        def a():
            kap0(s, s_t1)
            p.I(f"""s_add_u32 s{s_t1}, s{s_t1}, s{s_w}
                    s_lshl_b32 s{s_bo}, s{s_t1}, 14
                    s_lshl_b32 s{s_t1}, s{s_w}, 11
                    s_add_u32 m0, s{s_t1}, {BBASE + ((s + off) % 7) * 16384}""")
            p.I(f"buffer_load_dwordx4 v{vB}, s[{S_W2}:{S_W2+3}], s{s_bo} offen lds")
            p.I(f"buffer_load_dwordx4 v{vB+1}, s[{S_W2}:{S_W2+3}], s{s_bo} offen offset:1024 lds")
        return [] if 'nobpf' in OPT else [a]
    def finish(typ):
        p.wait(vm=['hst'], lg_all=True)
        p.I("s_barrier")
        def fr():
            p.I(f"""s_lshl_b32 s{s_t1}, s{s_rb}, 3
                    s_add_u32 s{s_t1}, s{s_t1}, s{s_grp}
                    s_lshl_b32 s{s_t1}, s{s_t1}, 7
                    s_add_u32 s{s_t1}, s{s_t1}, {FL_OFF + typ * 128 * 128}""")
            flag_raise(p, t2, S_WS, s_t1, s_non)
        ifw(0, fr)
        st.stamp(p, 'ph1')
        p.I(f"s_branch {name}_ph2")
    def ifw(w, fn):
        p.I(f"s_cmp_lg_u32 s{s_w}, {w}"); p.cond(lambda r, it: r['w'] == w, "s_cbranch_scc1", fn)
    def rarew(w, fn):
        p.I(f"s_cmp_eq_u32 s{s_w}, {w}"); p.rare(lambda r, it: r['w'] == w, "s_cbranch_scc1", fn)

    FSLOT = 53376; FW1 = 16384; FW3 = 16384 + 18432 + 128
    FEX2 = 2 * FSLOT
    def ftype(g):
        V = Regs('v', BASE, 256)
        st.n = len(base_names); st.names = list(base_names)
        nb = 5 if g == 0 else 4
        b0 = 0 if g == 0 else 5
        nd = 6 if g == 0 else 7
        vd = V.alloc(7); xa = V.alloc(4); wa = V.alloc(4)
        ACC = V.alloc(16 * nb, 4)
        SET = [V.alloc(24, 4), V.alloc(24, 4)]
        XT = V.alloc(28, 4); WTB = V.alloc(32, 4)
        sS, sQ, PUBS, PUBC, PUB8, VF, vpre = WTB + 16, WTB + 18, XT + 16, XT + 20, XT + 22, XT + 24, XT + 26
        FEX = 2 * FSLOT
        floads = [(WTB, s_csg, 0), (WTB + 4, s_csg, 1024)] + (st_loads(XT) if g == 1 else [])
        floads8 = [(WTB + 8, s_cso, 16384), (WTB + 12, s_cso, 17408)]
        M = V.alloc(4, 4); C = V.alloc(4, 4); T = V.alloc(8, 4)
        c1 = V.alloc(1, 2); rstd = V.alloc(); irs2 = V.alloc(1, 2); C0 = V.alloc(5); PFD = V.alloc(4, 4)
        def dma(n, tag):
            if g == 0:
                if n == 0: p.I(f"s_add_u32 m0, s{s_mslot}, s{s_mA}")
                if n == 3: p.I(f"s_add_u32 m0, s{s_mslot}, s{s_mB}")
                S = S_W1 if n < 3 else S_W3
                p.I(f"buffer_load_dwordx4 v{vd + n % 3}, s[{S}:{S+3}], s{s_woff} offen offset:{1024*(n%3)} lds", tag=tag)
            else:
                if n == 0: p.I(f"s_add_u32 m0, s{s_mslot}, s{s_mA}")
                if n == 4: p.I(f"s_add_u32 m0, s{s_mslot}, s{s_mB}")
                if n < 4: p.I(f"buffer_load_dwordx4 v{vd+3+n}, s[{S_X}:{S_X+3}], s{s_xoff} offen offset:{1024*n} lds", tag=tag)
                else: p.I(f"buffer_load_dwordx4 v{vd+n-4}, s[{S_WM}:{S_WM+3}], s{s_woff} offen offset:{1024*(n-4)} lds", tag=tag)
        nxt = f"""s_add_u32 s{s_kc}, s{s_kc}, 1
                  s_and_b32 s{s_kc}, s{s_kc}, 7
                  s_lshl_b32 s{s_xoff}, s{s_kc}, 7
                  s_mul_i32 s{s_woff}, s{s_kc}, {64*2752}
                  s_add_u32 s{s_mslot}, s{s_mslot}, {FSLOT}
                  s_cmp_ge_u32 s{s_mslot}, {3*FSLOT}
                  s_cselect_b32 s{s_mslot}, 0, s{s_mslot}
                  s_add_u32 s{s_ds}, s{s_ds}, 1"""
        def prologue():
            p.label(f"{name}_proF{g}")
            p.I(f"""s_mul_i32 s{s_col}, s{s_grp}, 288
                    s_add_u32 s{s_col}, s{s_col}, 512
                    s_min_u32 s{s_col}, s{s_col}, 2464""")
            def wvoff(dst, q_s, m):
                p.I(f"""s_add_u32 s{s_t0}, s{q_s}, {m}
                        s_lshl_b32 s{s_t0}, s{s_t0}, 6
                        v_add_u32 v{t0}, s{s_t0}, v{lane}
                        v_mul_u32_u24 v{t1}, 3641, v{t0}
                        v_lshrrev_b32 v{t1}, 16, v{t1}
                        v_mul_u32_u24 v{t2}, {2752 - 18*16}, v{t1}
                        v_lshl_add_u32 v{t0}, v{t0}, 4, v{t2}
                        s_sub_u32 s{s_t0}, s{s_col}, {1024*m}
                        v_add_u32 v{dst}, s{s_t0}, v{t0}""")
            if g == 0:
                p.I(f"s_mul_i32 s{s_t2}, s{s_i}, 3")
                for m in range(3): wvoff(vd + m, s_t2, m)
                p.I(f"""s_lshl_b32 s{s_mA}, s{s_t2}, 10
                        s_add_u32 s{s_mB}, s{s_mA}, {FW3}
                        s_add_u32 s{s_mA}, s{s_mA}, {FW1}""")
            else:
                p.I(f"""s_lshl_b32 s{s_t0}, s{s_rb}, 2
                        s_add_u32 s{s_t0}, s{s_t0}, s{s_i}
                        s_lshl_b32 s{s_t0}, s{s_t0}, 15
                        v_lshrrev_b32 v{t0}, 3, v{lane}
                        v_lshlrev_b32 v{t0}, 10, v{t0}
                        v_add_u32 v{t0}, s{s_t0}, v{t0}
                        v_and_b32 v{t1}, 7, v{lane}
                        v_lshrrev_b32 v{t2}, 4, v{lane}
                        v_xor_b32 v{t1}, v{t1}, v{t2}
                        v_lshl_add_u32 v{vd+3}, v{t1}, 4, v{t0}
                        v_xor_b32 v{t0}, 64, v{vd+3}
                        v_add_u32 v{vd+4}, {7168}, v{t0}
                        v_add_u32 v{vd+5}, {2*7168}, v{vd+3}
                        v_add_u32 v{vd+6}, {3*7168}, v{t0}
                        s_and_b32 s{s_t2}, s{s_i}, 1
                        s_mul_i32 s{s_t2}, s{s_t2}, 3
                        s_add_u32 s{s_t2}, s{s_t2}, 12""")
                for m in range(3): wvoff(vd + m, s_t2, m)
                p.I(f"""s_lshl_b32 s{s_mB}, s{s_t2}, 10
                        s_lshr_b32 s{s_t0}, s{s_i}, 1
                        s_mul_i32 s{s_t0}, s{s_t0}, {FW3-FW1}
                        s_add_u32 s{s_mB}, s{s_mB}, s{s_t0}
                        s_add_u32 s{s_mB}, s{s_mB}, {FW1}
                        s_lshl_b32 s{s_mA}, s{s_i}, 12""")
            p.I(f"""s_mov_b32 s{s_kc}, s{s_rot}
                    s_lshl_b32 s{s_xoff}, s{s_kc}, 7
                    s_mul_i32 s{s_woff}, s{s_kc}, {64*2752}
                    s_mov_b32 s{s_mslot}, 0
                    s_mov_b32 s{s_ds}, 0""")
            p.I("s_waitcnt lgkmcnt(0)")
            if g == 0:
                srd(p, S_W1, W1_P, 512*2752); srd(p, S_W3, W3_P, 512*2752)
            else:
                srd(p, S_X, X_P, 2048*1024)
                p.I(f"""s_cmp_lt_u32 s{s_i}, 2
                        s_cselect_b64 s[{S_WM}:{S_WM+1}], s[{W1_P}:{W1_P+1}], s[{W3_P}:{W3_P+1}]
                        s_mov_b32 s{S_WM+2}, {512*2752}
                        s_mov_b32 s{S_WM+3}, 0x20000""")
            st.stamp(p, 'args')
            for n in range(nd): dma(n, ('d', 0))
            p.I(nxt)
            p.I(f"s_branch {name}_bodyF{g}")
        split = [int(x) for x in os.environ.get('FSPLIT%d' % g, '2,2,1,1' if g == 0 else '2,2,2,1').split(',')]
        assert sum(split) == nd
        ofs = [sum(split[:k]) for k in range(5)]
        def body():
            p.label(f"{name}_bodyF{g}")
            for n in range(nd): dma(n, ('d', 1))
            p.I(nxt)
            xaddr_calc(xa)
            p.I(f"""v_bfe_u32 v{t0}, v{lane}, 4, 1
                    v_mul_u32_u24 v{t0}, {FW3-FW1}, v{t0}
                    v_lshrrev_b32 v{t1}, 5, v{lane}
                    v_bfe_u32 v{t2}, v{lane}, 2, 2
                    v_lshl_add_u32 v{t1}, v{t1}, 3, v{t2}
                    v_mul_u32_u24 v{t1}, 288, v{t1}
                    v_add_u32 v{t0}, v{t0}, v{t1}
                    v_and_b32 v{t1}, 3, v{lane}
                    v_lshl_add_u32 v{t0}, v{t1}, 3, v{t0}
                    v_add_u32 v{t3}, {FW1 + 32*b0}, v{t0}
                    s_lshl_b32 s{s_t0}, s{s_w}, 5
                    s_add_u32 s{s_t0}, s{s_t0}, {FW1}
                    v_add_u32 v{vpre}, s{s_t0}, v{t0}""")
            per_t(wa, t3, 16 * 288)
            for i in range(0, 16 * nb, 2): p.I(f"v_mov_b64 {vr(ACC+i,2)}, 0")
            for r in [sS, sS+1, sQ, sQ+1, M+1, M+2, M+3, C+1, C+2, C+3]: p.I(f"v_mov_b32 v{r}, 0")
            sync_setup(1)
            p.I(f"""s_lshl_b32 s{s_hoff}, s{s_rb}, 2
                    s_add_u32 s{s_hoff}, s{s_hoff}, s{s_i}
                    s_mul_i32 s{s_hoff}, s{s_hoff}, 118
                    s_lshr_b32 s{s_t1}, s{s_col}, 5
                    s_add_u32 s{s_hoff}, s{s_hoff}, s{s_t1}
                    s_add_u32 s{s_hoff}, s{s_hoff}, {b0}
                    s_lshl_b32 s{s_hoff}, s{s_hoff}, 10
                    s_mov_b32 s{s_it}, 0
                    s_mov_b32 s{s_rslot}, 0
                    s_mov_b32 s{s_t3}, {FSLOT}""")
            def reads(S, t):
                out = [lambda: p.I(f"ds_read_b128 {vr(S,4)}, v{xa+t}")]
                for b in range(nb):
                    out.append(lambda b=b: p.I(f"ds_read_b64_tr_b16 {vr(S+4+4*b,2)}, v{wa+t} offset:{32*b}"))
                    out.append(lambda b=b: p.I(f"ds_read_b64_tr_b16 {vr(S+4+4*b+2,2)}, v{wa+t} offset:{32*b+1152}"))
                return out
            def mf(S):
                return [lambda b=b: p.I(f"{MF} {vr(ACC+16*b,16)}, {vr(S+4+4*b,4)}, {vr(S,4)}, {vr(ACC+16*b,16)}") for b in range(nb)]
            def dgroup(k, tagf, valid):
                lo, hi = ofs[k], ofs[k+1]
                if lo == hi: return []
                return [lambda: (p.I(f"s_cmp_gt_u32 s{s_ds}, 7"),
                                 p.cond(valid, "s_cbranch_scc1", lambda: [dma(n, tagf) for n in range(lo, hi)]))]
            def at_it(k, w0, fn):
                p.I(f"s_cmp_lg_u32 s{s_wit if w0 else s_it}, {k}")
                p.cond(lambda r, it: it == k and (not w0 or r['w'] == 0), "s_cbranch_scc1", fn)
            def special(its, fn):
                p.I(f"s_bitcmp1_b32 {sum(1 << k for k in its)}, s{s_it}")
                p.rare(lambda r, it: it in its, "s_cbranch_scc1", fn)
            p.I(f"s_lshl_b32 s{s_csg}, s{s_w}, 11\n s_add_u32 s{s_csg}, s{s_csg}, s{s_cso}")
            p.wait(vm=[('d', 0)])
            p.I("s_barrier")
            st.stamp(p, 'bar0')
            nonce_sample(VF)
            def pre_reads(extra):
                for t in range(4):
                    for h in range(2):
                        p.I(f"ds_read_b64_tr_b16 {vr(SET[1]+4*t+2*h,2)}, v{vpre} offset:{16*288*t + 1152*h + extra}")
            pre_reads(0)
            if g == 1:
                XS = [XT, XT + 4, XT + 8, XT + 12]
                for t in range(4): p.I(f"ds_read_b128 {vr(XS[t],4)}, v{xa+t}")
            for n in range(split[0]): dma(n, ('d', 2))
            cs_pre(SET[1], PUBC)
            if g == 1:
                for t in range(4): p.I("\n".join(stat_ops(XS[t], sS, sQ)))
                stats_pre(sS, sQ, PUBS)
            else:
                ifw(0, lambda: (pre_reads(256), cs_pre(SET[1], PUB8)))
            for r in reads(SET[0], 0): r()
            st.stamp(p, 'pre')
            FGET = int(os.environ.get('FGET', '3'))
            def lbody():
                v2 = lambda r, it: it + 2 <= 7
                v3 = lambda r, it: it + 3 <= 7
                tg2 = lambda it: ('d', it + 2)
                tg3 = lambda it: ('d', it + 3)
                interleave(p, mf(SET[0]), mix(reads(SET[1], 1), dgroup(1, tg2, v2)))
                interleave(p, mf(SET[1]), mix(reads(SET[0], 2), dgroup(2, tg2, v2)))
                slot = [lambda: p.I(nxt), lambda: p.I(f"""s_add_u32 s{s_rslot}, s{s_rslot}, {FSLOT}
                        s_cmp_ge_u32 s{s_rslot}, {3*FSLOT}
                        s_cselect_b32 s{s_rd}, {(-2*FSLOT) & 0xffffffff}, s{s_t3}
                        s_cselect_b32 s{s_rslot}, 0, s{s_rslot}""")]
                interleave(p, mf(SET[0]), mix(reads(SET[1], 3), dgroup(3, tg2, v2) + slot))
                w = lambda: p.wait(vm=[lambda it: ('d', it + 1)], lg_all=True)
                p.I(f"s_bitcmp1_b32 {(1 << 1) | (1 << (FGET + 1))}, s{s_it}")
                p.rare_else(lambda r, it: it in (1, FGET + 1), "s_cbranch_scc1", w, w)
                p.I("s_barrier")
                if 'fine' in OPT: st.stamp_dyn(p, 'b', s_it, 6)
                adr = [lambda t=t: p.I(f"v_add_u32 v{xa+t}, s{s_rd}, v{xa+t}\n v_add_u32 v{wa+t}, s{s_rd}, v{wa+t}") for t in range(4)]
                def publish():
                    nonce_take(VF)
                    cs_publish(PUBC, s_w)
                    mall_touch(PFD)
                    if g == 1: stats_publish(PUBS)
                    else: ifw(0, lambda: (p.I(f"s_mov_b32 s{s_t2}, 8"), cs_publish(PUB8, s_t2)))
                def get():
                    fetch(floads)
                    if g == 0: ifw(0, lambda: fetch(floads8))
                def digest():
                    validate(floads)
                    corr_prep(WTB, WTB + 4, t2)
                    p.I(f"""v_lshlrev_b32 v{t3}, 2, v{lane}
                            s_lshl_b32 s{s_t0}, s{s_w}, 8
                            s_add_u32 s{s_t0}, s{s_t0}, {FEX}
                            v_add_u32 v{t3}, s{s_t0}, v{t3}""")
                    p.I(f"ds_write_b32 v{t3}, v{t2}")
                    if g == 0:
                        ifw(0, lambda: (validate(floads8), corr_prep(WTB + 8, WTB + 12, t2), p.I(f"ds_write_b32 v{t3}, v{t2} offset:2048")))
                    else:
                        stats_final(XT, M, rstd, M + 1)
                        st_addr(t3, FEX + 2304)
                        p.I(f"ds_write_b64 v{t3}, {vr(M,2)}")
                def postsync():
                    def f():
                        at_it(0, False, publish)
                        at_it(FGET, False, get)
                        at_it(5, False, digest)
                    special((0, FGET, 5), f)
                interleave(p, mf(SET[1]), [adr[0]] + mix(reads(SET[0], 0), adr[1:], dgroup(0, tg3, v3)) + [postsync])
                p.I(f"s_add_u32 s{s_it}, s{s_it}, 1\n s_add_u32 s{s_wit}, s{s_wit}, 1")
            p.drop = drop
            p.loop(6, lbody, f"{name}_f{g}", f"s_cmp_lt_u32 s{s_it}, 6\n s_cbranch_scc1 {name}_f{g}")
            p.drop = ()
            st.stamp(p, 'loop')
            Xr = lambda s, t: SET[0] if (s, t) == (6, 0) else XT + 4 * (4 * (s - 6) + t - 1)
            order = [(0, 6), (1, 6), (2, 6), (0, 7), (1, 7), (2, 7)] + [(b, s) for b in range(3, nb) for s in (6, 7)]
            bufs = [SET[1], WTB, WTB + 16]
            ub = {u: bufs[k % 3] for k, u in enumerate(order)}
            Wr = lambda b, s, t: SET[0] + 4 + 4*b if (s, t) == (6, 0) else ub[(b, s)] + 4*t
            def wread(u):
                b, s = u
                return [lambda t=t, h=h: p.I(f"ds_read_b64_tr_b16 {vr(Wr(b,s,t)+2*h,2)}, v{wa+t} offset:{32*b + 1152*h + (s-6)*FSLOT}")
                        for t in range(4) if (s, t) != (6, 0) for h in range(2)]
            def unit(u):
                b, s = u
                return [lambda t=t: p.I(f"{MF} {vr(ACC+16*b,16)}, {vr(Wr(b,s,t),4)}, {vr(Xr(s,t),4)}, {vr(ACC+16*b,16)}") for t in range(4)]
            xread = lambda s: [lambda t=t: p.I(f"ds_read_b128 {vr(Xr(s,t),4)}, v{xa+t} offset:{(s-6)*FSLOT}") for t in range(4) if (s, t) != (6, 0)]
            cmf = lambda b: corr_mf(ACC + 16*b, C0 + b, C, M)
            def epi(b, packed):
                L = f_epi_list(ACC + 16*b, c1, irs2, T, f"s{s_qoff if (g == 0 and b < 2) else s_hoff} offen offset:{1024*b}" if b < 4 else f"s{s_t2} offen", packed)
                return L
            p.I(f"s_add_u32 s{s_t2}, s{s_hoff}, 4096")
            p.I(f"s_cmp_eq_u32 s{s_grp}, 7\n s_cselect_b32 s{s_qoff}, 0x7ff00000, s{s_hoff}")
            for f in xread(6) + wread(order[0]): f()
            interleave(p, unit(order[0]), wread(order[1]))
            interleave(p, unit(order[1]), wread(order[2]))
            p.wait(vm=[('d', 7)], lg_all=True)
            p.I("s_barrier")
            p.I(f"v_lshlrev_b32 v{t3}, 2, v{lane}\n v_add_u32 v{t3}, {FEX + 256*b0}, v{t3}")
            for b in range(nb): p.I(f"ds_read_b32 v{C0+b}, v{t3} offset:{256*b}")
            if g == 0:
                st_addr(t2, FEX + 2304)
                p.I(f"ds_read_b64 {vr(M,2)}, v{t2}")
            def consts():
                p.I(f"v_rcp_f32 v{rstd}, v{M+1}")
                f_consts(rstd, M + 1, c1, irs2)
                p.I(f"v_mov_b32 v{M+1}, 0")
            PKT = 'pktail' in OPT
            CH = int(os.environ.get('FCH', '30'))
            work = []
            pfl = pf_list(PFD)
            fresh = False
            for k in range(2, len(order)):
                u = order[k]
                nxtr = (xread(7) if k == 2 else []) + (wread(order[k + 1]) if k + 1 < len(order) else []) + ([consts] if k == 2 else [])
                take, work = work[:CH], work[CH:]
                nxtr, pfl = nxtr + pfl[:1], pfl[1:]
                ms = unit(u)
                if fresh:
                    interleave(p, ms[:2], nxtr); interleave(p, ms[2:], take)
                else:
                    interleave(p, ms, mix(nxtr, take))
                fresh = False
                if k + 1 == len(order) and g == 0:
                    p.wait(lg_all=True)
                    p.I("s_barrier")
                if u[1] == 7:
                    cmf(u[0])
                    fresh = not work
                    work = work + epi(u[0], PKT or k + 1 == len(order))
            assert not pfl
            lateb = [lambda: bpf_setup(vd, 0)] + [f for s in range(7) for f in bpf(s, vd, 0)]
            for f in work: f()
            if g == 1: p.I("s_barrier")
            for f in lateb: f()
            st.stamp(p, 'end')
            finish(1)
        p.begin(); prologue(); pro = p.end()
        p.begin(); body(); bod = p.end()
        info[f'F{g}'] = ([w for w in range(256) if (w >> 6) >= 2], [4*g + k for k in range(4)], list(st.names))
        return pro, bod, V.next

    def atype():
        V = Regs('v', BASE, 256)
        st.n = len(base_names); st.names = list(base_names)
        vx = V.alloc(2); vw = V.alloc(); vf = V.alloc()
        xa = V.alloc(4); wa = V.alloc(4); fa = V.alloc(4)
        cs = V.alloc(2, 2); vpre = V.alloc(2); sS = V.alloc(2, 2); sQ = V.alloc(2)
        rstd = V.alloc(1, 2); sd = V.alloc(); c1 = t0; irs2 = t2
        X = V.alloc(128, 4)
        AK, AV, AQ, AF = [V.alloc(16, 4) for _ in range(4)]
        SET = [V.alloc(8, 4), V.alloc(8, 4)]
        WP = V.alloc(8, 4); M = WP + 4
        C = V.alloc(4, 4)
        VF = AF + 8
        SL = 32768
        AGET = int(os.environ.get('AGET', '5')); APUB = int(os.environ.get('APUB', '2'))
        EX2, TP, TV = 36864, 40960, 73728
        p1base = lambda s: (s % 4) * SL
        p2base = lambda s: [4*SL, 4*SL+16384, 0, 16384, 3*SL, 3*SL+16384, 4*SL, 4*SL+16384][s]
        def kc_setup(s):
            p.I(f"s_add_u32 s{s_kc}, s{s_rot}, {s}\n s_and_b32 s{s_kc}, s{s_kc}, 7")
        dq = []
        def mk1(s):
            tag = ('d', s); b = p1base(s)
            def d0():
                kc_setup(s)
                p.I(f"s_lshl_b32 s{s_xoff}, s{s_kc}, 7\n s_add_u32 m0, s{s_mA}, {b}\n s_mul_i32 s{s_woff}, s{s_kc}, {64*3072}")
                p.I(f"buffer_load_dwordx4 v{vx}, s[{S_X}:{S_X+3}], s{s_xoff} offen lds", tag=tag)
            def d1(): p.I(f"buffer_load_dwordx4 v{vx+1}, s[{S_X}:{S_X+3}], s{s_xoff} offen offset:1024 lds", tag=tag)
            def d2():
                p.I(f"s_add_u32 m0, s{s_mB}, {b + 16384 - 1024}\n s_add_u32 s{s_voff}, s{s_woff}, 2048")
                p.I(f"buffer_load_dwordx4 v{vw}, s[{S_QKV}:{S_QKV+3}], s{s_woff} offen offset:1024 lds", tag=tag)
            def d3():
                p.I(f"s_add_u32 m0, s{s_mB}, {b + 24576}")
                p.I(f"buffer_load_dwordx4 v{vw}, s[{S_QKV}:{S_QKV+3}], s{s_voff} offen lds", tag=tag)
            need = None if s < 4 else s - 2
            return [(d0, need), (d1, need), (d2, need), (d3, need)]
        def mk2(s):
            tag = ('d', 8 + s); b = p2base(s)
            def d0():
                kc_setup(s)
                p.I(f"s_mul_i32 s{s_woff}, s{s_kc}, {64*3072}\n s_add_u32 m0, s{s_mB}, {b}\n s_mul_i32 s{s_voff}, s{s_kc}, {64*2752}")
                p.I(f"buffer_load_dwordx4 v{vw}, s[{S_QKV}:{S_QKV+3}], s{s_woff} offen lds", tag=tag)
            def d1():
                p.I(f"s_add_u32 m0, s{s_mB}, {b + 8192}")
                p.I(f"buffer_load_dwordx4 v{vf}, s[{S_WM}:{S_WM+3}], s{s_voff} offen lds", tag=tag)
            need = [None, 4, 6, 6, 10, 10, 11, 11][s]
            return [(d0, need), (d1, need)]
        dq += mk1(0) + mk1(1) + mk2(0)
        for s in range(2, 8): dq += mk1(s)
        for s in range(1, 8): dq += mk2(s)
        npop = [0]
        passed = [-1]
        def pop(n=1):
            for _ in range(n):
                if not dq: return
                f, need = dq[0]
                if need is not None and need > passed[0]: return
                dq.pop(0); f(); npop[0] += 1
        def prologue():
            p.label(f"{name}_proA")
            p.I(f"""s_lshl_b32 s{s_t0}, s{s_rb}, 3
                    s_add_u32 s{s_t0}, s{s_t0}, s{s_w}
                    s_lshl_b32 s{s_t0}, s{s_t0}, 14
                    v_lshrrev_b32 v{t0}, 3, v{lane}
                    v_lshlrev_b32 v{t1}, 10, v{t0}
                    v_add_u32 v{t1}, s{s_t0}, v{t1}
                    v_and_b32 v{t2}, 7, v{lane}
                    v_lshrrev_b32 v{t3}, 4, v{lane}
                    v_xor_b32 v{t3}, v{t2}, v{t3}
                    v_lshl_add_u32 v{vx}, v{t3}, 4, v{t1}
                    v_xor_b32 v{t1}, 64, v{vx}
                    v_add_u32 v{vx+1}, 7168, v{t1}
                    s_lshl_b32 s{s_t0}, s{s_w}, 3
                    v_add_u32 v{t0}, s{s_t0}, v{t0}
                    v_mul_u32_u24 v{t0}, 3072, v{t0}
                    v_bfe_u32 v{t1}, v{lane}, 4, 1
                    v_lshlrev_b32 v{t1}, 2, v{t1}
                    v_xor_b32 v{t1}, v{t1}, v{t2}
                    v_lshl_add_u32 v{t0}, v{t1}, 4, v{t0}
                    s_lshl_b32 s{s_t0}, s{s_grp}, 7
                    v_add_u32 v{vw}, s{s_t0}, v{t0}
                    s_lshl_b32 s{s_mA}, s{s_w}, 11
                    s_lshl_b32 s{s_mB}, s{s_w}, 10""")
            p.I("s_waitcnt lgkmcnt(0)")
            srd(p, S_X, X_P, 2048*1024); srd(p, S_QKV, WQKV_P, 512*3072)
            st.stamp(p, 'args')
            pop(4)
        def body():
            sync_setup(0)
            pop(4)
            p.I(f"""v_lshrrev_b32 v{t0}, 2, v{lane}
                    s_lshl_b32 s{s_t0}, s{s_i}, 4
                    v_add_u32 v{t0}, s{s_t0}, v{t0}
                    v_mul_u32_u24 v{t0}, 2752, v{t0}
                    v_and_b32 v{t1}, 3, v{lane}
                    s_lshl_b32 s{s_t0}, s{s_g}, 1
                    v_xor_b32 v{t1}, s{s_t0}, v{t1}
                    v_lshl_add_u32 v{t0}, v{t1}, 4, v{t0}
                    s_lshl_b32 s{s_t0}, s{s_grp}, 6
                    v_add_u32 v{vf}, s{s_t0}, v{t0}
                    s_cmp_eq_u32 s{s_g}, 0
                    s_cselect_b64 s[{S_WM}:{S_WM+1}], s[{W1_P}:{W1_P+1}], s[{W3_P}:{W3_P+1}]
                    s_mov_b32 s{S_WM+2}, {512*2752}
                    s_mov_b32 s{S_WM+3}, 0x20000""")
            srd(p, S_PHI, WPHI_P, 32*512)
            xaddr_calc(xa)
            p.I(f"""v_lshrrev_b32 v{t0}, 5, v{lane}
                    v_bfe_u32 v{t1}, v{lane}, 2, 2
                    v_lshl_add_u32 v{t0}, v{t0}, 3, v{t1}
                    v_bfe_u32 v{t1}, v{lane}, 4, 1
                    v_bfe_u32 v{t2}, v{lane}, 1, 1
                    v_lshl_add_u32 v{t2}, v{t1}, 1, v{t2}
                    s_lshl_b32 s{s_t1}, s{s_g}, 2
                    v_add_u32 v{t2}, s{s_t1}, v{t2}
                    v_bfe_u32 v{t3}, v{lane}, 3, 1
                    v_lshlrev_b32 v{t3}, 2, v{t3}
                    v_xor_b32 v{t2}, v{t2}, v{t3}
                    v_lshlrev_b32 v{t2}, 4, v{t2}
                    v_lshl_add_u32 v{t2}, v{t0}, 7, v{t2}
                    v_and_b32 v{t3}, 1, v{lane}
                    v_lshl_add_u32 v{fa}, v{t3}, 3, v{t2}
                    s_lshr_b32 s{s_t1}, s{s_i}, 1
                    s_xor_b32 s{s_t1}, s{s_t1}, s{s_g}
                    s_lshl_b32 s{s_t2}, s{s_t1}, 6
                    v_xor_b32 v{vpre}, s{s_t2}, v{fa}
                    s_lshl_b32 s{s_t3}, s{s_t1}, 5""")
            per_t(wa, fa, 2048)
            p.I(f"""v_lshlrev_b32 v{t0}, 6, v{t0}
                    v_lshl_add_u32 v{t0}, v{t1}, 12, v{t0}
                    v_bfe_u32 v{t2}, v{lane}, 1, 1
                    s_lshl_b32 s{s_t1}, s{s_g}, 1
                    v_add_u32 v{t2}, s{s_t1}, v{t2}
                    v_lshlrev_b32 v{t1}, 1, v{t1}
                    v_xor_b32 v{t2}, v{t2}, v{t1}
                    v_lshl_add_u32 v{t0}, v{t2}, 4, v{t0}
                    v_lshl_add_u32 v{t3}, v{t3}, 3, v{t0}
                    v_xor_b32 v{vpre+1}, s{s_t3}, v{t3}""")
            per_t(fa, t3, 1024)
            for r in [sS, sS+1, sQ, sQ+1]: p.I(f"v_mov_b32 v{r}, 0")
            def wphi_read():
                p.I(f"""v_bfe_u32 v{t0}, v{lane}, 4, 1
                        v_lshlrev_b32 v{t0}, 9, v{t0}
                        v_lshrrev_b32 v{t1}, 5, v{lane}
                        v_lshl_add_u32 v{t0}, v{t1}, 7, v{t0}
                        v_and_b32 v{t1}, 15, v{lane}
                        v_lshl_add_u32 v{t0}, v{t1}, 3, v{t0}
                        s_lshl_b32 s{s_t0}, s{s_w}, 10
                        s_add_u32 s{s_t0}, s{s_t0}, {4*SL+16384}
                        v_add_u32 v{t0}, s{s_t0}, v{t0}""")
                p.wait(vm=['wphi'])
                p.I(f"ds_read_b64_tr_b16 {vr(WP,2)}, v{t0}\n ds_read_b64_tr_b16 {vr(WP+2,2)}, v{t0} offset:256")
            p.I(f"""s_lshl_b32 s{s_t0}, s{s_grp}, 1
                    s_add_u32 s{s_t0}, s{s_t0}, s{s_g}
                    s_lshl_b32 s{s_t0}, s{s_t0}, 10
                    s_add_u32 m0, s{s_mB}, {4*SL+16384}""")
            p.I(f"buffer_load_dwordx4 v{l16}, s[{S_PHI}:{S_PHI+3}], s{s_t0} offen lds", tag='wphi')
            win = {xa: 0, wa: 0, fa: 0}
            def off(reg, target):
                if not (0 <= target - win[reg] <= 65535 - 1024):
                    nw = target // 65536 * 65536
                    d = nw - win[reg]
                    for t in range(4): p.I(f"v_add_u32 v{reg+t}, {d & 0xffffffff}, v{reg+t}")
                    win[reg] = nw
                return target - win[reg]
            def reads(s, t, S):
                if s < 8:
                    b = p1base(s)
                    return [lambda: p.I(f"ds_read_b128 {vr(X+16*s+4*t,4)}, v{xa+t} offset:{off(xa,b)}"),
                            lambda: p.I(f"ds_read_b64_tr_b16 {vr(S,2)}, v{wa+t} offset:{off(wa,b+16384)}"),
                            lambda: p.I(f"ds_read_b64_tr_b16 {vr(S+2,2)}, v{wa+t} offset:{off(wa,b+16384+512)}"),
                            lambda: p.I(f"ds_read_b64_tr_b16 {vr(S+4,2)}, v{wa+t} offset:{off(wa,b+24576)}"),
                            lambda: p.I(f"ds_read_b64_tr_b16 {vr(S+6,2)}, v{wa+t} offset:{off(wa,b+24576+512)}")]
                b = p2base(s - 8)
                return [lambda: p.I(f"ds_read_b64_tr_b16 {vr(S,2)}, v{wa+t} offset:{off(wa,b)}"),
                        lambda: p.I(f"ds_read_b64_tr_b16 {vr(S+2,2)}, v{wa+t} offset:{off(wa,b+512)}"),
                        lambda: p.I(f"ds_read_b64_tr_b16 {vr(S+4,2)}, v{fa+t} offset:{off(fa,b+8192)}"),
                        lambda: p.I(f"ds_read_b64_tr_b16 {vr(S+6,2)}, v{fa+t} offset:{off(fa,b+8192+256)}")]
            def mf(s, t, S):
                a0, a1 = (AK, AV) if s < 8 else (AQ, AF)
                xr = X + 16 * (s % 8) + 4 * t
                first = (s % 8 == 0 and t == 0)
                return [lambda: p.I(f"{MF} {vr(a0,16)}, {vr(S,4)}, {vr(xr,4)}, {0 if first else vr(a0,16)}"),
                        lambda: p.I(f"{MF} {vr(a1,16)}, {vr(S+4,4)}, {vr(xr,4)}, {0 if first else vr(a1,16)}")]
            def ifg0(fn):
                p.I(f"s_cmp_lg_u32 s{s_g}, 0"); p.cond(isg0, "s_cbranch_scc1", fn)
            def barrier(j, pre=None, lg=False):
                if pre: pre()
                w = lambda: p.wait(vm=[('d', j)], lg_all=lg)
                if j >= 10:
                    p.I(f"s_cmp_lg_u32 s{s_g}, 0"); p.rare_else(lambda r, it: r['g'] == 1, "s_cbranch_scc1", w, w)
                else: w()
                p.I("s_barrier")
                passed[0] = j
                if str(j) in os.environ.get('AFINE', '').split(','): st.stamp(p, f'b{j}')
            AEX = SL
            loadsC = [(AQ, s_csg, 0), (AQ + 4, s_csg, 1024)]
            loadsC2 = [(AV + 8, s_csg, 8192), (AV + 12, s_csg, 9216)]
            RED = AEX + 2048
            loadsH1 = [(AK + 8*r + 4*k, s_poff, 32768*r + 1024*k) for r in range(2) for k in range(2)]
            loadsH2 = [(AK + 4*k, s_koff, 1024*k) for k in range(2)]
            def h1_get():
                p.I(f"""s_lshl_b32 s{s_poff}, s{s_grp}, 3
                        s_add_u32 s{s_poff}, s{s_poff}, s{s_w}
                        s_lshl_b32 s{s_poff}, s{s_poff}, 5
                        s_add_u32 s{s_poff}, s{s_poff}, s{s_rb}
                        s_lshl_b32 s{s_poff}, s{s_poff}, 11
                        s_add_u32 s{s_poff}, s{s_poff}, {PART_OFF}""")
                fetch(loadsH1)
            def h1_digest():
                validate(loadsH1)
                p.I(f"""v_add_f32 v{AK}, v{AK}, v{AK+8}
                        v_add_f32 v{AK+1}, v{AK+2}, v{AK+10}
                        v_add_f32 v{AK+2}, v{AK+4}, v{AK+12}
                        v_add_f32 v{AK+3}, v{AK+6}, v{AK+14}
                        s_lshl_b32 s{s_t0}, s{s_w}, 10
                        s_add_u32 s{s_t0}, s{s_t0}, {RED}
                        v_add_u32 v{t3}, s{s_t0}, v{l16}""")
                p.I(f"ds_write_b128 v{t3}, {vr(AK,4)}")
            def h1_reduce():
                p.I(f"v_add_u32 v{t3}, {RED}, v{l16}")
                for k in range(4): p.I(f"ds_read_b128 {vr(AK+4*k,4)}, v{t3} offset:{1024*k}")
                for k in range(1, 4):
                    for e in (0, 2): p.I(pk("v_pk_add_f32", AK+e, AK+e, AK+4*k+e))
                for k in range(1, 4): p.I(f"ds_read_b128 {vr(AK+4*k,4)}, v{t3} offset:{1024*(k+3)}")
                p.I(f"ds_read_b128 {vr(t0,4)}, v{t3} offset:7168")
                for k in range(1, 4):
                    for e in (0, 2): p.I(pk("v_pk_add_f32", AK+e, AK+e, AK+4*k+e))
                for e in (0, 2): p.I(pk("v_pk_add_f32", AK+e, AK+e, t0+e))
                p.I(f"""v_cvt_pk_bf16_f32 v{AK}, v{AK}, v{AK+1}
                        v_cvt_pk_bf16_f32 v{AK+2}, v{AK+2}, v{AK+3}
                        v_mov_b32 v{AK+1}, s{s_non}
                        v_mov_b32 v{AK+3}, s{s_non}
                        s_lshl_b32 s{s_t0}, s{s_grp}, 4
                        s_add_u32 s{s_t0}, s{s_t0}, s{s_rb}
                        s_lshl_b32 s{s_t0}, s{s_t0}, 10
                        s_add_u32 s{s_t0}, s{s_t0}, {KVZ_OFF}""")
                p.I(f"buffer_store_dwordx4 {vr(AK,4)}, v{l16}, s[{S_WS}:{S_WS+3}], s{s_t0} offen sc1")
            loadsS = st_loads(AQ)
            def c_digest(loads, val=True):
                if val: validate(loads)
                corr_prep(loads[0][0], loads[1][0], t2)
                p.I(f"""v_lshlrev_b32 v{t3}, 2, v{lane}
                        s_lshl_b32 s{s_t0}, s{s_i}, 8
                        s_add_u32 s{s_t0}, s{s_t0}, {AEX}
                        v_add_u32 v{t3}, s{s_t0}, v{t3}""")
                p.I(f"ds_write_b32 v{t3}, v{t2}")
            def s_digest():
                stats_final(AQ, M, rstd, M + 1)
                st_addr(t3, AEX + 1024)
                p.I(f"ds_write_b64 v{t3}, {vr(M,2)}")
            def c_read():
                p.I(f"""v_lshlrev_b32 v{t4}, 2, v{lane}
                        s_lshl_b32 s{s_t0}, s{s_g}, 9
                        s_add_u32 s{s_t0}, s{s_t0}, {AEX}
                        v_add_u32 v{t4}, s{s_t0}, v{t4}""")
                p.I(f"ds_read_b32 v{t2}, v{t4}\n ds_read_b32 v{t3}, v{t4} offset:256")
            def k_epilogue():
                E = SET[1]
                c_read()
                st_addr(t4, AEX + 1024)
                p.I(f"ds_read_b64 {vr(M,2)}, v{t4}")
                for r in (M+2, M+3, C+1, C+2, C+3): p.I(f"v_mov_b32 v{r}, 0")
                p.I(f"v_mov_b32 v{sd}, v{M+1}\n v_rcp_f32 v{rstd}, v{M+1}\n v_mov_b32 v{M+1}, 0")
                corr_mf(AK, t2, C, M)
                corr_mf(AV, t3, C, M)
                p.I(f"""v_and_b32 v{t0}, 31, v{lane}
                        s_lshl_b32 s{s_t0}, s{s_i}, 5
                        v_add_u32 v{t0}, s{s_t0}, v{t0}
                        v_lshrrev_b32 v{t1}, 5, v{lane}
                        v_mul_u32_u24 v{t2}, 40, v{t0}
                        v_lshl_add_u32 v{t2}, v{t1}, 3, v{t2}
                        s_mul_i32 s{s_t0}, s{s_g}, 10240
                        s_add_u32 s{s_t0}, s{s_t0}, {TV}
                        v_add_u32 v{sS}, s{s_t0}, v{t2}
                        v_bfe_u32 v{t2}, v{lane}, 1, 3
                        v_xor_b32 v{t2}, v{t2}, v{t1}
                        v_lshlrev_b32 v{t2}, 3, v{t2}
                        v_lshl_add_u32 v{t2}, v{t0}, 6, v{t2}
                        s_lshl_b32 s{s_t0}, s{s_g}, 14
                        s_add_u32 s{s_t0}, s{s_t0}, {TP}
                        v_add_u32 v{sS+1}, s{s_t0}, v{t2}
                        v_xor_b32 v{sQ+1}, 16, v{sS+1}
                        v_mul_f32 v{sQ}, {LOG2E}, v{rstd}
                        v_mov_b32 v{cs}, 0x3f803f80
                        v_mov_b32 v{cs+1}, 0x3f803f80""")
                KB = E
                for i in range(8): p.I(f"v_cvt_pk_bf16_f32 v{KB+i}, v{AK+2*i}, v{AK+2*i+1}")
                p.I(f"{MF} {vr(AK,16)}, {vr(WP,4)}, {vr(KB,4)}, 0")
                for i in range(0, 16, 2): p.I(pk("v_pk_mul_f32", AV+i, AV+i, rstd, bc=(1,)))
                for i in range(8): p.I(f"v_cvt_pk_bf16_f32 v{AV+i}, v{AV+2*i}, v{AV+2*i+1}")
                for h in range(2):
                    p.I(f"ds_write_b64 v{sS}, {vr(AV+4*h,2)} offset:{5120*h}")
                    p.I(f"ds_write_b64 v{sS}, {vr(AV+4*h+2,2)} offset:{5120*h+16}")
                p.I("s_mov_b64 exec, 0xffffffff")
                for h in range(2): p.I(f"ds_write_b64 v{sS}, {vr(cs,2)} offset:{5120*h+32}")
                p.I("s_mov_b64 exec, -1")
                p.I(f"{MF} {vr(AV,16)}, {vr(WP,4)}, {vr(KB+4,4)}, 0")
                for h, (P, Mi) in enumerate(((AK, AK + 8), (AV + 8, AV))):
                    softmax_pm(p, P, Mi, sQ, t0)
                    p.I(f"v_xor_b32 v{t0}, 32, v{sS+1}\n v_xor_b32 v{t1}, 32, v{sQ+1}")
                    p.I(f"ds_write_b64 v{sS+1}, {vr(P,2)} offset:{8192*h}")
                    p.I(f"ds_write_b64 v{sQ+1}, {vr(P+2,2)} offset:{8192*h}")
                    p.I(f"ds_write_b64 v{t0}, {vr(Mi,2)} offset:{8192*h}")
                    p.I(f"ds_write_b64 v{t1}, {vr(Mi+2,2)} offset:{8192*h}")
            def kv_addr():
                p.I(f"""v_lshrrev_b32 v{t0}, 5, v{lane}
                        v_bfe_u32 v{t1}, v{lane}, 2, 2
                        v_lshl_add_u32 v{t2}, v{t0}, 2, v{t1}
                        v_bfe_u32 v{t3}, v{lane}, 3, 1
                        v_lshl_add_u32 v{t0}, v{t0}, 1, v{t3}
                        v_and_b32 v{t1}, 3, v{lane}
                        v_bfe_u32 v{t3}, v{lane}, 4, 1
                        v_lshl_add_u32 v{sS}, v{t3}, 2, v{t1}
                        v_xor_b32 v{t0}, v{t0}, v{sS}
                        v_lshlrev_b32 v{t0}, 3, v{t0}
                        v_lshl_add_u32 v{t0}, v{t2}, 6, v{t0}
                        s_lshl_b32 s{s_t0}, s{s_i}, 13
                        s_add_u32 s{s_t0}, s{s_t0}, {TP}
                        v_add_u32 v{sS}, s{s_t0}, v{t0}
                        v_xor_b32 v{sS+1}, 32, v{sS}
                        v_mul_u32_u24 v{t2}, 40, v{t2}
                        v_lshlrev_b32 v{t1}, 3, v{t1}
                        v_cmp_eq_u32 vcc, 0, v{t3}
                        v_cndmask_b32 v{t1}, 32, v{t1}, vcc
                        v_add_u32 v{t2}, v{t2}, v{t1}
                        s_mul_i32 s{s_t0}, s{s_i}, 5120
                        s_add_u32 s{s_t0}, s{s_t0}, {TV}
                        v_add_u32 v{sQ}, s{s_t0}, v{t2}
                        s_lshl_b32 s{s_poff}, s{s_grp}, 4
                        s_add_u32 s{s_poff}, s{s_poff}, s{s_rb}
                        s_lshl_b32 s{s_poff}, s{s_poff}, 2
                        s_add_u32 s{s_poff}, s{s_poff}, s{s_i}
                        s_lshl_b32 s{s_poff}, s{s_poff}, 13
                        s_add_u32 s{s_poff}, s{s_poff}, {PART_OFF}""")
            def kv_phase():
                def rd(ks):
                    B = AV + 8 * (ks & 1)
                    p.I(f"""ds_read_b64_tr_b16 {vr(B,2)}, v{sS} offset:{1024*ks}
                            ds_read_b64_tr_b16 {vr(B+2,2)}, v{sS+1} offset:{1024*ks+512}
                            ds_read_b64_tr_b16 {vr(B+4,2)}, v{sQ} offset:{640*ks}
                            ds_read_b64_tr_b16 {vr(B+6,2)}, v{sQ} offset:{640*ks+320}""")
                rd(0); rd(1)
                for ks in range(8):
                    B = AV + 8 * (ks & 1)
                    p.I(f"{MF} {vr(AK,16)}, {vr(B,4)}, {vr(B+4,4)}, {vr(AK,16) if ks else 0}")
                    if ks + 2 < 8: rd(ks + 2)
                for r in (AV+9, AV+11, AV+13, AV+15): p.I(f"v_mov_b32 v{r}, s{s_non}")
                for q in range(8):
                    Q = AV + 8 + 4 * (q & 1)
                    p.I(f"v_mov_b32 v{Q}, v{AK+2*q}\n v_mov_b32 v{Q+2}, v{AK+2*q+1}")
                    if q == 4: p.I(f"s_add_u32 s{s_poff}, s{s_poff}, 4096")
                    p.I(f"buffer_store_dwordx4 {vr(Q,4)}, v{l16}, s[{S_WS}:{S_WS+3}], s{s_poff} offen offset:{1024*(q&3)} sc1")
            SPL = int(os.environ.get('ASPL', '40'))
            def sets(n):
                if n < 32: return [SET[0], AF, SET[1]][n % 3]
                if n < SPL + 2: return SET[n % 2]
                return [SET[0], SET[1], AV][(n - SPL) % 3]
            issue_at = {n: n - 2 for n in range(64)}
            issue_at.update({n: n - 1 for n in range(32, SPL)})
            issue_at.update({SPL: 'x', SPL + 1: 'x', SPL + 2: SPL})
            rd = lambda n: reads(n >> 2, n & 3, sets(n))
            p.I(f"s_lshl_b32 s{s_csg}, s{s_i}, 11\n s_add_u32 s{s_csg}, s{s_csg}, s{s_cso}")
            p.I(f"s_add_u32 s{s_koff}, s{s_sto}, 2048")
            pop(2)
            barrier(0)
            st.stamp(p, 'bar0')
            nonce_sample(VF)
            def pre_kv():
                p.I(f"s_and_b32 s{s_t0}, s{s_i}, 1\n s_lshl_b32 s{s_t0}, s{s_t0}, 13\n v_add_u32 v{t0}, s{s_t0}, v{vpre}")
                for t in range(4):
                    for h in range(2): p.I(f"ds_read_b64_tr_b16 {vr(AQ+4*t+2*h,2)}, v{t0} offset:{16384 + 2048*t + 512*h}")
                cs_pre(AQ, cs)
            def pre_st():
                for t in range(2, 4): p.I(f"ds_read_b128 {vr(X+4*t,4)}, v{xa+t}")
                for t in range(4): p.I("\n".join(stat_ops(X + 4 * t, sS, sQ)))
                stats_pre(sS, sQ, M)
            for r in rd(0) + rd(1): r()
            pop(2)
            p.I(f"s_cmp_lg_u32 s{s_g}, 0")
            p.ifelse(isg0, "s_cbranch_scc1", pre_kv, pre_st)
            st.stamp(p, 'pre')
            def pre_qf():
                b = p2base(0)
                def var(reg, base, ks, hs):
                    p.I(f"v_add_u32 v{t0}, {base}, v{reg}")
                    for t in range(4):
                        for h in range(2): p.I(f"ds_read_b64_tr_b16 {vr(AK+4*t+2*h,2)}, v{t0} offset:{ks*t + hs*h}")
                p.I(f"s_bitcmp1_b32 s{s_i}, 0")
                p.ifelse(lambda r, it: r['w'] % 2 == 0, "s_cbranch_scc1", lambda: var(vpre, b, 2048, 512), lambda: var(vpre + 1, b + 8192, 1024, 256))
                p.I(f"s_add_u32 s{s_t2}, s{s_i}, 4")
                cs_pre(AK, cs)
                cs_publish(cs, s_t2)
            def cap(fn):
                p.begin(); fn(); return atoms(p.end())
            def ifg(g, fn):
                p.I(f"s_cmp_lg_u32 s{s_g}, {g}"); p.cond(lambda r, it: r['g'] == g, "s_cbranch_scc1", fn)
            uloads = [(AQ, s_qoff, 0), (AQ + 4, s_qoff, 1024), (AQ + 8, s_hoff, 0), (AQ + 12, s_hoff, 1024)]
            def uget():
                p.I(f"s_cmp_eq_u32 s{s_g}, 0\n s_cselect_b32 s{s_qoff}, s{s_csg}, s{s_sto}\n s_cselect_b32 s{s_hoff}, s{s_csg}, s{s_koff}")
                fetch(uloads)
            env = lambda k, d: int(os.environ.get(k, d))
            H1G, H1D, UG = env('H1G', 50), env('H1D', 56), env('UG', 18)
            events = {
                3: [lambda: nonce_take(VF)], 4: [lambda: ifg(0, lambda: cs_publish(cs, s_i))], 5: [lambda: ifg(1, lambda: stats_publish(M))],
                6: [wphi_read], 10: [lambda: mall_touch(AF + 12)], UG: [uget],
                26: [lambda: validate(uloads)], 28: [lambda: ifg(1, s_digest)], 29: [lambda: ifg(0, lambda: c_digest(loadsC, False))],
                H1G: [h1_get], 52: [lambda: ifg(0, lambda: fetch(loadsC2))], H1D: [h1_digest],
                59: [lambda: rarew(4, h1_reduce)], 60: [lambda: ifg(0, lambda: c_digest(loadsC2))],
            }
            bg = []
            def popn(n):
                for _ in range(2):
                    if npop[0] < 13 + n: pop()
            def steps(n0, n1, extra_bg=()):
                bg.extend(extra_bg)
                for n in range(n0, n1):
                    todo = [m for m in range(64) if issue_at[m] == n]
                    for m in todo:
                        if m % 4 == 0 and not (32 < m < SPL):
                            j = m >> 2
                            if j in (8, 15):
                                while bg: p.extend(bg.pop(0))
                            if j == 8: p.wait(vm=[('d', k) for k in range(8, SPL // 4)])
                            barrier(j, None, lg=j in (8, 15))
                    for f in events.get(n, []): bg.extend(cap(f))
                    take = [bg.pop(0) for _ in range(min(len(bg), env('BGN', 8)))]
                    interleave(p, mf(n >> 2, n & 3, sets(n)),
                               mix([f for m in todo for f in rd(m)], [lambda: popn(n)], [lambda a=a: p.extend(a) for a in take]))
            steps(0, 32)
            st.stamp(p, 'p1')
            snap = (dict(win), list(dq), npop[0], passed[0])
            def restore():
                win.clear(); win.update(snap[0]); dq[:] = snap[1]; npop[0] = snap[2]; passed[0] = snap[3]
            def path0():
                k_epilogue()
                steps(32, SPL, cap(kv_addr))
                while bg: p.extend(bg.pop(0))
            def path1():
                restore()
                steps(32, SPL)
                k_epilogue()
            p.I(f"s_cmp_lg_u32 s{s_g}, 0")
            p.ifelse(isg0, "s_cbranch_scc1", path0, path1)
            st.stamp(p, 'kepi')
            barrier(SPL // 4, None, lg=True)
            for f in rd(SPL) + rd(SPL + 1): f()
            p.I(f"s_cmp_lg_u32 s{s_g}, 0")
            p.ifelse(isg0, "s_cbranch_scc1", kv_phase, pre_qf)
            st.stamp(p, 'kv')
            steps(SPL, 64)
            while bg: p.extend(bg.pop(0))
            assert not dq
            st.stamp(p, 'p2')
            p.I(f"""s_lshl_b32 s{s_hoff}, s{s_rb}, 2
                    s_add_u32 s{s_hoff}, s{s_hoff}, s{s_i}
                    s_mul_i32 s{s_hoff}, s{s_hoff}, 118
                    s_lshl_b32 s{s_t0}, s{s_grp}, 1
                    s_add_u32 s{s_t0}, s{s_t0}, s{s_g}
                    s_add_u32 s{s_qoff}, s{s_hoff}, s{s_t0}
                    s_add_u32 s{s_qoff}, s{s_qoff}, s{s_t0}
                    s_add_u32 s{s_qoff}, s{s_qoff}, 86
                    s_lshl_b32 s{s_qoff}, s{s_qoff}, 10
                    s_add_u32 s{s_hoff}, s{s_hoff}, s{s_t0}
                    s_lshl_b32 s{s_hoff}, s{s_hoff}, 10
                    s_lshl_b32 s{s_koff}, s{s_grp}, 3
                    s_add_u32 s{s_koff}, s{s_koff}, s{s_w}
                    s_lshl_b32 s{s_koff}, s{s_koff}, 11
                    s_add_u32 s{s_koff}, s{s_koff}, {KVZ_OFF}""")
            p.wait(lg_all=True)
            p.I("s_barrier")
            c_read()
            corr_mf(AQ, t2, C, M)
            corr_mf(AF, t3, C, M)
            late = [lambda: bpf_setup(vx, 0)] + [f for s in range(7) for f in bpf(s, vx, 0)]
            QB, D0, D1, KZ = X, X + 16, X + 32, X + 48
            for i in range(8): p.I(f"v_cvt_pk_bf16_f32 v{QB+i}, v{AQ+2*i}, v{AQ+2*i+1}")
            p.I(f"{MF} {vr(D0,16)}, {vr(WP,4)}, {vr(QB,4)}, 0")
            p.I(f"{MF} {vr(D1,16)}, {vr(WP,4)}, {vr(QB+4,4)}, 0")
            f_consts(rstd, sd, c1, irs2)
            f_epilogue(AF, c1, irs2, SET[1], f"s{s_hoff} offen")
            fetch(loadsH2)
            st.stamp(p, 'epi2')
            p.I(f"v_mul_f32 v{sQ}, {LOG2E}, v{rstd}")
            softmax_pm(p, D0, D0 + 8, sQ, t0)
            softmax_pm(p, D1 + 8, D1, sQ, t0)
            st.stamp(p, 'smq')
            validate(loadsH2)
            p.I(f"""v_mov_b32 v{AK+1}, v{AK+2}
                    v_mov_b32 v{AK+2}, v{AK+4}
                    v_mov_b32 v{AK+3}, v{AK+6}
                    s_lshl_b32 s{s_t0}, s{s_w}, 10
                    s_add_u32 s{s_t0}, s{s_t0}, {RED}
                    v_add_u32 v{t3}, s{s_t0}, v{l16}
                    s_lshl_b32 s{s_t0}, s{s_g}, 12
                    s_add_u32 s{s_t0}, s{s_t0}, {RED}
                    v_add_u32 v{t2}, s{s_t0}, v{l16}""")
            p.I(f"ds_write_b128 v{t3}, {vr(AK,4)}")
            p.wait(lg_all=True)
            p.I("s_barrier")
            for k in range(4): p.I(f"ds_read_b128 {vr(KZ+4*k,4)}, v{t2} offset:{1024*k}")
            for h, (P, Mi, O) in enumerate(((D0, D0 + 8, AQ), (D1 + 8, D1, AF))):
                p.I(f"{MF} {vr(O,16)}, {vr(KZ+8*h,4)}, {vr(P,4)}, 0")
                p.I(f"{MF} {vr(O,16)}, {vr(KZ+8*h+4,4)}, {vr(Mi,4)}, {vr(O,16)}")
            for h, O in enumerate((AQ, AF)):
                p.I(f"v_add_f32 v{t0}, 0x358637bd, v{O+8}\n v_rcp_f32 v{t0}, v{t0}")
                for i in range(0, 8, 2): p.I(pk("v_pk_mul_f32", O+i, O+i, t0, bc=(1,)))
                for i in range(4): p.I(f"v_cvt_pk_bf16_f32 v{O+i}, v{O+2*i}, v{O+2*i+1}")
                p.I(f"buffer_store_dwordx4 {vr(O,4)}, v{l16}, s[{S_WS}:{S_WS+3}], s{s_qoff} offen offset:{1024*h} sc1", tag='hst')
            st.stamp(p, 'end')
            for f in late: f()
            finish(0)
        p.begin(); prologue(); pro = p.end()
        p.begin(); body(); bod = p.end()
        A = [w for w in range(256) if (w >> 6) < 2]
        info['A0'] = (A, [0, 1, 2, 3], list(st.names)); info['A1'] = (A, [5, 6, 7], list(st.names)); info['Ared'] = (A, [4], list(st.names))
        return pro, bod, V.next

    def phase2():
        V = Regs('v', BASE, 256)
        S_A, S_B, S_OUT = S_QKV, S_W2, S_WM
        s_ao, s_bo2, s_as, s_bs, s_k0, s_fo = s_kc, s_woff, s_mslot, s_mA, s_mB, s_rd
        NST = 12
        p.label(f"{name}_ph2")
        p.I(f"s_cmp_lt_u32 s{s_w}, 4")
        nsteps = lambda s: 6 if s == 8 else 8
        def aloader():
            VF = V.alloc(2, 2); vfa = V.alloc()
            p.I(f"""v_and_b32 v{vfa}, 7, v{lane}
                    v_lshlrev_b32 v{vfa}, 7, v{vfa}
                    s_lshr_b32 s{s_fo}, s{s_rb2}, 1
                    s_lshl_b32 s{s_fo}, s{s_fo}, 10
                    s_add_u32 s{s_fo}, s{s_fo}, {FL_OFF + 128*128}""")
            flag_sample(p, VF, vfa, S_WS, s_fo)
            p.I(f"""s_lshl_b32 s{s_as}, s{s_rb2}, 1
                    s_and_b32 s{s_t0}, s{s_w}, 1
                    s_add_u32 s{s_as}, s{s_as}, s{s_t0}
                    s_mul_i32 s{s_as}, s{s_as}, {HO_RU}
                    s_lshl_b32 s{s_bs}, s{s_t0}, 13""")
            flag_wait(p, VF, vfa, S_WS, s_fo, s_non, s_t1)
            st.n = NST; st.stamp(p, 'flF')
            p.I(f"s_sub_u32 s{s_fo}, s{s_fo}, {128*128}")
            def issue(s):
                if s == 9:
                    flag_wait(p, VF, vfa, S_WS, s_fo, s_non, s_t1)
                    st.stamp(p, 'flA')
                kap0(s, s_k0)
                p.I(f"""s_lshl_b32 s{s_ao}, s{s_k0}, 10
                        s_add_u32 s{s_ao}, s{s_ao}, s{s_as}
                        s_add_u32 m0, s{s_bs}, {ABASE + (s % 3) * 16384}""")
                for e in range(nsteps(s)):
                    if e == 4: p.I(f"s_add_u32 s{s_ao}, s{s_ao}, 4096\n s_add_u32 m0, m0, 4096")
                    p.I(f"buffer_load_dwordx4 v{l16}, s[{S_WS}:{S_WS+3}], s{s_ao} offen offset:{1024*(e&3)} {'sc1' if 'asc1' in OPT else ''} lds", tag=('a', s))
                if s == 8: flag_sample(p, VF, vfa, S_WS, s_fo)
            for s in range(3): issue(s)
            for s in range(15):
                p.wait(vm=[('a', s)])
                p.I("s_barrier")
                if s >= 1 and s + 2 < 15: issue(s + 2)
            st.stamp(p, 'fin')
        def bloader():
            vB = V.alloc(4)
            vb_calc(vB, 4)
            p.wait(vm_all=True)
            p.I(f"s_and_b32 s{s_t0}, s{s_w}, 1\n s_lshl_b32 s{s_as}, s{s_t0}, 16\n s_lshl_b32 s{s_bs}, s{s_t0}, 13")
            p.I(f"s_mul_i32 s{s_fo}, s{s_bs0}, 16384")
            def issue(s):
                if s == 11: srd(p, S_B, WO_P, 512*1024)
                if s < 11:
                    kap0(s, s_k0); p.I(f"s_lshl_b32 s{s_bo2}, s{s_k0}, 14")
                else: p.I(f"s_mov_b32 s{s_bo2}, {(s - 11) * 8 * 16384}")
                p.I(f"""s_add_u32 s{s_bo2}, s{s_bo2}, s{s_as}
                        s_add_u32 m0, s{s_fo}, s{s_bs}
                        s_add_u32 m0, m0, {BBASE}
                        s_add_u32 s{s_fo}, s{s_fo}, 16384
                        s_cmp_ge_u32 s{s_fo}, {7*16384}
                        s_cselect_b32 s{s_fo}, 0, s{s_fo}""")
                for m in range(8):
                    if m == 4: p.I(f"s_add_u32 s{s_bo2}, s{s_bo2}, 32768\n s_add_u32 m0, m0, 4096")
                    p.I(f"buffer_load_dwordx4 v{vB+(m&3)}, s[{S_B}:{S_B+3}], s{s_bo2} offen offset:{1024*(m&3)} lds", tag=('b', s))
            for s in range(15):
                p.wait(vm=[('b', s)])
                p.I("s_barrier")
                if s >= 1 and s + 6 < 15: issue(s + 6)
            st.n = NST; st.stamp(p, 'fin')
        def consumer():
            cA = V.alloc(); cB = V.alloc(); aA = V.alloc(); aB = V.alloc(); vO = V.alloc(); vXr = V.alloc()
            ACC = V.alloc(16, 4); FA = V.alloc(32, 4); FB = V.alloc(32, 4); XR = V.alloc(8, 2)
            srd(p, S_X, X_P, 2048*1024); srd(p, S_OUT, OUT_P, 2048*1024)
            p.I(f"""s_lshl_b32 s{s_t0}, s{s_rb2}, 1
                    s_and_b32 s{s_t1}, s{s_w}, 1
                    s_add_u32 s{s_t0}, s{s_t0}, s{s_t1}
                    s_lshl_b32 s{s_t0}, s{s_t0}, 15
                    s_lshl_b32 s{s_t2}, s{s_ct2}, 7
                    s_add_u32 s{s_t0}, s{s_t0}, s{s_t2}
                    s_lshr_b32 s{s_t2}, s{s_w}, 1
                    s_lshl_b32 s{s_t3}, s{s_t2}, 6
                    s_add_u32 s{s_t0}, s{s_t0}, s{s_t3}
                    v_and_b32 v{t0}, 31, v{lane}
                    v_lshlrev_b32 v{t0}, 10, v{t0}
                    v_add_u32 v{t0}, s{s_t0}, v{t0}
                    v_lshrrev_b32 v{t1}, 5, v{lane}
                    v_lshl_add_u32 v{vO}, v{t1}, 4, v{t0}
                    v_lshl_add_u32 v{vXr}, v{t1}, 3, v{t0}""")
            for q in range(4):
                p.I(f"buffer_load_dwordx2 {vr(XR+2*q,2)}, v{vXr}, s[{S_X}:{S_X+3}], 0 offen offset:{16*q}")
            p.I(f"""s_lshl_b32 s{s_t1}, s{s_t1}, 13
                    v_add_u32 v{cA}, s{s_t1}, v{l16}
                    v_lshrrev_b32 v{t0}, 5, v{lane}
                    v_bfe_u32 v{t1}, v{lane}, 2, 2
                    v_lshl_add_u32 v{t0}, v{t0}, 2, v{t1}
                    v_lshlrev_b32 v{cB}, 7, v{t0}
                    v_bfe_u32 v{t0}, v{lane}, 4, 1
                    v_bfe_u32 v{t1}, v{lane}, 1, 1
                    v_lshl_add_u32 v{t0}, v{t0}, 1, v{t1}
                    s_lshl_b32 s{s_t2}, s{s_t2}, 2
                    v_add_u32 v{t0}, s{s_t2}, v{t0}
                    v_bfe_u32 v{t1}, v{lane}, 3, 1
                    v_lshlrev_b32 v{t1}, 2, v{t1}
                    v_xor_b32 v{t0}, v{t0}, v{t1}
                    v_lshl_add_u32 v{cB}, v{t0}, 4, v{cB}
                    v_and_b32 v{t0}, 1, v{lane}
                    v_lshl_add_u32 v{cB}, v{t0}, 3, v{cB}
                    v_add_u32 v{cB}, {BBASE}, v{cB}
                    s_mov_b32 s{s_as}, 0
                    s_mul_i32 s{s_bs}, s{s_bs0}, 16384
                    s_mov_b32 s{s_it}, 0""")
            for i in range(0, 16, 2): p.I(f"v_mov_b64 {vr(ACC+i,2)}, 0")
            for i in range(16, 32, 2): p.I(f"v_mov_b64 {vr(FA+i,2)}, 0\n v_mov_b64 {vr(FB+i,2)}, 0")
            p.wait(vm_all=True)
            def rd(e):
                p.I(f"ds_read_b128 {vr(FA+4*e,4)}, v{aA} offset:{1024*e}")
                p.I(f"ds_read_b64_tr_b16 {vr(FB+4*e,2)}, v{aB} offset:{e*2048}")
                p.I(f"ds_read_b64_tr_b16 {vr(FB+4*e+2,2)}, v{aB} offset:{e*2048+1024}")
            mf = lambda e: p.I(f"{MF} {vr(ACC,16)}, {vr(FB+4*e,4)}, {vr(FA+4*e,4)}, {vr(ACC,16)}")
            def body():
                p.I(f"v_add_u32 v{aA}, s{s_as}, v{cA}\n v_add_u32 v{aB}, s{s_bs}, v{cB}")
                p.wait(lg_all=True)
                p.I("s_barrier")
                for e in range(4): rd(e)
                mf(4); mf(5)
                p.I(f"s_cmp_eq_u32 s{s_it}, 9")
                p.cond(lambda r, it: it != 9, "s_cbranch_scc1", lambda: (mf(6), mf(7)))
                for e in range(4):
                    rd(4 + e)
                    mf(e)
                p.I(f"""s_add_u32 s{s_as}, s{s_as}, 16384
                        s_cmp_ge_u32 s{s_as}, {3*16384}
                        s_cselect_b32 s{s_as}, 0, s{s_as}
                        s_add_u32 s{s_bs}, s{s_bs}, 16384
                        s_cmp_ge_u32 s{s_bs}, {7*16384}
                        s_cselect_b32 s{s_bs}, 0, s{s_bs}
                        s_add_u32 s{s_it}, s{s_it}, 1""")
            p.loop(15, body, f"{name}_cl", f"s_cmp_lt_u32 s{s_it}, 15\n s_cbranch_scc1 {name}_cl")
            for e in range(4, 8): mf(e)
            for i in range(8):
                p.I(f"v_lshlrev_b32 v{FA+2*i}, 16, v{XR+i}")
                p.I(f"v_and_b32 v{FA+2*i+1}, 0xffff0000, v{XR+i}")
            for i in range(0, 16, 2): p.I(pk("v_pk_add_f32", FA+i, FA+i, ACC+i))
            for i in range(8): p.I(f"v_cvt_pk_bf16_f32 v{FB+i}, v{FA+2*i}, v{FA+2*i+1}")
            for h in range(2):
                p.I(f"v_permlane32_swap_b32 v{FB+4*h}, v{FB+4*h+2}")
                p.I(f"v_permlane32_swap_b32 v{FB+4*h+1}, v{FB+4*h+3}")
                p.I(f"buffer_store_dwordx4 {vr(FB+4*h,4)}, v{vO}, s[{S_OUT}:{S_OUT+3}], 0 offen offset:{32*h}")
            st.n = NST; st.stamp(p, 'fin')
        def loaders():
            p.I(f"s_cmp_lt_u32 s{s_w}, 6")
            p.ifelse(lambda r, it: r['w'] < 6, "s_cbranch_scc0", aloader, bloader)
        p.ifelse(lambda r, it: r['w'] < 4, "s_cbranch_scc0", consumer, loaders)
        st.flush(p, S_WS, t0, s_w)
    pf0, bf0, u0 = ftype(0); pf1, bf1, u1 = ftype(1); pa, ba, ua = atype()
    for pred, items in ((isF(0), pf0), (isF(1), pf1), (isA, pa), (isA, ba), (isF(0), bf0), (isF(1), bf1)):
        p.add(Cond(pred, items))
    st.names = []
    phase2()
    p.label(f"{name}_end")
    p.I("s_endpgm")
    roles = [dict(type=t, g=w >> 2, w=w, **x) for t in 'AF' for w in range(8) for x in ({}, {'slow': True})] + [dict(type='A', g=0, w=0, wg0=True)]
    lines = finalize(p.cur, roles) + [f'{name}_last:', '  s_endpgm']
    print("kf vgprs", u0, u1, ua)
    def pad(n, extra): return n + ['-'] * (12 - len(n)) + extra
    Aw, Fw = info['A0'][0], info['F0'][0]
    info = {'Acons': (Aw, [0,1,2,3], pad(info['A0'][2], ['fin'])), 'Aald': (Aw, [4,5], pad(info['A0'][2], ['flF', 'flA', 'fin'])), 'Abld': (Aw, [6,7], pad(info['A0'][2], ['fin'])),
            'Fcons': (Fw, [0,1,2,3], pad(info['F0'][2], ['fin'])), 'Fald': (Fw, [4,5], pad(info['F1'][2], ['flF', 'flA', 'fin'])), 'Fbld': (Fw, [6,7], pad(info['F1'][2], ['fin']))}
    return lines, max(u0, u1, ua), info
```

```python
from asmlib import *
import os

HO_OFF   = 0
NSLOT = 118
HO_RU    = NSLOT * 1024
QF_OFF   = 8 << 20
PART_OFF = 8 << 20
KVZ_OFF  = 12 << 20
STAMP_OFF = 13 << 20
ST_OFF   = 14 << 20
FL_OFF   = (14 << 20) + (512 << 10)
NONCE_OFF = (14 << 20) + (768 << 10)
CS_OFF   = 15 << 20
WS_BYTES = 16 << 20
LOG2E = 0x3fb8aa3b

def srd(p, s, base, nbytes):
    p.I(f"""s_mov_b32 s{s}, s{base}
            s_mov_b32 s{s+1}, s{base+1}
            s_mov_b32 s{s+2}, {nbytes}
            s_mov_b32 s{s+3}, 0x20000""")

def load_args(p):
    p.I("""s_load_dwordx16 s[4:19], s[0:1], 0
           s_load_dwordx4 s[20:23], s[0:1], 64
           s_load_dwordx2 s[24:25], s[0:1], 80""")
X_P, WQKV_P, WPHI_P, WO_P, W1_P, W3_P, W2_P, OUT_P, DBG_P, WS_P = 4, 6, 8, 10, 14, 16, 18, 20, 22, 24

def pk(op, d, a, b, c=None, bc=(), neg=()):
    ops = [a, b] + ([c] if c is not None else [])
    n = len(ops)
    lo, hi, txt = [], [], []
    for i, o in enumerate(ops):
        if isinstance(o, str): txt.append(o); lo.append(0); hi.append(0 if i in bc else 1)
        elif i in bc:
            assert o % 2 == 0, 'broadcast scalars must sit in even registers (op_sel=1 misbehaved on hardware)'
            txt.append(vr(o, 2)); lo.append(0); hi.append(0)
        else:
            assert o % 2 == 0, o
            txt.append(vr(o, 2)); lo.append(0); hi.append(1)
    assert d % 2 == 0
    s = f"{op} {vr(d,2)}, " + ", ".join(txt)
    if any(lo): s += " op_sel:[" + ",".join(map(str, lo)) + "]"
    if not all(hi): s += " op_sel_hi:[" + ",".join(map(str, hi)) + "]"
    if neg:
        m = "[" + ",".join('1' if i in neg else '0' for i in range(n)) + "]"
        s += f" neg_lo:{m} neg_hi:{m}"
    return s

def softmax_pm(p, P, M, sc, T, hook=lambda: None):
    a, b, c, c2 = T, T+1, T+2, T+4
    scl = sc
    sc1 = scl.replace('[', '').split(':')[0] if isinstance(sc, str) else f"v{sc}"
    p.I(f"""v_max3_f32 v{a}, v{P}, v{P+1}, v{P+2}
            v_max3_f32 v{b}, -v{P}, -v{P+1}, -v{P+2}
            v_max3_f32 v{c}, v{P+3}, v{P+4}, v{P+5}
            v_max3_f32 v{c2}, -v{P+3}, -v{P+4}, -v{P+5}
            v_max3_f32 v{a}, v{a}, v{P+6}, v{P+7}
            v_max3_f32 v{b}, v{b}, -v{P+6}, -v{P+7}
            v_max_f32 v{a}, v{a}, v{c}
            v_max_f32 v{b}, v{b}, v{c2}
            v_permlane32_swap_b32 v{a}, v{b}
            v_max_f32 v{c}, v{a}, v{b}
            v_mul_f32 v{c}, {sc1}, v{c}
            v_mov_b32 v{c2}, v{c}
            v_permlane32_swap_b32 v{c}, v{c2}""")
    SMX = os.environ.get('SMX', '')
    if 'n' in SMX: p.I("s_nop 4")
    if 'f' in SMX:
        for i in range(8):
            p.I(f"v_fma_f32 v{M+i}, -v{P+i}, {sc1}, -v{c2}")
            p.I(f"v_fma_f32 v{P+i}, v{P+i}, {sc1}, -v{c}")
    elif 'o' in SMX:
        for i in range(0, 8, 2): p.I(pk("v_pk_fma_f32", M+i, P+i, scl, c2, bc=(1, 2), neg=(0, 2)))
        for i in range(0, 8, 2): p.I(pk("v_pk_fma_f32", P+i, P+i, scl, c, bc=(1, 2), neg=(2,)))
    else:
      for i in range(0, 8, 2):
        p.I(pk("v_pk_fma_f32", M+i, P+i, scl, c2, bc=(1, 2), neg=(0, 2)))
        p.I(pk("v_pk_fma_f32", P+i, P+i, scl, c, bc=(1, 2), neg=(2,)))
    hook()
    for i in range(8):
        p.I(f"v_exp_f32 v{M+i}, v{M+i}")
        p.I(f"v_exp_f32 v{P+i}, v{P+i}")
    p.I(pk("v_pk_add_f32", c, P, P+2)); p.I(pk("v_pk_add_f32", c2, M, M+2))
    p.I(pk("v_pk_add_f32", a, P+4, P+6)); p.I(pk("v_pk_add_f32", c2, c2, M+4))
    p.I(pk("v_pk_add_f32", c, c, a)); p.I(pk("v_pk_add_f32", c2, c2, M+6))
    p.I(f"""v_add_f32 v{a}, v{c}, v{c+1}
            v_add_f32 v{b}, v{c2}, v{c2+1}
            v_permlane32_swap_b32 v{a}, v{b}
            v_add_f32 v{c}, v{a}, v{b}
            v_rcp_f32 v{c}, v{c}
            v_mov_b32 v{c2}, v{c}
            v_permlane32_swap_b32 v{c}, v{c2}""")
    hook()
    for i in range(0, 8, 2):
        p.I(pk("v_pk_mul_f32", P+i, P+i, c, bc=(1,)))
        p.I(pk("v_pk_mul_f32", M+i, M+i, c2, bc=(1,)))
    for i in range(4):
        p.I(f"v_cvt_pk_bf16_f32 v{P+i}, v{P+2*i}, v{P+2*i+1}")
        p.I(f"v_cvt_pk_bf16_f32 v{M+i}, v{M+2*i}, v{M+2*i+1}")

class Stamper:
    def __init__(self, on, sbase, kid, vreg=255):
        self.on, self.sbase, self.n, self.kid, self.v = on, sbase, 0, kid, vreg
        self.names = []
    def stamp(self, p, name):
        if not self.on: return
        skip = os.environ.get('STSKIP', '').split(',')
        if name in skip: return
        s = self.sbase
        p.I(f"{os.environ.get('STAMPOP','s_memrealtime')} s[{s}:{s+1}]")
        p.I("s_waitcnt lgkmcnt(0)")
        p.I(f"v_writelane_b32 v{self.v}, s{s}, {self.n}", keep=True)
        self.n += 1; self.names.append(name)
        assert self.n <= 16
    def stamp_dyn(self, p, name, s_it, count):
        if not self.on: return
        s = self.sbase
        p.I(f"{os.environ.get('STAMPOP','s_memrealtime')} s[{s}:{s+1}]")
        p.I(f"s_add_u32 s{s-1}, s{s_it}, {self.n}")
        p.I("s_waitcnt lgkmcnt(0)")
        p.I(f"s_lshl_b64 exec, 1, s{s-1}\n v_mov_b32 v{self.v}, s{s}\n s_mov_b64 exec, -1", keep=True)
        self.n += count; self.names += [f"{name}{k}" for k in range(count)]
        assert self.n <= 16
    def flush(self, p, ws_srd, vt, wave_s):
        if not self.on: return
        p.I(f"""s_lshl_b32 s3, s2, 3
                s_add_u32 s3, s3, s{wave_s}
                s_lshl_b32 s3, s3, 6
                s_add_u32 s3, s3, {STAMP_OFF + self.kid * (1<<19)}
                v_and_b32 v{vt}, 63, v0
                v_lshlrev_b32 v{vt}, 2, v{vt}
                s_mov_b64 exec, 0xffff
                buffer_store_dword v{self.v}, v{vt}, s[{ws_srd}:{ws_srd+3}], s3 offen""")

def kernel_desc(name, vgpr, sgpr=102):
    return f""".section .rodata,"a"
.p2align 6
.amdhsa_kernel {name}
  .amdhsa_next_free_vgpr {vgpr}
  .amdhsa_next_free_sgpr {sgpr}
  .amdhsa_accum_offset {(vgpr+3)//4*4}
  .amdhsa_group_segment_fixed_size 0
  .amdhsa_kernarg_size 88
  .amdhsa_user_sgpr_count 2
  .amdhsa_user_sgpr_kernarg_segment_ptr 1
  .amdhsa_system_sgpr_workgroup_id_x 1
.end_amdhsa_kernel
"""
def kernel_head(name):
    return f""".text
.globl {name}
.p2align 8
.type {name},@function
{name}:
"""

def flag_sample(p, vf, vaddr, S_WS, s_off):
    p.I(f"buffer_load_dwordx2 {vr(vf,2)}, v{vaddr}, s[{S_WS}:{S_WS+3}], s{s_off} offen sc1")

def flag_wait(p, vf, vaddr, S_WS, s_off, s_nonce, s_a):
    p.I(f"v_cmp_eq_u64 vcc, s[{s_nonce}:{s_nonce+1}], {vr(vf,2)}")
    p.I("s_cmp_eq_u64 vcc, -1")
    def slow():
        lab = p.newlabel('Lspin'); done = p.newlabel('Lspind')
        p.I(f"s_mov_b32 s{s_a}, 0")
        p.label(lab)
        flag_sample(p, vf, vaddr, S_WS, s_off)
        p.I("s_waitcnt vmcnt(0)")
        p.I(f"v_cmp_eq_u64 vcc, s[{s_nonce}:{s_nonce+1}], {vr(vf,2)}")
        p.I(f"""s_add_u32 s{s_a}, s{s_a}, 1
                s_cmp_ge_u32 s{s_a}, 0x40000
                s_cbranch_scc1 {done}
                s_cmp_eq_u64 vcc, -1
                s_cbranch_scc0 {lab}""")
        p.label(done)
    p.rare(lambda r, it: r.get('slow', False), "s_cbranch_scc0", slow)

def nonce_get(p, vf, vzero, S, s_off, s_nonce, s_a):
    p.I(f"v_readfirstlane_b32 s{s_nonce}, v{vf}\n v_readfirstlane_b32 s{s_nonce+1}, v{vf+1}")
    p.I(f"s_cmp_lg_u64 s[{s_nonce}:{s_nonce+1}], 0")
    def slow():
        lab = p.newlabel('Lnsp'); done = p.newlabel('Lnspd')
        p.I(f"s_mov_b32 s{s_a}, 0")
        p.label(lab)
        p.I(f"buffer_load_dwordx2 {vr(vf,2)}, v{vzero}, s[{S}:{S+3}], {s_off} offen sc1")
        p.I("s_waitcnt vmcnt(0)")
        p.I(f"v_readfirstlane_b32 s{s_nonce}, v{vf}\n v_readfirstlane_b32 s{s_nonce+1}, v{vf+1}")
        p.I(f"""s_add_u32 s{s_a}, s{s_a}, 1
                s_cmp_ge_u32 s{s_a}, 0x40000
                s_cbranch_scc1 {done}
                s_cmp_eq_u64 s[{s_nonce}:{s_nonce+1}], 0
                s_cbranch_scc1 {lab}""")
        p.label(done)
    p.rare(lambda r, it: r.get('slow', False), "s_cbranch_scc0", slow)

def flag_raise(p, vt, S_WS, s_off, s_nonce):
    p.I(f"""v_mov_b32 v{vt}, s{s_nonce}
            v_mov_b32 v{vt+1}, s{s_nonce+1}
            v_mov_b32 v{vt+2}, 0
            s_mov_b64 exec, 1""")
    p.I(f"buffer_store_dwordx2 {vr(vt,2)}, v{vt+2}, s[{S_WS}:{S_WS+3}], s{s_off} offen sc1")
    p.I("s_mov_b64 exec, -1")
```

```python
from common import *
import os

MF = "v_mfma_f32_32x32x16_bf16"

def interleave(p, mains, fills):
    n, k = len(mains), 0
    for i, m in enumerate(mains):
        m()
        upto = (len(fills) * (i + 1) + n - 1) // n
        while k < upto:
            fills[k](); k += 1

def mix(*lists):
    items = []
    for li, l in enumerate(lists):
        for j, x in enumerate(l): items.append(((j + 0.5) / len(l), li, j, x))
    items.sort(key=lambda t: t[:3])
    return [t[3] for t in items]

def gen_kf(name, stamps=False):
    OPT = os.environ.get('K1OPT', '').split(',')
    HSC = '' if 'nohsc' in OPT else 'sc1'
    p = Prog('A')
    st = Stamper(stamps, 100, 0, 8)
    S_WS, S_X, S_W1, S_W3, S_WM, S_QKV, S_PHI, S_DBG = 28, 32, 36, 40, 44, 48, 52, 56
    (s_w, s_i, s_g, s_rb, s_grp, s_rot, s_t0, s_t1, s_t2, s_t3, s_ci, s_kc, s_xoff, s_woff, s_mslot, s_it,
     s_mA, s_mB, s_rd, s_hoff, s_ds, s_qoff, s_poff, s_fl, s_koff, s_voff, s_rslot, s_col, s_sto, s_flr) = range(60, 90)
    s_cso = 93; s_csg = 94; s_pf = 95; s_pair = 96
    s_ct2, s_rb2, s_rot2, s_bs0, s_bo = 26, 27, 3, 98, s_xoff
    NA = int(os.environ.get('NA', '4')); NB = 10 - NA
    S_W2 = S_W1; ABASE, BBASE = 0, NA * 16384
    NEB = int(os.environ.get('NEB', '0'))
    s_non = 90
    s_wit = 92
    lane, l16, t0, t1, t2, t3, t4, t5, vstamp, v9 = range(10)
    BASE = 10
    drop = tuple(x[5:] for x in OPT if x.startswith('drop_'))
    isA = lambda r, it: r['type'] == 'A'
    isF = lambda g: (lambda r, it: r['type'] == 'F' and r['g'] == g)
    isw0 = lambda r, it: r['w'] == 0
    isg0 = lambda r, it: r['g'] == 0
    p.I("s_cmp_ge_u32 s2, 256")
    p.I(f"s_cbranch_scc1 {name}_end")
    st.stamp(p, 'start')
    if stamps: p.I('s_mov_b32 s98, 0')
    load_args(p)
    p.I(f"""v_lshrrev_b32 v{t0}, 6, v0
            v_and_b32 v{lane}, 63, v0
            s_getreg_b32 s{s_t2}, hwreg(HW_REG_XCC_ID)
            v_readfirstlane_b32 s{s_w}, v{t0}
            s_and_b32 s{s_t2}, s{s_t2}, 7
            s_lshr_b32 s{s_ci}, s2, 6
            v_mov_b32 v{t2}, 0
            v_lshlrev_b32 v{l16}, 4, v{lane}
            s_cmp_lg_u32 s{s_w}, 0""")
    def ticket():
        lab = p.newlabel('Ltk')
        p.I("s_waitcnt lgkmcnt(0)")
        srd(p, S_DBG, DBG_P, 256)
        p.I("s_cmp_eq_u32 s2, 0")
        def pub():
            p.I(f"s_memrealtime s[{s_non}:{s_non+1}]\n s_waitcnt lgkmcnt(0)")
            p.I(f"v_mov_b32 v{t0}, s{s_non}\n v_mov_b32 v{t1}, s{s_non+1}\n s_mov_b64 exec, 1")
            p.I(f"buffer_store_dwordx2 {vr(t0,2)}, v{t2}, s[{S_DBG}:{S_DBG+3}], 0 offen offset:128 sc1")
            p.I("s_mov_b64 exec, -1")
        p.rare(lambda r, it: r.get('wg0', False), "s_cbranch_scc1", pub)
        p.I(f"s_mov_b64 exec, 1\n s_sub_u32 s{s_t2}, s{s_t2}, 1\n s_mov_b32 s{s_t3}, 0")
        p.label(lab)
        p.I(f"""s_add_u32 s{s_t2}, s{s_t2}, 1
                s_and_b32 s{s_t2}, s{s_t2}, 7
                s_lshl_b32 s{s_t0}, s{s_t2}, 2
                s_add_u32 s{s_t0}, s{s_t0}, s{s_ci}
                s_lshl_b32 s{s_t0}, s{s_t0}, 2
                v_mov_b32 v{t3}, 1""")
        p.I(f"buffer_atomic_add v{t3}, v{t2}, s[{S_DBG}:{S_DBG+3}], s{s_t0} offen sc0 sc1")
        p.I(f"""v_readfirstlane_b32 s{s_t1}, v{t3}
                s_add_u32 s{s_t3}, s{s_t3}, 1
                s_cmp_ge_u32 s{s_t3}, 8
                s_cselect_b32 s{s_t0}, 0, s{s_t1}
                s_cmp_ge_u32 s{s_t0}, 8
                s_cbranch_scc1 {lab}
                s_and_b32 s{s_t1}, s{s_t1}, 7
                s_lshl_b32 s{s_t1}, s{s_t1}, 3
                s_add_u32 s{s_t1}, s{s_t1}, s{s_t2}
                v_mov_b32 v{t3}, s{s_t1}""")
        p.I(f"ds_write_b32 v{t2}, v{t3}")
        p.I("s_mov_b64 exec, -1")
        p.wait(lg_all=True)
    if 'ticket' in OPT:
        p.cond(lambda r, it: r['w'] == 0, "s_cbranch_scc1", ticket)
        p.I("s_barrier")
        p.I(f"ds_read_b32 v{t3}, v{t2}")
        p.I(f"""v_readfirstlane_b32 s{s_t1}, v{t3}
                s_lshl_b32 s2, s{s_ci}, 6
                s_add_u32 s2, s2, s{s_t1}""")
        p.I("s_barrier")
    else:
        p.I(f"s_lshl_b32 s{s_t0}, s{s_w}, 8\n s_add_u32 s{s_t0}, s{s_t0}, s2\n s_cmp_eq_u32 s{s_t0}, 0")
        def pub0():
            p.I("s_waitcnt lgkmcnt(0)")
            srd(p, S_DBG, DBG_P, 256)
            p.I(f"s_memrealtime s[{s_non}:{s_non+1}]\n s_waitcnt lgkmcnt(0)")
            p.I(f"v_mov_b32 v{t0}, s{s_non}\n v_mov_b32 v{t1}, s{s_non+1}\n s_mov_b64 exec, 1")
            p.I(f"buffer_store_dwordx2 {vr(t0,2)}, v{t2}, s[{S_DBG}:{S_DBG+3}], 0 offen offset:128 sc1")
            p.I("s_mov_b64 exec, -1")
        p.rare(lambda r, it: r.get('wg0', False), "s_cbranch_scc1", pub0)
    p.I(f"""s_nop 0
            s_and_b32 s{s_t0}, s2, 7
            s_lshr_b32 s{s_t1}, s2, 3
            s_and_b32 s{s_t2}, s{s_t1}, 7
            s_and_b32 s{s_rb}, s{s_t0}, 1
            s_lshl_b32 s{s_rb}, s{s_rb}, 3
            s_add_u32 s{s_rb}, s{s_rb}, s{s_t2}
            s_and_b32 s{s_grp}, s{s_t0}, 6
            s_and_b32 s{s_t3}, s{s_ci}, 1
            s_add_u32 s{s_grp}, s{s_grp}, s{s_t3}
            s_lshr_b32 s{s_t0}, s{s_t0}, 1
            s_lshl_b32 s{s_t3}, s{s_t3}, 2
            s_add_u32 s{s_rot}, s{s_t0}, s{s_t3}
            s_and_b32 s{s_t3}, s{s_ci}, 2
            s_add_u32 s{s_rot}, s{s_rot}, s{s_t3}
            s_add_u32 s{s_rot}, s{s_rot}, s{s_t2}
            s_and_b32 s{s_rot}, s{s_rot}, 7
            s_and_b32 s{s_i}, s{s_w}, 3
            s_lshr_b32 s{s_g}, s{s_w}, 2
            s_cmp_lg_u32 s{s_w}, 7""")
    def cpf():
        here = p.newlabel('Lpc')
        p.I(f"s_getpc_b64 s[{s_pair}:{s_pair+1}]")
        p.label(here)
        p.I(f"""s_lshl_b32 s{s_t0}, s{s_t1}, {os.environ.get('CPFSH', '11')}
                v_lshlrev_b32 v{t5}, 7, v{lane}
                v_add_u32 v{t5}, s{s_t0}, v{t5}
                v_min_u32 v{t5}, {name}_last-{here}, v{t5}
                s_mov_b64 exec, 0xffff""")
        p.I(f"global_load_dword v{v9}, v{t5}, s[{s_pair}:{s_pair+1}]")
        p.I("s_mov_b64 exec, -1")
    if 'nocpf' not in OPT: p.cond(lambda r, it: r['w'] == 7, "s_cbranch_scc1", cpf)
    p.I(f"""s_lshl_b32 s{s_t0}, s{s_ci}, 1
            s_add_u32 s{s_t0}, s{s_t0}, s{s_g}
            s_cmp_ge_u32 s{s_ci}, 2
            s_cbranch_scc1 {name}_proF""")
    base_names = list(st.names)
    info = {}

    def xaddr_calc(xa):
        p.I(f"""v_and_b32 v{t0}, 31, v{lane}
                v_lshlrev_b32 v{t1}, 7, v{t0}
                s_lshl_b32 s{s_t0}, s{s_i}, 12
                v_add_u32 v{t1}, s{s_t0}, v{t1}
                v_bfe_u32 v{t0}, v{lane}, 1, 3
                v_lshrrev_b32 v{t2}, 5, v{lane}
                v_xor_b32 v{t0}, v{t0}, v{t2}
                v_lshl_add_u32 v{t1}, v{t0}, 4, v{t1}""")
        for t in range(4):
            p.I(f"""s_add_u32 s{s_t0}, s{s_i}, {t}
                    s_and_b32 s{s_t0}, s{s_t0}, 3
                    s_lshl_b32 s{s_t0}, s{s_t0}, 5
                    v_xor_b32 v{xa+t}, s{s_t0}, v{t1}""")
    def per_t(dst, src, ks_stride):
        for t in range(4):
            p.I(f"""s_add_u32 s{s_t0}, s{s_i}, {t}
                    s_and_b32 s{s_t0}, s{s_t0}, 3
                    s_mul_i32 s{s_t0}, s{s_t0}, {ks_stride}
                    v_add_u32 v{dst+t}, s{s_t0}, v{src}""")
    def sync_setup(typ):
        srd(p, S_WS, WS_P, WS_BYTES); srd(p, S_DBG, DBG_P, 256)
        def tlb():
            p.I(f"v_lshlrev_b32 v{t5}, 20, v{lane}\n s_mov_b64 exec, 0xffff")
            p.I(f"buffer_load_dword v{v9}, v{t5}, s[{S_WS}:{S_WS+3}], 0 offen")
            p.I("s_mov_b64 exec, 3")
            for ptr in (OUT_P, W2_P):
                p.I(f"global_load_dword v{v9}, v{t5}, s[{ptr}:{ptr+1}]")
            p.I("s_mov_b64 exec, 1")
            p.I(f"global_load_dword v{v9}, v{t5}, s[{WO_P}:{WO_P+1}]")
            p.I("s_mov_b64 exec, -1")
        if 'notlb' not in OPT: ifw(6, tlb)
        p.I(f"""s_lshl_b32 s{s_t0}, s{s_rb}, 2
                s_add_u32 s{s_t0}, s{s_t0}, s{s_i}
                s_lshl_b32 s{s_sto}, s{s_t0}, 12
                s_add_u32 s{s_sto}, s{s_sto}, {ST_OFF + typ * 64 * 4096}
                s_lshl_b32 s{s_wit}, s{s_w}, 8
                s_lshl_b32 s{s_cso}, s{s_grp}, 1
                s_lshr_b32 s{s_t0}, s{s_rb}, 3
                s_add_u32 s{s_cso}, s{s_cso}, s{s_t0}
                s_lshl_b32 s{s_cso}, s{s_cso}, 15
                s_add_u32 s{s_cso}, s{s_cso}, {CS_OFF + typ * 16 * 32768}""")
    def stat_ops(xr, sS, sQ):
        out = []
        for o in range(0, 4, 2):
            out += [f"v_lshlrev_b32 v{t0}, 16, v{xr+o}", f"v_and_b32 v{t1}, 0xffff0000, v{xr+o}",
                    f"v_lshlrev_b32 v{t2}, 16, v{xr+o+1}", f"v_and_b32 v{t3}, 0xffff0000, v{xr+o+1}",
                    f"v_add_f32 v{sS}, v{sS}, v{t0}", f"v_add_f32 v{sS+1}, v{sS+1}, v{t1}",
                    f"v_fmac_f32 v{sQ}, v{t0}, v{t0}", f"v_fmac_f32 v{sQ+1}, v{t1}, v{t1}",
                    f"v_add_f32 v{sS}, v{sS}, v{t2}", f"v_add_f32 v{sS+1}, v{sS+1}, v{t3}",
                    f"v_fmac_f32 v{sQ}, v{t2}, v{t2}", f"v_fmac_f32 v{sQ+1}, v{t3}, v{t3}"]
        return out
    def cs_pre(F, dst):
        for k in range(0, 16, 2):
            p.I(f"""v_lshlrev_b32 v{t0}, 16, v{F+k}
                    v_and_b32 v{t1}, 0xffff0000, v{F+k}
                    v_lshlrev_b32 v{t2}, 16, v{F+k+1}
                    v_and_b32 v{t3}, 0xffff0000, v{F+k+1}""")
            if k == 0: p.I(pk("v_pk_add_f32", t4, t0, t2))
            else:
                p.I(pk("v_pk_add_f32", t4, t4, t0)); p.I(pk("v_pk_add_f32", t4, t4, t2))
        p.I(f"""v_add_f32 v{t4}, v{t4}, v{t5}
                v_mov_b32 v{t5}, v{t4}
                v_permlane32_swap_b32 v{t4}, v{t5}
                v_add_f32 v{dst}, v{t4}, v{t5}""")
    def cs_publish(src, s_blk):
        p.I(f"""v_mov_b32 v{src+1}, s{s_non}
                s_lshl_b32 s{s_t0}, s{s_blk}, 11
                s_add_u32 s{s_t0}, s{s_t0}, s{s_cso}
                s_and_b32 s{s_t1}, s{s_rb}, 6
                s_lshl_b32 s{s_t1}, s{s_t1}, 8
                s_add_u32 s{s_t0}, s{s_t0}, s{s_t1}
                s_and_b32 s{s_t1}, s{s_rb}, 1
                s_lshl_b32 s{s_t1}, s{s_t1}, 3
                s_add_u32 s{s_t0}, s{s_t0}, s{s_t1}
                s_mov_b64 exec, 0xffffffff""")
        p.I(f"buffer_store_dwordx2 {vr(src,2)}, v{l16}, s[{S_WS}:{S_WS+3}], s{s_t0} offen sc1")
        p.I("s_mov_b64 exec, -1")
    def fetch(loads, sc=None):
        last = None
        if sc is None: sc = os.environ.get('FSC', 'sc1')
        for q, sb, o in loads:
            hi = o // 4096
            if (sb, hi) != last:
                p.I(f"s_add_u32 s{s_t0}, s{sb}, {hi * 4096}"); last = (sb, hi)
            p.I(f"buffer_load_dwordx4 {vr(q,4)}, v{l16}, s[{S_WS}:{S_WS+3}], s{s_t0} offen offset:{o % 4096} {sc}")
    nsite = {}
    def validate(loads):
        site = nsite.setdefault(str(loads), len(nsite))
        tags = [r for q, _, _ in loads for r in (q + 1, q + 3)]
        def test():
            for op, acc in (("min", t0), ("max", t1)):
                p.I(f"v_{op}_u32 v{acc}, v{tags[0]}, v{tags[1]}")
                for k in range(2, len(tags), 2): p.I(f"v_{op}3_u32 v{acc}, v{acc}, v{tags[k]}, v{tags[k+1]}")
            p.I(f"""v_cmp_eq_u32 vcc, s{s_non}, v{t0}
                    v_cmp_eq_u32 s[{s_pair}:{s_pair+1}], s{s_non}, v{t1}
                    s_and_b64 vcc, vcc, s[{s_pair}:{s_pair+1}]""")
        test()
        p.I("s_cmp_eq_u64 vcc, -1")
        def slow():
            lab = p.newlabel('Lval'); done = p.newlabel('Lvald')
            p.I(f"s_mov_b32 s{s_t1}, 0")
            if stamps: p.I(f"s_add_u32 s98, s98, {1 << (3 * site)}")
            p.label(lab)
            fetch(loads, 'sc1')
            p.I("s_waitcnt vmcnt(0)")
            test()
            p.I(f"""s_add_u32 s{s_t1}, s{s_t1}, 1
                    s_cmp_ge_u32 s{s_t1}, 0x40000
                    s_cbranch_scc1 {done}
                    s_cmp_eq_u64 vcc, -1
                    s_cbranch_scc0 {lab}""")
            p.label(done)
        p.rare(lambda r, it: r.get('slow', False), "s_cbranch_scc0", slow)
    def xhalf(a):
        p.I(f"""v_permlane32_swap_b32 v{a}, v{a+1}
                v_add_f32 v{a}, v{a}, v{a+1}
                v_mov_b32 v{a+1}, v{a}
                v_permlane32_swap_b32 v{a}, v{a+1}""")
    def stats_pre(sS, sQ, P):
        p.I(f"v_add_f32 v{sS}, v{sS}, v{sS+1}\n v_add_f32 v{sS+1}, v{sQ}, v{sQ+1}")
        xhalf(sS)
        p.I(f"v_mov_b32 v{P}, v{sS}\n v_mov_b32 v{P+2}, v{sS+1}")
    def stats_publish(P):
        p.I(f"""v_mov_b32 v{P+1}, s{s_non}
                v_mov_b32 v{P+3}, s{s_non}
                s_lshl_b32 s{s_t0}, s{s_grp}, 9
                s_add_u32 s{s_t0}, s{s_t0}, s{s_sto}
                s_mov_b64 exec, 0xffffffff""")
        p.I(f"buffer_store_dwordx4 {vr(P,4)}, v{l16}, s[{S_WS}:{S_WS+3}], s{s_t0} offen sc1")
        p.I("s_mov_b64 exec, -1")
    st_loads = lambda B: [(B + 4*j, s_sto, 1024*j) for j in range(4)]
    def st_addr(dst, base):
        p.I(f"""v_and_b32 v{dst}, 31, v{lane}
                v_lshlrev_b32 v{dst}, 3, v{dst}
                s_lshl_b32 s{s_t0}, s{s_i}, 8
                s_add_u32 s{s_t0}, s{s_t0}, {base}
                v_add_u32 v{dst}, s{s_t0}, v{dst}""")
    def f_consts(rstd, sd, c1, irs2):
        p.I(f"v_mul_f32 v{irs2}, v{sd}, v{sd}\n v_mul_f32 v{c1}, {0x80000000 | LOG2E}, v{rstd}")
    def stats_final(E, M, rstd, sd):
        T = t0
        p.I(f"""v_add_f32 v{E}, v{E}, v{E+4}
                v_add_f32 v{E+1}, v{E+2}, v{E+6}
                v_add_f32 v{E+8}, v{E+8}, v{E+12}
                v_add_f32 v{E+9}, v{E+10}, v{E+14}""")
        p.I(pk("v_pk_add_f32", E, E, E+8))
        xhalf(E)
        p.I(f"""v_mul_f32 v{E}, 0x3b000000, v{E}
                v_mul_f32 v{E+1}, 0x3b000000, v{E+1}
                v_fma_f32 v{E+1}, -v{E}, v{E}, v{E+1}
                v_cvt_pk_bf16_f32 v{M}, -v{E}, -v{E}
                v_max_f32 v{E+1}, 0, v{E+1}
                v_cvt_pk_bf16_f32 v{T}, v{E+1}, v{E+1}
                v_and_b32 v{T}, 0xffff0000, v{T}
                v_add_f32 v{T}, 0x3727c5ac, v{T}
                v_cvt_pk_bf16_f32 v{T}, v{T}, v{T}
                v_and_b32 v{T}, 0xffff0000, v{T}
                v_sqrt_f32 v{T}, v{T}
                v_cvt_pk_bf16_f32 v{T}, v{T}, v{T}
                v_and_b32 v{sd}, 0xffff0000, v{T}
                v_rcp_f32 v{rstd}, v{sd}""")
    def corr_prep(qa, qb, dst):
        T = t5
        p.I(f"""v_add_f32 v{qa}, v{qa}, v{qa+2}
                v_add_f32 v{qb}, v{qb}, v{qb+2}
                v_add_f32 v{qa}, v{qa}, v{qb}
                v_cvt_pk_bf16_f32 v{T}, v{qa}, v{qa}
                v_and_b32 v{T}, 0xffff0000, v{T}
                v_sub_f32 v{T}, v{qa}, v{T}
                v_cvt_pk_bf16_f32 v{dst}, v{qa}, v{T}""")
    def corr_mf(acc, src, C, M):
        p.I(f"v_mov_b32 v{C}, v{src}")
        p.I(f"{MF} {vr(acc,16)}, {vr(C,4)}, {vr(M,4)}, {vr(acc,16)}")
    def f_epi_list(acc, c1, irs2, T, soff, packed):
        L = []
        if packed:
            L += [pk("v_pk_mul_f32", T+i, acc+i, c1, bc=(1,)) for i in range(0, 8, 2)]
            L += [f"v_exp_f32 v{T+i}, v{T+i}" for i in range(8)]
            L += [pk("v_pk_mul_f32", acc+i, acc+i, acc+8+i) for i in range(0, 8, 2)]
            L += [pk("v_pk_fma_f32", T+i, T+i, irs2, irs2, bc=(1, 2)) for i in range(0, 8, 2)]
            L += [f"v_rcp_f32 v{T+i}, v{T+i}" for i in range(8)]
            L += [pk("v_pk_mul_f32", acc+i, acc+i, T+i) for i in range(0, 8, 2)]
        else:
            L += [f"v_mul_f32 v{T+i}, v{acc+i}, v{c1}" for i in range(8)]
            for i in range(8): L += [f"v_exp_f32 v{T+i}, v{T+i}", f"v_mul_f32 v{acc+i}, v{acc+i}, v{acc+8+i}"]
            L += [f"v_fma_f32 v{T+i}, v{T+i}, v{irs2}, v{irs2}" for i in range(8)]
            L += [f"v_rcp_f32 v{T+i}, v{T+i}" for i in range(2)]
            for i in range(8):
                if i + 2 < 8: L += [f"v_rcp_f32 v{T+i+2}, v{T+i+2}"]
                L += [f"v_mul_f32 v{acc+i}, v{acc+i}, v{T+i}"]
        L += [f"v_cvt_pk_bf16_f32 v{acc+i}, v{acc+2*i}, v{acc+2*i+1}" for i in range(4)]
        L += [f"buffer_store_dwordx4 {vr(acc,4)}, v{l16}, s[{S_WS}:{S_WS+3}], {soff} {HSC}"]
        return [lambda x=x: p.I(x, tag='hst' if x.startswith('buffer') else None) for x in L]
    def f_epilogue(acc, c1, irs2, T, soff):
        for f in f_epi_list(acc, c1, irs2, T, soff, True): f()
    def nonce_sample(vf):
        p.I(f"v_mov_b32 v{t0}, 0")
        p.I(f"buffer_load_dwordx2 {vr(vf,2)}, v{t0}, s[{S_DBG}:{S_DBG+3}], 0 offen offset:128 sc1")
    def nonce_take(vf):
        p.I(f"v_mov_b32 v{t0}, 128")
        nonce_get(p, vf, t0, S_DBG, "0", s_non, s_t0)
    S_PF = S_PHI
    def pf_list(dummy):
        L = []
        def setup(ptr, nbytes, per):
            srd(p, S_PF, ptr, nbytes)
            p.I(f"""s_lshr_b32 s{s_pf}, s2, 3
                    s_mul_i32 s{s_pf}, s{s_pf}, {per}
                    s_add_u32 s{s_pf}, s{s_pf}, s{s_w}
                    s_lshl_b32 s{s_pf}, s{s_pf}, 10""")
        def ld():
            p.I(f"buffer_load_dwordx4 {vr(dummy,4)}, v{l16}, s[{S_PF}:{S_PF+3}], s{s_pf} offen")
            p.I(f"s_add_u32 s{s_pf}, s{s_pf}, 8192")
        if 'l2pf' not in OPT: return []
        L.append(lambda: (setup(W2_P, 1376*1024, 43), ld()))
        L += [ld] * 5
        L.append(lambda: (setup(WO_P, 512*1024, 16), ld()))
        L.append(ld)
        return L
    def mall_touch(dummy):
        if 'nomall' in OPT: return
        p.I(f"""s_lshl_b32 s{s_pf}, s2, 3
                s_add_u32 s{s_pf}, s{s_pf}, s{s_w}
                s_sub_u32 s{s_t0}, s{s_pf}, 1376
                s_cmp_lt_u32 s{s_pf}, 1376
                s_cselect_b32 s{s_pf}, s{s_pf}, s{s_t0}
                s_cselect_b64 s[{S_PF}:{S_PF+1}], s[{W2_P}:{W2_P+1}], s[{WO_P}:{WO_P+1}]
                s_mov_b32 s{s_t0}, {512*1024}
                s_cselect_b32 s{S_PF+2}, {1376*1024}, s{s_t0}
                s_mov_b32 s{S_PF+3}, 0x20000
                s_lshl_b32 s{s_pf}, s{s_pf}, 10""")
        p.I(f"buffer_load_dwordx4 {vr(dummy,4)}, v{l16}, s[{S_PF}:{S_PF+3}], s{s_pf} offen")
    def code_pf(label, dummy, piece_s=None):
        here = p.newlabel('Lpc')
        p.I(f"s_getpc_b64 s[{s_pair}:{s_pair+1}]")
        p.label(here)
        p.I(f"""s_add_u32 s{s_pair}, s{s_pair}, {label}-{here}
                s_addc_u32 s{s_pair+1}, s{s_pair+1}, {'0' if label.startswith('k2') else '-1'}
                v_lshlrev_b32 v{dummy}, 7, v{lane}""")
        if piece_s is not None: p.I(f"v_add_u32 v{dummy}, s{piece_s}, v{dummy}")
        p.I(f"global_load_dword v{dummy}, v{dummy}, s[{s_pair}:{s_pair+1}]")
    def kap0(s, dst):
        if s < 8:
            p.I(f"""s_add_u32 s{dst}, s{s_rot2}, {s}
                    s_and_b32 s{dst}, s{dst}, 7
                    s_lshl_b32 s{dst}, s{dst}, 3
                    s_add_u32 s{dst}, s{dst}, 16""")
        else: p.I(f"s_mov_b32 s{dst}, {[80, 0, 8, 86, 94, 102, 110][s-8]}")
    def p2_params(off):
        if 'mix' in OPT:
            p.I(f"""s_bfe_u32 s{s_t0}, s2, 0x10005
                    s_lshl_b32 s{s_ct2}, s{s_ci}, 1
                    s_add_u32 s{s_ct2}, s{s_ct2}, s{s_t0}
                    s_bfe_u32 s{s_t1}, s2, 0x20003
                    s_add_u32 s{s_rot2}, s{s_ct2}, s{s_t1}
                    s_lshl_b32 s{s_rot2}, s{s_rot2}, 1
                    s_lshr_b32 s{s_t0}, s{s_ci}, 1
                    s_add_u32 s{s_rot2}, s{s_rot2}, s{s_t0}""")
        else:
            p.I(f"""s_bfe_u32 s{s_ct2}, s2, 0x30003
                    s_mov_b32 s{s_t1}, s{s_ci}
                    s_lshl_b32 s{s_rot2}, s{s_ci}, 1
                    s_add_u32 s{s_rot2}, s{s_rot2}, s{s_ct2}""")
        p.I(f"""s_and_b32 s{s_rb2}, s2, 1
                s_lshl_b32 s{s_rb2}, s{s_rb2}, 4
                s_and_b32 s{s_t0}, s2, 6
                s_lshl_b32 s{s_t0}, s{s_t0}, 1
                s_add_u32 s{s_rb2}, s{s_rb2}, s{s_t0}
                s_add_u32 s{s_rb2}, s{s_rb2}, s{s_t1}""")
    def vb_calc(vB, n):
        p.I(f"""v_lshrrev_b32 v{t0}, 3, v{lane}
                v_lshlrev_b32 v{t0}, 10, v{t0}
                v_and_b32 v{t1}, 7, v{lane}
                v_bfe_u32 v{t2}, v{lane}, 4, 1
                v_lshlrev_b32 v{t2}, 2, v{t2}
                v_xor_b32 v{t1}, v{t1}, v{t2}
                v_lshl_add_u32 v{vB}, v{t1}, 4, v{t0}
                s_lshl_b32 s{s_t0}, s{s_ct2}, 7
                v_add_u32 v{vB}, s{s_t0}, v{vB}""")
        for m in range(1, n): p.I(f"v_add_u32 v{vB+m}, {7168*m}, v{vB}")
    def bpf_setup(vB, off):
        p2_params(off); vb_calc(vB, 2); srd(p, S_W2, W2_P, 1376*1024)
    def bpf(s, vB, off):
        def a():
            kap0(s, s_t1)
            p.I(f"""s_add_u32 s{s_t1}, s{s_t1}, s{s_w}
                    s_lshl_b32 s{s_bo}, s{s_t1}, 14
                    s_lshl_b32 s{s_t1}, s{s_w}, 11
                    s_add_u32 m0, s{s_t1}, {BBASE + ((s + off) % NB) * 16384}""")
            p.I(f"buffer_load_dwordx4 v{vB}, s[{S_W2}:{S_W2+3}], s{s_bo} offen lds", tag='eb')
            p.I(f"buffer_load_dwordx4 v{vB+1}, s[{S_W2}:{S_W2+3}], s{s_bo} offen offset:1024 lds", tag='eb')
        return [] if 'nobpf' in OPT else [a]
    VF2, vfa2, s_fo = BASE + 2, BASE + 4, s_rd
    def flag_early():
        p.I(f"""v_and_b32 v{vfa2}, 7, v{lane}
                v_lshlrev_b32 v{vfa2}, 7, v{vfa2}
                s_lshr_b32 s{s_fo}, s{s_rb2}, 1
                s_lshl_b32 s{s_fo}, s{s_fo}, 10
                s_add_u32 s{s_fo}, s{s_fo}, {FL_OFF + 128*128}
                s_mov_b32 s{s_early}, 0""")
        flag_sample(p, VF2, vfa2, S_WS, s_fo)
    s_ao, s_as2, s_bs2, s_k0, s_early = s_kc, s_mslot, s_mA, s_mB, s_ds
    def a_setup():
        p.I(f"""s_lshl_b32 s{s_as2}, s{s_rb2}, 1
                s_and_b32 s{s_t0}, s{s_w}, 1
                s_add_u32 s{s_as2}, s{s_as2}, s{s_t0}
                s_mul_i32 s{s_as2}, s{s_as2}, {HO_RU}
                s_lshl_b32 s{s_bs2}, s{s_t0}, 13""")
    def a_prep(s):
        kap0(s, s_k0)
        p.I(f"""s_lshl_b32 s{s_ao}, s{s_k0}, 10
                s_add_u32 s{s_ao}, s{s_ao}, s{s_as2}
                s_add_u32 m0, s{s_bs2}, {ABASE + (s % NA) * 16384}""")
    def a_issue(s, prep=True):
        if prep: a_prep(s)
        for e in range(6 if s == 8 else 8):
            if e == 4: p.I(f"s_add_u32 s{s_ao}, s{s_ao}, 4096\n s_add_u32 m0, m0, 4096")
            p.I(f"buffer_load_dwordx4 v{l16}, s[{S_WS}:{S_WS+3}], s{s_ao} offen offset:{1024*(e&3)} lds", tag=('a', s))
    def a_early():
        p.I(f"v_cmp_eq_u64 vcc, s[{s_non}:{s_non+1}], {vr(VF2,2)}")
        p.I(f"""s_and_b32 s{s_t0}, s{s_w}, 6
                s_cmp_eq_u32 s{s_t0}, 4
                s_cselect_b64 vcc, vcc, 0
                s_cmp_eq_u64 vcc, -1""")
        p.rare(lambda r, it: r['w'] in (4, 5) and r.get('early', False), "s_cbranch_scc1",
               lambda: (p.I(f"s_mov_b32 s{s_early}, 1"), a_setup(), a_issue(0), a_issue(1)))
    def finish(typ, after=()):
        p.wait(vm=['hst'], lg_all=True)
        p.I("s_barrier")
        def fr():
            p.I(f"""s_lshl_b32 s{s_t1}, s{s_rb}, 3
                    s_add_u32 s{s_t1}, s{s_t1}, s{s_grp}
                    s_lshl_b32 s{s_t1}, s{s_t1}, 7
                    s_add_u32 s{s_t1}, s{s_t1}, {FL_OFF + typ * 128 * 128}""")
            flag_raise(p, t2, S_WS, s_t1, s_non)
        ifw(0, fr)
        st.stamp(p, 'ph1')
        for f in after: f()
        p.I(f"s_branch {name}_ph2")
    def ifw(w, fn):
        p.I(f"s_cmp_lg_u32 s{s_w}, {w}"); p.cond(lambda r, it: r['w'] == w, "s_cbranch_scc1", fn)
    def rarew(w, fn):
        p.I(f"s_cmp_eq_u32 s{s_w}, {w}"); p.rare(lambda r, it: r['w'] == w, "s_cbranch_scc1", fn)

    FSLOT = 53376; FW1 = 16384; FW3 = 16384 + 18432 + 128
    FEX2 = 2 * FSLOT
    def ftype(g):
        V = Regs('v', BASE, 256)
        st.n = len(base_names); st.names = list(base_names)
        nb = 5 if g == 0 else 4
        b0 = 0 if g == 0 else 5
        nd = 6 if g == 0 else 7
        vd = V.alloc(7); xa = V.alloc(4); wa = V.alloc(4)
        ACC = V.alloc(16 * nb, 4)
        SET = [V.alloc(24, 4), V.alloc(24, 4)]
        XT = V.alloc(28, 4); WTB = V.alloc(32, 4)
        sS, sQ, PUBS, PUBC, PUB8, VF, vpre = WTB + 16, WTB + 18, XT + 16, XT + 20, XT + 22, XT + 24, XT + 26
        FEX = 2 * FSLOT
        floads = [(WTB, s_csg, 0), (WTB + 4, s_csg, 1024)] + (st_loads(XT) if g == 1 else [])
        floads8 = [(WTB + 8, s_cso, 16384), (WTB + 12, s_cso, 17408)]
        M = V.alloc(4, 4); C = V.alloc(4, 4); T = V.alloc(8, 4)
        c1 = V.alloc(1, 2); rstd = V.alloc(); irs2 = V.alloc(1, 2); C0 = V.alloc(5); PFD = V.alloc(4, 4)
        def dma(n, tag):
            if g == 0:
                if n == 0: p.I(f"s_add_u32 m0, s{s_mslot}, s{s_mA}")
                if n == 3: p.I(f"s_add_u32 m0, s{s_mslot}, s{s_mB}")
                S = S_W1 if n < 3 else S_W3
                p.I(f"buffer_load_dwordx4 v{vd + n % 3}, s[{S}:{S+3}], s{s_woff} offen offset:{1024*(n%3)} lds", tag=tag)
            else:
                if n == 0: p.I(f"s_add_u32 m0, s{s_mslot}, s{s_mA}")
                if n == 4: p.I(f"s_add_u32 m0, s{s_mslot}, s{s_mB}")
                if n < 4: p.I(f"buffer_load_dwordx4 v{vd+3+n}, s[{S_X}:{S_X+3}], s{s_xoff} offen offset:{1024*n} lds", tag=tag)
                else: p.I(f"buffer_load_dwordx4 v{vd+n-4}, s[{S_WM}:{S_WM+3}], s{s_woff} offen offset:{1024*(n-4)} lds", tag=tag)
        nxt = f"""s_add_u32 s{s_kc}, s{s_kc}, 1
                  s_and_b32 s{s_kc}, s{s_kc}, 7
                  s_lshl_b32 s{s_xoff}, s{s_kc}, 7
                  s_mul_i32 s{s_woff}, s{s_kc}, {64*2752}
                  s_add_u32 s{s_mslot}, s{s_mslot}, {FSLOT}
                  s_cmp_ge_u32 s{s_mslot}, {3*FSLOT}
                  s_cselect_b32 s{s_mslot}, 0, s{s_mslot}
                  s_add_u32 s{s_ds}, s{s_ds}, 1"""
        def prologue():
            if g == 0:
                p.label(f"{name}_proF")
                p.I(f"s_cmp_lg_u32 s{s_g}, 0\n s_cbranch_scc1 {name}_proF1")
            p.label(f"{name}_proF{g}")
            p.I(f"""s_mul_i32 s{s_col}, s{s_grp}, 288
                    s_add_u32 s{s_col}, s{s_col}, 512
                    s_min_u32 s{s_col}, s{s_col}, 2464""")
            def wvoff(dst, q_s, m):
                p.I(f"""s_add_u32 s{s_t0}, s{q_s}, {m}
                        s_lshl_b32 s{s_t0}, s{s_t0}, 6
                        v_add_u32 v{t0}, s{s_t0}, v{lane}
                        v_mul_u32_u24 v{t1}, 3641, v{t0}
                        v_lshrrev_b32 v{t1}, 16, v{t1}
                        v_mul_u32_u24 v{t2}, {2752 - 18*16}, v{t1}
                        v_lshl_add_u32 v{t0}, v{t0}, 4, v{t2}
                        s_sub_u32 s{s_t0}, s{s_col}, {1024*m}
                        v_add_u32 v{dst}, s{s_t0}, v{t0}""")
            if g == 0:
                p.I(f"s_mul_i32 s{s_t2}, s{s_i}, 3")
                for m in range(3): wvoff(vd + m, s_t2, m)
                p.I(f"""s_lshl_b32 s{s_mA}, s{s_t2}, 10
                        s_add_u32 s{s_mB}, s{s_mA}, {FW3}
                        s_add_u32 s{s_mA}, s{s_mA}, {FW1}""")
            else:
                p.I(f"""s_lshl_b32 s{s_t0}, s{s_rb}, 2
                        s_add_u32 s{s_t0}, s{s_t0}, s{s_i}
                        s_lshl_b32 s{s_t0}, s{s_t0}, 15
                        v_lshrrev_b32 v{t0}, 3, v{lane}
                        v_lshlrev_b32 v{t0}, 10, v{t0}
                        v_add_u32 v{t0}, s{s_t0}, v{t0}
                        v_and_b32 v{t1}, 7, v{lane}
                        v_lshrrev_b32 v{t2}, 4, v{lane}
                        v_xor_b32 v{t1}, v{t1}, v{t2}
                        v_lshl_add_u32 v{vd+3}, v{t1}, 4, v{t0}
                        v_xor_b32 v{t0}, 64, v{vd+3}
                        v_add_u32 v{vd+4}, {7168}, v{t0}
                        v_add_u32 v{vd+5}, {2*7168}, v{vd+3}
                        v_add_u32 v{vd+6}, {3*7168}, v{t0}
                        s_and_b32 s{s_t2}, s{s_i}, 1
                        s_mul_i32 s{s_t2}, s{s_t2}, 3
                        s_add_u32 s{s_t2}, s{s_t2}, 12""")
                for m in range(3): wvoff(vd + m, s_t2, m)
                p.I(f"""s_lshl_b32 s{s_mB}, s{s_t2}, 10
                        s_lshr_b32 s{s_t0}, s{s_i}, 1
                        s_mul_i32 s{s_t0}, s{s_t0}, {FW3-FW1}
                        s_add_u32 s{s_mB}, s{s_mB}, s{s_t0}
                        s_add_u32 s{s_mB}, s{s_mB}, {FW1}
                        s_lshl_b32 s{s_mA}, s{s_i}, 12""")
            p.I(f"""s_mov_b32 s{s_kc}, s{s_rot}
                    s_lshl_b32 s{s_xoff}, s{s_kc}, 7
                    s_mul_i32 s{s_woff}, s{s_kc}, {64*2752}
                    s_mov_b32 s{s_mslot}, 0
                    s_mov_b32 s{s_ds}, 0""")
            p.I("s_waitcnt lgkmcnt(0)")
            if g == 0:
                srd(p, S_W1, W1_P, 512*2752); srd(p, S_W3, W3_P, 512*2752)
            else:
                srd(p, S_X, X_P, 2048*1024)
                p.I(f"""s_cmp_lt_u32 s{s_i}, 2
                        s_cselect_b64 s[{S_WM}:{S_WM+1}], s[{W1_P}:{W1_P+1}], s[{W3_P}:{W3_P+1}]
                        s_mov_b32 s{S_WM+2}, {512*2752}
                        s_mov_b32 s{S_WM+3}, 0x20000""")
            st.stamp(p, 'args')
            for n in range(nd): dma(n, ('d', 0))
            p.I(nxt)
            p.I(f"s_branch {name}_bodyF{g}")
        split = [int(x) for x in os.environ.get('FSPLIT%d' % g, '2,2,1,1' if g == 0 else '2,2,2,1').split(',')]
        assert sum(split) == nd
        ofs = [sum(split[:k]) for k in range(5)]
        def body():
            p.label(f"{name}_bodyF{g}")
            if 'S1LATE' not in OPT and 'F1EARLY' in OPT:
                for n in range(nd): dma(n, ('d', 1))
                p.I(nxt)
            xaddr_calc(xa)
            p.I(f"""v_bfe_u32 v{t0}, v{lane}, 4, 1
                    v_mul_u32_u24 v{t0}, {FW3-FW1}, v{t0}
                    v_lshrrev_b32 v{t1}, 5, v{lane}
                    v_bfe_u32 v{t2}, v{lane}, 2, 2
                    v_lshl_add_u32 v{t1}, v{t1}, 3, v{t2}
                    v_mul_u32_u24 v{t1}, 288, v{t1}
                    v_add_u32 v{t0}, v{t0}, v{t1}
                    v_and_b32 v{t1}, 3, v{lane}
                    v_lshl_add_u32 v{t0}, v{t1}, 3, v{t0}
                    v_add_u32 v{t3}, {FW1 + 32*b0}, v{t0}
                    s_lshl_b32 s{s_t0}, s{s_w}, 5
                    s_add_u32 s{s_t0}, s{s_t0}, {FW1}
                    v_add_u32 v{vpre}, s{s_t0}, v{t0}""")
            per_t(wa, t3, 16 * 288)
            for i in range(0, 16 * nb, 2): p.I(f"v_mov_b64 {vr(ACC+i,2)}, 0")
            for r in [sS, sS+1, sQ, sQ+1, M+1, M+2, M+3, C+1, C+2, C+3]: p.I(f"v_mov_b32 v{r}, 0")
            sync_setup(1)
            p.I(f"""s_lshl_b32 s{s_hoff}, s{s_rb}, 2
                    s_add_u32 s{s_hoff}, s{s_hoff}, s{s_i}
                    s_mul_i32 s{s_hoff}, s{s_hoff}, 118
                    s_lshr_b32 s{s_t1}, s{s_col}, 5
                    s_add_u32 s{s_hoff}, s{s_hoff}, s{s_t1}
                    s_add_u32 s{s_hoff}, s{s_hoff}, {b0}
                    s_lshl_b32 s{s_hoff}, s{s_hoff}, 10
                    s_mov_b32 s{s_it}, 0
                    s_mov_b32 s{s_rslot}, 0
                    s_mov_b32 s{s_t3}, {FSLOT}""")
            def reads(S, t):
                out = [lambda: p.I(f"ds_read_b128 {vr(S,4)}, v{xa+t}")]
                for b in range(nb):
                    out.append(lambda b=b: p.I(f"ds_read_b64_tr_b16 {vr(S+4+4*b,2)}, v{wa+t} offset:{32*b}"))
                    out.append(lambda b=b: p.I(f"ds_read_b64_tr_b16 {vr(S+4+4*b+2,2)}, v{wa+t} offset:{32*b+1152}"))
                return out
            def mf(S):
                return [lambda b=b: p.I(f"{MF} {vr(ACC+16*b,16)}, {vr(S+4+4*b,4)}, {vr(S,4)}, {vr(ACC+16*b,16)}") for b in range(nb)]
            def dgroup(k, tagf, valid):
                lo, hi = ofs[k], ofs[k+1]
                if lo == hi: return []
                return [lambda: (p.I(f"s_cmp_gt_u32 s{s_ds}, 7"),
                                 p.cond(valid, "s_cbranch_scc1", lambda: [dma(n, tagf) for n in range(lo, hi)]))]
            def at_it(k, w0, fn):
                p.I(f"s_cmp_lg_u32 s{s_wit if w0 else s_it}, {k}")
                p.cond(lambda r, it: it == k and (not w0 or r['w'] == 0), "s_cbranch_scc1", fn)
            def special(its, fn):
                p.I(f"s_bitcmp1_b32 {sum(1 << k for k in its)}, s{s_it}")
                p.rare(lambda r, it: it in its, "s_cbranch_scc1", fn)
            p.I(f"s_lshl_b32 s{s_csg}, s{s_w}, 11\n s_add_u32 s{s_csg}, s{s_csg}, s{s_cso}")
            p.wait(vm=[('d', 0)])
            p.I("s_barrier")
            st.stamp(p, 'bar0')
            if 'S1LATE' in OPT or 'F1EARLY' not in OPT:
                for n in range(nd): dma(n, ('d', 1))
                p.I(nxt)
            nonce_sample(VF)
            def pre_reads(extra):
                for t in range(4):
                    for h in range(2):
                        p.I(f"ds_read_b64_tr_b16 {vr(SET[1]+4*t+2*h,2)}, v{vpre} offset:{16*288*t + 1152*h + extra}")
            pre_reads(0)
            if g == 1:
                XS = [XT, XT + 4, XT + 8, XT + 12]
                for t in range(4): p.I(f"ds_read_b128 {vr(XS[t],4)}, v{xa+t}")
            for n in range(split[0]): dma(n, ('d', 2))
            cs_pre(SET[1], PUBC)
            if g == 1:
                for t in range(4): p.I("\n".join(stat_ops(XS[t], sS, sQ)))
                stats_pre(sS, sQ, PUBS)
            else:
                ifw(0, lambda: (pre_reads(256), cs_pre(SET[1], PUB8)))
            for r in reads(SET[0], 0): r()
            st.stamp(p, 'pre')
            FGET = int(os.environ.get('FGET', '3'))
            S_P2 = S_QKV
            FPF = int(os.environ.get('FPF', '0'))
            srd(p, S_P2, W2_P, 1376*1024)
            p.I(f"""s_lshr_b32 s{s_poff}, s2, 3
                    s_and_b32 s{s_poff}, s{s_poff}, 15
                    s_mul_i32 s{s_poff}, s{s_poff}, 86
                    s_add_u32 s{s_poff}, s{s_poff}, s{s_w}
                    s_lshl_b32 s{s_poff}, s{s_poff}, 10""")
            def pfw():
                p.I(f"buffer_load_dwordx4 {vr(PFD,4)}, v{l16}, s[{S_P2}:{S_P2+3}], s{s_poff} offen")
                p.I(f"s_add_u32 s{s_poff}, s{s_poff}, 8192")
            def lbody():
                v2 = lambda r, it: it + 2 <= 7
                v3 = lambda r, it: it + 3 <= 7
                tg2 = lambda it: ('d', it + 2)
                tg3 = lambda it: ('d', it + 3)
                interleave(p, mf(SET[0]), mix(reads(SET[1], 1), dgroup(1, tg2, v2)))
                interleave(p, mf(SET[1]), mix(reads(SET[0], 2), dgroup(2, tg2, v2) + [pfw] * (FPF > 1)))
                slot = [lambda: p.I(nxt), lambda: p.I(f"""s_add_u32 s{s_rslot}, s{s_rslot}, {FSLOT}
                        s_cmp_ge_u32 s{s_rslot}, {3*FSLOT}
                        s_cselect_b32 s{s_rd}, {(-2*FSLOT) & 0xffffffff}, s{s_t3}
                        s_cselect_b32 s{s_rslot}, 0, s{s_rslot}""")]
                interleave(p, mf(SET[0]), mix(reads(SET[1], 3), dgroup(3, tg2, v2) + [pfw] * (FPF > 0) + slot))
                w = lambda: p.wait(vm=[lambda it: ('d', it + 1)], lg_all=True)
                p.I(f"s_bitcmp1_b32 {(1 << 1) | (1 << (FGET + 1))}, s{s_it}")
                p.rare_else(lambda r, it: it in (1, FGET + 1), "s_cbranch_scc1", w, w)
                p.I("s_barrier")
                if 'fine' in OPT: st.stamp_dyn(p, 'b', s_it, 6)
                adr = [lambda t=t: p.I(f"v_add_u32 v{xa+t}, s{s_rd}, v{xa+t}\n v_add_u32 v{wa+t}, s{s_rd}, v{wa+t}") for t in range(4)]
                def publish():
                    nonce_take(VF)
                    cs_publish(PUBC, s_w)
                    mall_touch(PFD)
                    if g == 1: stats_publish(PUBS)
                    else: ifw(0, lambda: (p.I(f"s_mov_b32 s{s_t2}, 8"), cs_publish(PUB8, s_t2)))
                def get():
                    fetch(floads)
                    if g == 0: ifw(0, lambda: fetch(floads8))
                def digest():
                    validate(floads)
                    corr_prep(WTB, WTB + 4, t2)
                    p.I(f"""v_lshlrev_b32 v{t3}, 2, v{lane}
                            s_lshl_b32 s{s_t0}, s{s_w}, 8
                            s_add_u32 s{s_t0}, s{s_t0}, {FEX}
                            v_add_u32 v{t3}, s{s_t0}, v{t3}""")
                    p.I(f"ds_write_b32 v{t3}, v{t2}")
                    if g == 0:
                        ifw(0, lambda: (validate(floads8), corr_prep(WTB + 8, WTB + 12, t2), p.I(f"ds_write_b32 v{t3}, v{t2} offset:2048")))
                    else:
                        stats_final(XT, M, rstd, M + 1)
                        st_addr(t3, FEX + 2304)
                        p.I(f"ds_write_b64 v{t3}, {vr(M,2)}")
                def postsync():
                    def f():
                        at_it(0, False, publish)
                        at_it(FGET, False, get)
                        at_it(5, False, digest)
                    special((0, FGET, 5), f)
                interleave(p, mf(SET[1]), [adr[0]] + mix(reads(SET[0], 0), adr[1:], dgroup(0, tg3, v3)) + [postsync])
                p.I(f"s_add_u32 s{s_it}, s{s_it}, 1\n s_add_u32 s{s_wit}, s{s_wit}, 1")
            p.drop = drop
            p.loop(6, lbody, f"{name}_f{g}", f"s_cmp_lt_u32 s{s_it}, 6\n s_cbranch_scc1 {name}_f{g}")
            p.drop = ()
            st.stamp(p, 'loop')
            Xr = lambda s, t: SET[0] if (s, t) == (6, 0) else XT + 4 * (4 * (s - 6) + t - 1)
            order = [(0, 6), (1, 6), (2, 6), (0, 7), (1, 7), (2, 7)] + [(b, s) for b in range(3, nb) for s in (6, 7)]
            bufs = [SET[1], WTB, WTB + 16]
            ub = {u: bufs[k % 3] for k, u in enumerate(order)}
            Wr = lambda b, s, t: SET[0] + 4 + 4*b if (s, t) == (6, 0) else ub[(b, s)] + 4*t
            def wread(u):
                b, s = u
                return [lambda t=t, h=h: p.I(f"ds_read_b64_tr_b16 {vr(Wr(b,s,t)+2*h,2)}, v{wa+t} offset:{32*b + 1152*h + (s-6)*FSLOT}")
                        for t in range(4) if (s, t) != (6, 0) for h in range(2)]
            def unit(u):
                b, s = u
                return [lambda t=t: p.I(f"{MF} {vr(ACC+16*b,16)}, {vr(Wr(b,s,t),4)}, {vr(Xr(s,t),4)}, {vr(ACC+16*b,16)}") for t in range(4)]
            xread = lambda s: [lambda t=t: p.I(f"ds_read_b128 {vr(Xr(s,t),4)}, v{xa+t} offset:{(s-6)*FSLOT}") for t in range(4) if (s, t) != (6, 0)]
            cmf = lambda b: corr_mf(ACC + 16*b, C0 + b, C, M)
            def epi(b, packed):
                L = f_epi_list(ACC + 16*b, c1, irs2, T, f"s{s_qoff if (g == 0 and b < 2) else s_hoff} offen offset:{1024*b}" if b < 4 else f"s{s_t2} offen", packed)
                return L
            p.I(f"s_add_u32 s{s_t2}, s{s_hoff}, 4096")
            p.I(f"s_cmp_eq_u32 s{s_grp}, 7\n s_cselect_b32 s{s_qoff}, 0x7ff00000, s{s_hoff}")
            for f in xread(6) + wread(order[0]): f()
            interleave(p, unit(order[0]), wread(order[1]))
            interleave(p, unit(order[1]), wread(order[2]))
            p.wait(vm=[('d', 7)], lg_all=True)
            p.I("s_barrier")
            p.I(f"v_lshlrev_b32 v{t3}, 2, v{lane}\n v_add_u32 v{t3}, {FEX + 256*b0}, v{t3}")
            for b in range(nb): p.I(f"ds_read_b32 v{C0+b}, v{t3} offset:{256*b}")
            if g == 0:
                st_addr(t2, FEX + 2304)
                p.I(f"ds_read_b64 {vr(M,2)}, v{t2}")
            def consts():
                p.I(f"v_rcp_f32 v{rstd}, v{M+1}")
                f_consts(rstd, M + 1, c1, irs2)
                p.I(f"v_mov_b32 v{M+1}, 0")
            PKT = 'pktail' in OPT
            CH = int(os.environ.get('FCH', '30'))
            work = []
            pfl = pf_list(PFD)
            fresh = False
            for k in range(2, len(order)):
                u = order[k]
                nxtr = (xread(7) if k == 2 else []) + (wread(order[k + 1]) if k + 1 < len(order) else []) + ([consts] if k == 2 else [])
                take, work = work[:CH], work[CH:]
                nxtr, pfl = nxtr + pfl[:1], pfl[1:]
                ms = unit(u)
                if fresh:
                    interleave(p, ms[:2], nxtr); interleave(p, ms[2:], take)
                else:
                    interleave(p, ms, mix(nxtr, take))
                fresh = False
                if u[1] == 7:
                    cmf(u[0])
                    fresh = not work
                    work = work + epi(u[0], PKT or k + 1 == len(order))
            assert not pfl
            lateb = [lambda: bpf_setup(vd, 0)] + [f for s in range(NEB) for f in bpf(s, vd, 0)]
            for f in work: f()
            st.stamp(p, 'end')
            lateb[0]()
            finish(1, lateb[1:] + [flag_early])
        p.begin(); prologue(); pro = p.end()
        p.begin(); body(); bod = p.end()
        info[f'F{g}'] = ([w for w in range(256) if (w >> 6) >= 2], [4*g + k for k in range(4)], list(st.names))
        return pro, bod, V.next

    def atype():
        V = Regs('v', BASE, 256)
        st.n = len(base_names); st.names = list(base_names)
        vx = V.alloc(2); vw = V.alloc(); vf = V.alloc()
        xa = V.alloc(4); wa = V.alloc(4); fa = V.alloc(4)
        cs = V.alloc(2, 2); vpre = V.alloc(2); sS = V.alloc(2, 2); sQ = V.alloc(2)
        rstd = V.alloc(1, 2); sd = V.alloc(); c1 = t0; irs2 = t2
        X = V.alloc(128, 4)
        AK, AV, AQ, AF = [V.alloc(16, 4) for _ in range(4)]
        SET = [V.alloc(8, 4), V.alloc(8, 4)]
        WP = V.alloc(8, 4); M = WP + 4
        C = V.alloc(4, 4)
        VF = AF + 8
        SL = 32768
        AGET = int(os.environ.get('AGET', '5')); APUB = int(os.environ.get('APUB', '2'))
        EX2, TP, TV = 36864, 40960, 73728
        p1base = lambda s: (s % 4) * SL
        p2base = lambda s: [4*SL, 4*SL+16384, 0, 16384, 3*SL, 3*SL+16384, 4*SL, 4*SL+16384][s]
        def kc_setup(s):
            p.I(f"s_add_u32 s{s_kc}, s{s_rot}, {s}\n s_and_b32 s{s_kc}, s{s_kc}, 7")
        dq = []
        def mk1(s):
            tag = ('d', s); b = p1base(s)
            def d0():
                kc_setup(s)
                p.I(f"s_lshl_b32 s{s_xoff}, s{s_kc}, 7\n s_add_u32 m0, s{s_mA}, {b}\n s_mul_i32 s{s_woff}, s{s_kc}, {64*3072}")
                p.I(f"buffer_load_dwordx4 v{vx}, s[{S_X}:{S_X+3}], s{s_xoff} offen lds", tag=tag)
            def d1(): p.I(f"buffer_load_dwordx4 v{vx+1}, s[{S_X}:{S_X+3}], s{s_xoff} offen offset:1024 lds", tag=tag)
            def d2():
                p.I(f"s_add_u32 m0, s{s_mB}, {b + 16384 - 1024}\n s_add_u32 s{s_voff}, s{s_woff}, 2048")
                p.I(f"buffer_load_dwordx4 v{vw}, s[{S_QKV}:{S_QKV+3}], s{s_woff} offen offset:1024 lds", tag=tag)
            def d3():
                p.I(f"s_add_u32 m0, s{s_mB}, {b + 24576}")
                p.I(f"buffer_load_dwordx4 v{vw}, s[{S_QKV}:{S_QKV+3}], s{s_voff} offen lds", tag=tag)
            need = None if s < 4 else s - 2
            return [(d0, need), (d1, need), (d2, need), (d3, need)]
        def mk2(s):
            tag = ('d', 8 + s); b = p2base(s)
            def d0():
                kc_setup(s)
                p.I(f"s_mul_i32 s{s_woff}, s{s_kc}, {64*3072}\n s_add_u32 m0, s{s_mB}, {b}\n s_mul_i32 s{s_voff}, s{s_kc}, {64*2752}")
                p.I(f"buffer_load_dwordx4 v{vw}, s[{S_QKV}:{S_QKV+3}], s{s_woff} offen lds", tag=tag)
            def d1():
                p.I(f"s_add_u32 m0, s{s_mB}, {b + 8192}")
                p.I(f"buffer_load_dwordx4 v{vf}, s[{S_WM}:{S_WM+3}], s{s_voff} offen lds", tag=tag)
            need = [None, 4, 8, 8, 8, 8, 12, 12][s]
            return [(d0, need), (d1, need)]
        dq += mk1(0) + mk1(1) + mk2(0)
        for s in range(2, 8): dq += mk1(s)
        for s in range(1, 8): dq += mk2(s)
        npop = [0]
        passed = [-1]
        def pop(n=1):
            for _ in range(n):
                if not dq: return
                f, need = dq[0]
                if need is not None and need > passed[0]: return
                dq.pop(0); f(); npop[0] += 1
        def prologue():
            p.label(f"{name}_proA")
            p.I(f"""s_lshl_b32 s{s_t0}, s{s_rb}, 3
                    s_add_u32 s{s_t0}, s{s_t0}, s{s_w}
                    s_lshl_b32 s{s_t0}, s{s_t0}, 14
                    v_lshrrev_b32 v{t0}, 3, v{lane}
                    v_lshlrev_b32 v{t1}, 10, v{t0}
                    v_add_u32 v{t1}, s{s_t0}, v{t1}
                    v_and_b32 v{t2}, 7, v{lane}
                    v_lshrrev_b32 v{t3}, 4, v{lane}
                    v_xor_b32 v{t3}, v{t2}, v{t3}
                    v_lshl_add_u32 v{vx}, v{t3}, 4, v{t1}
                    v_xor_b32 v{t1}, 64, v{vx}
                    v_add_u32 v{vx+1}, 7168, v{t1}
                    s_lshl_b32 s{s_t0}, s{s_w}, 3
                    v_add_u32 v{t0}, s{s_t0}, v{t0}
                    v_mul_u32_u24 v{t0}, 3072, v{t0}
                    v_bfe_u32 v{t1}, v{lane}, 4, 1
                    v_lshlrev_b32 v{t1}, 2, v{t1}
                    v_xor_b32 v{t1}, v{t1}, v{t2}
                    v_lshl_add_u32 v{t0}, v{t1}, 4, v{t0}
                    s_lshl_b32 s{s_t0}, s{s_grp}, 7
                    v_add_u32 v{vw}, s{s_t0}, v{t0}
                    s_lshl_b32 s{s_mA}, s{s_w}, 11
                    s_lshl_b32 s{s_mB}, s{s_w}, 10""")
            p.I("s_waitcnt lgkmcnt(0)")
            srd(p, S_X, X_P, 2048*1024); srd(p, S_QKV, WQKV_P, 512*3072)
            st.stamp(p, 'args')
            pop(4)
            p.I(f"s_branch {name}_bodyA")
        def body():
            p.label(f"{name}_bodyA")
            sync_setup(0)
            if 'S1LATE' not in OPT: pop(4)
            p.I(f"""v_lshrrev_b32 v{t0}, 2, v{lane}
                    s_lshl_b32 s{s_t0}, s{s_i}, 4
                    v_add_u32 v{t0}, s{s_t0}, v{t0}
                    v_mul_u32_u24 v{t0}, 2752, v{t0}
                    v_and_b32 v{t1}, 3, v{lane}
                    s_lshl_b32 s{s_t0}, s{s_g}, 1
                    v_xor_b32 v{t1}, s{s_t0}, v{t1}
                    v_lshl_add_u32 v{t0}, v{t1}, 4, v{t0}
                    s_lshl_b32 s{s_t0}, s{s_grp}, 6
                    v_add_u32 v{vf}, s{s_t0}, v{t0}
                    s_cmp_eq_u32 s{s_g}, 0
                    s_cselect_b64 s[{S_WM}:{S_WM+1}], s[{W1_P}:{W1_P+1}], s[{W3_P}:{W3_P+1}]
                    s_mov_b32 s{S_WM+2}, {512*2752}
                    s_mov_b32 s{S_WM+3}, 0x20000""")
            srd(p, S_PHI, WPHI_P, 32*512)
            xaddr_calc(xa)
            p.I(f"""v_lshrrev_b32 v{t0}, 5, v{lane}
                    v_bfe_u32 v{t1}, v{lane}, 2, 2
                    v_lshl_add_u32 v{t0}, v{t0}, 3, v{t1}
                    v_bfe_u32 v{t1}, v{lane}, 4, 1
                    v_bfe_u32 v{t2}, v{lane}, 1, 1
                    v_lshl_add_u32 v{t2}, v{t1}, 1, v{t2}
                    s_lshl_b32 s{s_t1}, s{s_g}, 2
                    v_add_u32 v{t2}, s{s_t1}, v{t2}
                    v_bfe_u32 v{t3}, v{lane}, 3, 1
                    v_lshlrev_b32 v{t3}, 2, v{t3}
                    v_xor_b32 v{t2}, v{t2}, v{t3}
                    v_lshlrev_b32 v{t2}, 4, v{t2}
                    v_lshl_add_u32 v{t2}, v{t0}, 7, v{t2}
                    v_and_b32 v{t3}, 1, v{lane}
                    v_lshl_add_u32 v{fa}, v{t3}, 3, v{t2}
                    s_lshr_b32 s{s_t1}, s{s_i}, 1
                    s_xor_b32 s{s_t1}, s{s_t1}, s{s_g}
                    s_lshl_b32 s{s_t2}, s{s_t1}, 6
                    v_xor_b32 v{vpre}, s{s_t2}, v{fa}
                    s_lshl_b32 s{s_t3}, s{s_t1}, 5""")
            per_t(wa, fa, 2048)
            p.I(f"""v_lshlrev_b32 v{t0}, 6, v{t0}
                    v_lshl_add_u32 v{t0}, v{t1}, 12, v{t0}
                    v_bfe_u32 v{t2}, v{lane}, 1, 1
                    s_lshl_b32 s{s_t1}, s{s_g}, 1
                    v_add_u32 v{t2}, s{s_t1}, v{t2}
                    v_lshlrev_b32 v{t1}, 1, v{t1}
                    v_xor_b32 v{t2}, v{t2}, v{t1}
                    v_lshl_add_u32 v{t0}, v{t2}, 4, v{t0}
                    v_lshl_add_u32 v{t3}, v{t3}, 3, v{t0}
                    v_xor_b32 v{vpre+1}, s{s_t3}, v{t3}""")
            per_t(fa, t3, 1024)
            for r in [sS, sS+1, sQ, sQ+1]: p.I(f"v_mov_b32 v{r}, 0")
            def wphi_read():
                p.I(f"""v_bfe_u32 v{t0}, v{lane}, 4, 1
                        v_lshlrev_b32 v{t0}, 9, v{t0}
                        v_lshrrev_b32 v{t1}, 5, v{lane}
                        v_lshl_add_u32 v{t0}, v{t1}, 7, v{t0}
                        v_and_b32 v{t1}, 15, v{lane}
                        v_lshl_add_u32 v{t0}, v{t1}, 3, v{t0}
                        s_lshl_b32 s{s_t0}, s{s_w}, 10
                        s_add_u32 s{s_t0}, s{s_t0}, {4*SL+16384}
                        v_add_u32 v{t0}, s{s_t0}, v{t0}""")
                p.wait(vm=['wphi'])
                p.I(f"ds_read_b64_tr_b16 {vr(WP,2)}, v{t0}\n ds_read_b64_tr_b16 {vr(WP+2,2)}, v{t0} offset:256")
            p.I(f"""s_lshl_b32 s{s_t0}, s{s_grp}, 1
                    s_add_u32 s{s_t0}, s{s_t0}, s{s_g}
                    s_lshl_b32 s{s_t0}, s{s_t0}, 10
                    s_add_u32 m0, s{s_mB}, {4*SL+16384}""")
            p.I(f"buffer_load_dwordx4 v{l16}, s[{S_PHI}:{S_PHI+3}], s{s_t0} offen lds", tag='wphi')
            win = {xa: 0, wa: 0, fa: 0}
            def off(reg, target):
                if not (0 <= target - win[reg] <= 65535 - 1024):
                    nw = target // 65536 * 65536
                    d = nw - win[reg]
                    for t in range(4): p.I(f"v_add_u32 v{reg+t}, {d & 0xffffffff}, v{reg+t}")
                    win[reg] = nw
                return target - win[reg]
            def reads(s, t, S):
                if s < 8:
                    b = p1base(s)
                    return [lambda: p.I(f"ds_read_b128 {vr(X+16*s+4*t,4)}, v{xa+t} offset:{off(xa,b)}"),
                            lambda: p.I(f"ds_read_b64_tr_b16 {vr(S,2)}, v{wa+t} offset:{off(wa,b+16384)}"),
                            lambda: p.I(f"ds_read_b64_tr_b16 {vr(S+2,2)}, v{wa+t} offset:{off(wa,b+16384+512)}"),
                            lambda: p.I(f"ds_read_b64_tr_b16 {vr(S+4,2)}, v{wa+t} offset:{off(wa,b+24576)}"),
                            lambda: p.I(f"ds_read_b64_tr_b16 {vr(S+6,2)}, v{wa+t} offset:{off(wa,b+24576+512)}")]
                b = p2base(s - 8)
                return [lambda: p.I(f"ds_read_b64_tr_b16 {vr(S,2)}, v{wa+t} offset:{off(wa,b)}"),
                        lambda: p.I(f"ds_read_b64_tr_b16 {vr(S+2,2)}, v{wa+t} offset:{off(wa,b+512)}"),
                        lambda: p.I(f"ds_read_b64_tr_b16 {vr(S+4,2)}, v{fa+t} offset:{off(fa,b+8192)}"),
                        lambda: p.I(f"ds_read_b64_tr_b16 {vr(S+6,2)}, v{fa+t} offset:{off(fa,b+8192+256)}")]
            def mf(s, t, S):
                a0, a1 = (AK, AV) if s < 8 else (AQ, AF)
                xr = X + 16 * (s % 8) + 4 * t
                first = (s % 8 == 0 and t == 0)
                return [lambda: p.I(f"{MF} {vr(a0,16)}, {vr(S,4)}, {vr(xr,4)}, {0 if first else vr(a0,16)}"),
                        lambda: p.I(f"{MF} {vr(a1,16)}, {vr(S+4,4)}, {vr(xr,4)}, {0 if first else vr(a1,16)}")]
            def ifg0(fn):
                p.I(f"s_cmp_lg_u32 s{s_g}, 0"); p.cond(isg0, "s_cbranch_scc1", fn)
            def barrier(j, pre=None, lg=False):
                if pre: pre()
                p.wait(vm=[('d', j)] + ([('d', j + 1)] if j in (10, 12, 14) else []), lg_all=lg)
                p.I("s_barrier")
                passed[0] = j
                if str(j) in os.environ.get('AFINE', '').split(','): st.stamp(p, f'b{j}')
            AEX = SL
            loadsC = [(AQ, s_csg, 0), (AQ + 4, s_csg, 1024)]
            loadsC2 = [(AV + 8, s_csg, 8192), (AV + 12, s_csg, 9216)]
            RED = AEX + 2048
            loadsH1 = [(AK + 8*r + 4*k, s_poff, 32768*r + 1024*k) for r in range(2) for k in range(2)]
            loadsH2 = [(AK + 4*k, s_koff, 1024*k) for k in range(2)]
            def h1_get():
                p.I(f"""s_lshl_b32 s{s_poff}, s{s_grp}, 3
                        s_add_u32 s{s_poff}, s{s_poff}, s{s_w}
                        s_lshl_b32 s{s_poff}, s{s_poff}, 5
                        s_add_u32 s{s_poff}, s{s_poff}, s{s_rb}
                        s_lshl_b32 s{s_poff}, s{s_poff}, 11
                        s_add_u32 s{s_poff}, s{s_poff}, {PART_OFF}""")
                fetch(loadsH1)
            def h1_digest():
                validate(loadsH1)
                p.I(f"""v_add_f32 v{AK}, v{AK}, v{AK+8}
                        v_add_f32 v{AK+1}, v{AK+2}, v{AK+10}
                        v_add_f32 v{AK+2}, v{AK+4}, v{AK+12}
                        v_add_f32 v{AK+3}, v{AK+6}, v{AK+14}
                        s_lshl_b32 s{s_t0}, s{s_w}, 10
                        s_add_u32 s{s_t0}, s{s_t0}, {RED}
                        v_add_u32 v{t3}, s{s_t0}, v{l16}""")
                p.I(f"ds_write_b128 v{t3}, {vr(AK,4)}")
            def h1_reduce():
                p.I(f"v_add_u32 v{t3}, {RED}, v{l16}")
                for k in range(4): p.I(f"ds_read_b128 {vr(AK+4*k,4)}, v{t3} offset:{1024*k}")
                for k in range(1, 4):
                    for e in (0, 2): p.I(pk("v_pk_add_f32", AK+e, AK+e, AK+4*k+e))
                for k in range(1, 4): p.I(f"ds_read_b128 {vr(AK+4*k,4)}, v{t3} offset:{1024*(k+3)}")
                p.I(f"ds_read_b128 {vr(t0,4)}, v{t3} offset:7168")
                for k in range(1, 4):
                    for e in (0, 2): p.I(pk("v_pk_add_f32", AK+e, AK+e, AK+4*k+e))
                for e in (0, 2): p.I(pk("v_pk_add_f32", AK+e, AK+e, t0+e))
                p.I(f"""v_cvt_pk_bf16_f32 v{AK}, v{AK}, v{AK+1}
                        v_cvt_pk_bf16_f32 v{AK+2}, v{AK+2}, v{AK+3}
                        v_mov_b32 v{AK+1}, s{s_non}
                        v_mov_b32 v{AK+3}, s{s_non}
                        s_lshl_b32 s{s_t0}, s{s_grp}, 4
                        s_add_u32 s{s_t0}, s{s_t0}, s{s_rb}
                        s_lshl_b32 s{s_t0}, s{s_t0}, 10
                        s_add_u32 s{s_t0}, s{s_t0}, {KVZ_OFF}""")
                p.I(f"buffer_store_dwordx4 {vr(AK,4)}, v{l16}, s[{S_WS}:{S_WS+3}], s{s_t0} offen sc1")
            loadsS = st_loads(AQ)
            def c_digest(loads, val=True):
                if val: validate(loads)
                corr_prep(loads[0][0], loads[1][0], t2)
                p.I(f"""v_lshlrev_b32 v{t3}, 2, v{lane}
                        s_lshl_b32 s{s_t0}, s{s_i}, 8
                        s_add_u32 s{s_t0}, s{s_t0}, {AEX}
                        v_add_u32 v{t3}, s{s_t0}, v{t3}""")
                p.I(f"ds_write_b32 v{t3}, v{t2}")
            def s_digest():
                stats_final(AQ, M, rstd, M + 1)
                st_addr(t3, AEX + 1024)
                p.I(f"ds_write_b64 v{t3}, {vr(M,2)}")
            def c_read():
                p.I(f"""v_lshlrev_b32 v{t4}, 2, v{lane}
                        s_lshl_b32 s{s_t0}, s{s_g}, 9
                        s_add_u32 s{s_t0}, s{s_t0}, {AEX}
                        v_add_u32 v{t4}, s{s_t0}, v{t4}""")
                p.I(f"ds_read_b32 v{t2}, v{t4}\n ds_read_b32 v{t3}, v{t4} offset:256")
            def k_epilogue():
                E = SET[1]
                c_read()
                st_addr(t4, AEX + 1024)
                p.I(f"ds_read_b64 {vr(M,2)}, v{t4}")
                for r in (M+2, M+3, C+1, C+2, C+3): p.I(f"v_mov_b32 v{r}, 0")
                p.I(f"v_mov_b32 v{sd}, v{M+1}\n v_rcp_f32 v{rstd}, v{M+1}\n v_mov_b32 v{M+1}, 0")
                corr_mf(AK, t2, C, M)
                corr_mf(AV, t3, C, M)
                p.I(f"""v_and_b32 v{t0}, 31, v{lane}
                        s_lshl_b32 s{s_t0}, s{s_i}, 5
                        v_add_u32 v{t0}, s{s_t0}, v{t0}
                        v_lshrrev_b32 v{t1}, 5, v{lane}
                        v_mul_u32_u24 v{t2}, 40, v{t0}
                        v_lshl_add_u32 v{t2}, v{t1}, 3, v{t2}
                        s_mul_i32 s{s_t0}, s{s_g}, 10240
                        s_add_u32 s{s_t0}, s{s_t0}, {TV}
                        v_add_u32 v{sS}, s{s_t0}, v{t2}
                        v_bfe_u32 v{t2}, v{lane}, 1, 3
                        v_xor_b32 v{t2}, v{t2}, v{t1}
                        v_lshlrev_b32 v{t2}, 3, v{t2}
                        v_lshl_add_u32 v{t2}, v{t0}, 6, v{t2}
                        s_lshl_b32 s{s_t0}, s{s_g}, 14
                        s_add_u32 s{s_t0}, s{s_t0}, {TP}
                        v_add_u32 v{sS+1}, s{s_t0}, v{t2}
                        v_xor_b32 v{sQ+1}, 16, v{sS+1}
                        v_mul_f32 v{sQ}, {LOG2E}, v{rstd}
                        v_mov_b32 v{cs}, 0x3f803f80
                        v_mov_b32 v{cs+1}, 0x3f803f80""")
                KB = E
                for i in range(8): p.I(f"v_cvt_pk_bf16_f32 v{KB+i}, v{AK+2*i}, v{AK+2*i+1}")
                p.I(f"{MF} {vr(AK,16)}, {vr(WP,4)}, {vr(KB,4)}, 0")
                for i in range(0, 16, 2): p.I(pk("v_pk_mul_f32", AV+i, AV+i, rstd, bc=(1,)))
                for i in range(8): p.I(f"v_cvt_pk_bf16_f32 v{AV+i}, v{AV+2*i}, v{AV+2*i+1}")
                for h in range(2):
                    p.I(f"ds_write_b64 v{sS}, {vr(AV+4*h,2)} offset:{5120*h}")
                    p.I(f"ds_write_b64 v{sS}, {vr(AV+4*h+2,2)} offset:{5120*h+16}")
                p.I("s_mov_b64 exec, 0xffffffff")
                for h in range(2): p.I(f"ds_write_b64 v{sS}, {vr(cs,2)} offset:{5120*h+32}")
                p.I("s_mov_b64 exec, -1")
                p.I(f"{MF} {vr(AV,16)}, {vr(WP,4)}, {vr(KB+4,4)}, 0")
                for h, (P, Mi) in enumerate(((AK, AK + 8), (AV + 8, AV))):
                    softmax_pm(p, P, Mi, sQ, t0)
                    p.I(f"v_xor_b32 v{t0}, 32, v{sS+1}\n v_xor_b32 v{t1}, 32, v{sQ+1}")
                    p.I(f"ds_write_b64 v{sS+1}, {vr(P,2)} offset:{8192*h}")
                    p.I(f"ds_write_b64 v{sQ+1}, {vr(P+2,2)} offset:{8192*h}")
                    p.I(f"ds_write_b64 v{t0}, {vr(Mi,2)} offset:{8192*h}")
                    p.I(f"ds_write_b64 v{t1}, {vr(Mi+2,2)} offset:{8192*h}")
            def kv_addr():
                p.I(f"""v_lshrrev_b32 v{t0}, 5, v{lane}
                        v_bfe_u32 v{t1}, v{lane}, 2, 2
                        v_lshl_add_u32 v{t2}, v{t0}, 2, v{t1}
                        v_bfe_u32 v{t3}, v{lane}, 3, 1
                        v_lshl_add_u32 v{t0}, v{t0}, 1, v{t3}
                        v_and_b32 v{t1}, 3, v{lane}
                        v_bfe_u32 v{t3}, v{lane}, 4, 1
                        v_lshl_add_u32 v{sS}, v{t3}, 2, v{t1}
                        v_xor_b32 v{t0}, v{t0}, v{sS}
                        v_lshlrev_b32 v{t0}, 3, v{t0}
                        v_lshl_add_u32 v{t0}, v{t2}, 6, v{t0}
                        s_lshl_b32 s{s_t0}, s{s_i}, 13
                        s_add_u32 s{s_t0}, s{s_t0}, {TP}
                        v_add_u32 v{sS}, s{s_t0}, v{t0}
                        v_xor_b32 v{sS+1}, 32, v{sS}
                        v_mul_u32_u24 v{t2}, 40, v{t2}
                        v_lshlrev_b32 v{t1}, 3, v{t1}
                        v_cmp_eq_u32 vcc, 0, v{t3}
                        v_cndmask_b32 v{t1}, 32, v{t1}, vcc
                        v_add_u32 v{t2}, v{t2}, v{t1}
                        s_mul_i32 s{s_t0}, s{s_i}, 5120
                        s_add_u32 s{s_t0}, s{s_t0}, {TV}
                        v_add_u32 v{sQ}, s{s_t0}, v{t2}
                        s_lshl_b32 s{s_poff}, s{s_grp}, 4
                        s_add_u32 s{s_poff}, s{s_poff}, s{s_rb}
                        s_lshl_b32 s{s_poff}, s{s_poff}, 2
                        s_add_u32 s{s_poff}, s{s_poff}, s{s_i}
                        s_lshl_b32 s{s_poff}, s{s_poff}, 13
                        s_add_u32 s{s_poff}, s{s_poff}, {PART_OFF}""")
            def kv_phase():
                def rd(ks):
                    B = AV + 8 * (ks & 1)
                    p.I(f"""ds_read_b64_tr_b16 {vr(B,2)}, v{sS} offset:{1024*ks}
                            ds_read_b64_tr_b16 {vr(B+2,2)}, v{sS+1} offset:{1024*ks+512}
                            ds_read_b64_tr_b16 {vr(B+4,2)}, v{sQ} offset:{640*ks}
                            ds_read_b64_tr_b16 {vr(B+6,2)}, v{sQ} offset:{640*ks+320}""")
                rd(0); rd(1)
                for ks in range(8):
                    B = AV + 8 * (ks & 1)
                    p.I(f"{MF} {vr(AK,16)}, {vr(B,4)}, {vr(B+4,4)}, {vr(AK,16) if ks else 0}")
                    if ks + 2 < 8: rd(ks + 2)
                for r in (AV+9, AV+11, AV+13, AV+15): p.I(f"v_mov_b32 v{r}, s{s_non}")
                for q in range(8):
                    Q = AV + 8 + 4 * (q & 1)
                    p.I(f"v_mov_b32 v{Q}, v{AK+2*q}\n v_mov_b32 v{Q+2}, v{AK+2*q+1}")
                    if q == 4: p.I(f"s_add_u32 s{s_poff}, s{s_poff}, 4096")
                    p.I(f"buffer_store_dwordx4 {vr(Q,4)}, v{l16}, s[{S_WS}:{S_WS+3}], s{s_poff} offen offset:{1024*(q&3)} sc1")
            SPL = int(os.environ.get('ASPL', '40'))
            def sets(n):
                if n < 32: return [SET[0], AF, SET[1]][n % 3]
                if n < SPL + 2: return SET[n % 2]
                return [SET[0], SET[1], AV][(n - SPL) % 3]
            issue_at = {n: n - 2 for n in range(64)}
            issue_at.update({n: n - 1 for n in range(32, SPL)})
            issue_at.update({SPL: 'x', SPL + 1: 'x', SPL + 2: SPL})
            rd = lambda n: reads(n >> 2, n & 3, sets(n))
            p.I(f"s_lshl_b32 s{s_csg}, s{s_i}, 11\n s_add_u32 s{s_csg}, s{s_csg}, s{s_cso}")
            p.I(f"s_add_u32 s{s_koff}, s{s_sto}, 2048")
            if 'S1LATE' not in OPT: pop(2)
            barrier(0)
            st.stamp(p, 'bar0')
            if 'S1LATE' in OPT: pop(6)
            nonce_sample(VF)
            def pre_kv():
                p.I(f"s_and_b32 s{s_t0}, s{s_i}, 1\n s_lshl_b32 s{s_t0}, s{s_t0}, 13\n v_add_u32 v{t0}, s{s_t0}, v{vpre}")
                for t in range(4):
                    for h in range(2): p.I(f"ds_read_b64_tr_b16 {vr(AQ+4*t+2*h,2)}, v{t0} offset:{16384 + 2048*t + 512*h}")
                cs_pre(AQ, cs)
            def pre_st():
                for t in range(2, 4): p.I(f"ds_read_b128 {vr(X+4*t,4)}, v{xa+t}")
                for t in range(4): p.I("\n".join(stat_ops(X + 4 * t, sS, sQ)))
                stats_pre(sS, sQ, M)
            for r in rd(0) + rd(1): r()
            pop(2)
            p.I(f"s_cmp_lg_u32 s{s_g}, 0")
            p.ifelse(isg0, "s_cbranch_scc1", pre_kv, pre_st)
            st.stamp(p, 'pre')
            def pre_qf():
                b = p2base(0)
                def var(reg, base, ks, hs):
                    p.I(f"v_add_u32 v{t0}, {base}, v{reg}")
                    for t in range(4):
                        for h in range(2): p.I(f"ds_read_b64_tr_b16 {vr(AK+4*t+2*h,2)}, v{t0} offset:{ks*t + hs*h}")
                p.I(f"s_bitcmp1_b32 s{s_i}, 0")
                p.ifelse(lambda r, it: r['w'] % 2 == 0, "s_cbranch_scc1", lambda: var(vpre, b, 2048, 512), lambda: var(vpre + 1, b + 8192, 1024, 256))
                p.I(f"s_add_u32 s{s_t2}, s{s_i}, 4")
                cs_pre(AK, cs)
                cs_publish(cs, s_t2)
            def cap(fn):
                p.begin(); fn(); return atoms(p.end())
            def ifg(g, fn):
                p.I(f"s_cmp_lg_u32 s{s_g}, {g}"); p.cond(lambda r, it: r['g'] == g, "s_cbranch_scc1", fn)
            uloads = [(AQ, s_qoff, 0), (AQ + 4, s_qoff, 1024), (AQ + 8, s_hoff, 0), (AQ + 12, s_hoff, 1024)]
            def uget():
                p.I(f"s_cmp_eq_u32 s{s_g}, 0\n s_cselect_b32 s{s_qoff}, s{s_csg}, s{s_sto}\n s_cselect_b32 s{s_hoff}, s{s_csg}, s{s_koff}")
                fetch(uloads)
            env = lambda k, d: int(os.environ.get(k, d))
            H1G, H1D, UG = env('H1G', 50), env('H1D', 56), env('UG', 18)
            def wo_pf():
                srd(p, S_PF, WO_P, 512*1024)
                p.I(f"""s_lshr_b32 s{s_pf}, s2, 3
                        s_lshl_b32 s{s_pf}, s{s_pf}, 3
                        s_add_u32 s{s_pf}, s{s_pf}, s{s_w}
                        s_lshl_b32 s{s_pf}, s{s_pf}, 12""")
                for m in range(4): p.I(f"buffer_load_dwordx4 {vr(cs,4)}, v{l16}, s[{S_PF}:{S_PF+3}], s{s_pf} offen offset:{1024*m}")
            events = {
                3: [lambda: nonce_take(VF)], 4: [lambda: ifg(0, lambda: cs_publish(cs, s_i))], 5: [lambda: ifg(1, lambda: stats_publish(M))],
                6: [wphi_read], env('MT', 24): [lambda: mall_touch(AF + 12)], UG: [uget],
                env('UV', 26): [lambda: validate(uloads), lambda: ifg(1, s_digest), lambda: ifg(0, lambda: c_digest(loadsC, False))],
                H1G: [h1_get], 52: [lambda: fetch(loadsC2)], H1D: [h1_digest],
                42: [lambda: bpf_setup(vx, 0)], env('WOPF', 99): [wo_pf], 59: [lambda: rarew(4, h1_reduce)], 60: [lambda: ifg(0, lambda: c_digest(loadsC2))],
            }
            bg = []
            def popn(n):
                for _ in range(2):
                    if npop[0] < 13 + n: pop()
                if n in EBS:
                    for f in bpf(EBS.index(n), vx, 0): f()
            EBS = [int(x) for x in os.environ.get('EBS', '').split(',') if x]
            assert BBASE + 16384 * len(EBS) <= 98304
            def steps(n0, n1, extra_bg=()):
                bg.extend(extra_bg)
                for n in range(n0, n1):
                    todo = [m for m in range(64) if issue_at[m] == n]
                    for m in todo:
                        if m % 4 == 0 and not (32 < m < SPL) and m not in (44, 52):
                            j = m >> 2
                            if j in (8, 15):
                                while bg: p.extend(bg.pop(0))
                            if j == 8: p.wait(vm=[('d', k) for k in range(8, SPL // 4)])
                            barrier(j, None, lg=j in (8, 15))
                    for f in events.get(n, []): bg.extend(cap(f))
                    take = [bg.pop(0) for _ in range(min(len(bg), env('BGN', 8)))]
                    interleave(p, mf(n >> 2, n & 3, sets(n)),
                               mix([f for m in todo for f in rd(m)], [lambda: popn(n)], [lambda a=a: p.extend(a) for a in take]))
            steps(0, 32)
            st.stamp(p, 'p1')
            snap = (dict(win), list(dq), npop[0], passed[0])
            def restore():
                win.clear(); win.update(snap[0]); dq[:] = snap[1]; npop[0] = snap[2]; passed[0] = snap[3]
            def path0():
                k_epilogue()
                steps(32, SPL, cap(kv_addr))
                while bg: p.extend(bg.pop(0))
            def path1():
                restore()
                steps(32, SPL)
                k_epilogue()
            p.I(f"s_cmp_lg_u32 s{s_g}, 0")
            p.ifelse(isg0, "s_cbranch_scc1", path0, path1)
            st.stamp(p, 'kepi')
            barrier(SPL // 4, None, lg=True)
            for f in rd(SPL) + rd(SPL + 1): f()
            p.I(f"s_cmp_lg_u32 s{s_g}, 0")
            p.ifelse(isg0, "s_cbranch_scc1", kv_phase, pre_qf)
            st.stamp(p, 'kv')
            steps(SPL, 64)
            while bg: p.extend(bg.pop(0))
            assert not dq
            st.stamp(p, 'p2')
            p.I(f"""s_lshl_b32 s{s_hoff}, s{s_rb}, 2
                    s_add_u32 s{s_hoff}, s{s_hoff}, s{s_i}
                    s_mul_i32 s{s_hoff}, s{s_hoff}, 118
                    s_lshl_b32 s{s_t0}, s{s_grp}, 1
                    s_add_u32 s{s_t0}, s{s_t0}, s{s_g}
                    s_add_u32 s{s_qoff}, s{s_hoff}, s{s_t0}
                    s_add_u32 s{s_qoff}, s{s_qoff}, s{s_t0}
                    s_add_u32 s{s_qoff}, s{s_qoff}, 86
                    s_lshl_b32 s{s_qoff}, s{s_qoff}, 10
                    s_add_u32 s{s_hoff}, s{s_hoff}, s{s_t0}
                    s_lshl_b32 s{s_hoff}, s{s_hoff}, 10
                    s_lshl_b32 s{s_koff}, s{s_grp}, 3
                    s_add_u32 s{s_koff}, s{s_koff}, s{s_w}
                    s_lshl_b32 s{s_koff}, s{s_koff}, 11
                    s_add_u32 s{s_koff}, s{s_koff}, {KVZ_OFF}""")
            p.wait(lg_all=True)
            p.I("s_barrier")
            c_read()
            corr_mf(AQ, t2, C, M)
            corr_mf(AF, t3, C, M)
            late = [lambda f=f, g=g: ifg(g, f) for s in range(len(EBS), NB) for f in bpf(s, vx, 0) for g in (0, 1)]
            def lt():
                if late: late.pop(0)()
            QB, D0, D1, KZ = X, X + 16, X + 32, X + 48
            lt()
            for i in range(8): p.I(f"v_cvt_pk_bf16_f32 v{QB+i}, v{AQ+2*i}, v{AQ+2*i+1}")
            p.I(f"{MF} {vr(D0,16)}, {vr(WP,4)}, {vr(QB,4)}, 0")
            p.I(f"{MF} {vr(D1,16)}, {vr(WP,4)}, {vr(QB+4,4)}, 0")
            lt()
            f_consts(rstd, sd, c1, irs2)
            f_epilogue(AF, c1, irs2, SET[1], f"s{s_hoff} offen")
            if 'noo' in OPT:
                flag_early()
                finish(0, late)
                return
            fetch(loadsH2)
            st.stamp(p, 'epi2')
            p.I(f"v_mul_f32 v{sQ}, {LOG2E}, v{rstd}")
            lt()
            softmax_pm(p, D0, D0 + 8, sQ, t0, lt)
            lt()
            softmax_pm(p, D1 + 8, D1, sQ, t0, lt)
            lt()
            st.stamp(p, 'smq')
            validate(loadsH2)
            flag_early()
            p.I(f"""v_mov_b32 v{AK+1}, v{AK+2}
                    v_mov_b32 v{AK+2}, v{AK+4}
                    v_mov_b32 v{AK+3}, v{AK+6}
                    s_lshl_b32 s{s_t0}, s{s_w}, 10
                    s_add_u32 s{s_t0}, s{s_t0}, {RED}
                    v_add_u32 v{t3}, s{s_t0}, v{l16}
                    s_lshl_b32 s{s_t0}, s{s_g}, 12
                    s_add_u32 s{s_t0}, s{s_t0}, {RED}
                    v_add_u32 v{t2}, s{s_t0}, v{l16}""")
            p.I(f"ds_write_b128 v{t3}, {vr(AK,4)}")
            p.wait(lg_all=True)
            p.I("s_barrier")
            for k in range(4): p.I(f"ds_read_b128 {vr(KZ+4*k,4)}, v{t2} offset:{1024*k}")
            for h, (P, Mi, O) in enumerate(((D0, D0 + 8, AQ), (D1 + 8, D1, AF))):
                p.I(f"{MF} {vr(O,16)}, {vr(KZ+8*h,4)}, {vr(P,4)}, 0")
                p.I(f"{MF} {vr(O,16)}, {vr(KZ+8*h+4,4)}, {vr(Mi,4)}, {vr(O,16)}")
            for h, O in enumerate((AQ, AF)):
                p.I(f"v_add_f32 v{t0}, 0x358637bd, v{O+8}\n v_rcp_f32 v{t0}, v{t0}")
                for i in range(0, 8, 2): p.I(pk("v_pk_mul_f32", O+i, O+i, t0, bc=(1,)))
                for i in range(4): p.I(f"v_cvt_pk_bf16_f32 v{O+i}, v{O+2*i}, v{O+2*i+1}")
                p.I(f"buffer_store_dwordx4 {vr(O,4)}, v{l16}, s[{S_WS}:{S_WS+3}], s{s_qoff} offen offset:{1024*h} sc1", tag='hst')
            st.stamp(p, 'end')
            finish(0, late)
        p.begin(); prologue(); pro = p.end()
        p.begin(); body(); bod = p.end()
        A = [w for w in range(256) if (w >> 6) < 2]
        info['A0'] = (A, [0, 1, 2, 3], list(st.names)); info['A1'] = (A, [5, 6, 7], list(st.names)); info['Ared'] = (A, [4], list(st.names))
        return pro, bod, V.next

    def phase2():
        V = Regs('v', BASE + 6, 256)
        S_A, S_B, S_OUT = S_QKV, S_W2, S_WM
        s_bo2, s_as, s_bs = s_woff, s_mslot, s_mA
        NST = int(os.environ.get('NST', '12'))
        p.label(f"{name}_ph2")
        p.I(f"s_cmp_lt_u32 s{s_w}, 4")
        P2S = [int(x) for x in os.environ.get('P2S', '0,1,2,3,4,6,8,10,12,14').split(',')]
        def aloader():
            VF, vfa = VF2, vfa2
            if 'prio' in OPT: p.I('s_setprio 3')
            p.I(f"s_cmp_lg_u32 s{s_early}, 0")
            p.cond(lambda r, it: not (r.get('early', False) and r['type'] == 'A'), "s_cbranch_scc1",
                   lambda: (a_setup(), flag_wait(p, VF, vfa, S_WS, s_fo, s_non, s_t1), a_issue(0), a_issue(1)))
            st.n = NST; st.names = []; st.stamp(p, 'flF')
            p.I(f"s_sub_u32 s{s_fo}, s{s_fo}, {128*128}")
            def prep(s):
                if s == 9:
                    flag_wait(p, VF, vfa, S_WS, s_fo, s_non, s_t1)
                    st.stamp(p, 'flA')
                a_prep(s)
            def issue(s):
                a_issue(s, False)
                if s == 7: flag_sample(p, VF, vfa, S_WS, s_fo)
            for s in range(2, NA): prep(s); issue(s)
            for s in range(15):
                nx = s + NA - 1
                if s >= 1 and nx < 15: prep(nx)
                if 'p2pre' in OPT and s in P2S: st.stamp(p, f'w{s}')
                p.wait(vm=[('a', s)])
                p.I("s_barrier")
                if 'p2fine' in OPT and s in P2S: st.stamp(p, f's{s}')
                if s >= 1 and nx < 15: issue(nx)
            st.stamp(p, 'fin')
            info['aldn'] = list(st.names)
        def bloader():
            vB = V.alloc(4)
            vb_calc(vB, 4)
            p.I(f"s_and_b32 s{s_t0}, s{s_w}, 1\n s_lshl_b32 s{s_as}, s{s_t0}, 16\n s_lshl_b32 s{s_bs}, s{s_t0}, 13")
            p.I(f"s_cmp_lt_u32 s{s_ci}, 2\n s_cselect_b32 s{s_fo}, 0, {(NEB % NB) * 16384}")
            def prep(s):
                if s == 11: srd(p, S_B, WO_P, 512*1024)
                if s < 11:
                    kap0(s, s_k0); p.I(f"s_lshl_b32 s{s_bo2}, s{s_k0}, 14")
                else: p.I(f"s_mov_b32 s{s_bo2}, {(s - 11) * 8 * 16384}")
                p.I(f"""s_add_u32 s{s_bo2}, s{s_bo2}, s{s_as}
                        s_add_u32 m0, s{s_fo}, s{s_bs}
                        s_add_u32 m0, m0, {BBASE}
                        s_add_u32 s{s_fo}, s{s_fo}, 16384
                        s_cmp_ge_u32 s{s_fo}, {NB*16384}
                        s_cselect_b32 s{s_fo}, 0, s{s_fo}""")
            def issue(s):
                for m in range(8):
                    if m == 4: p.I(f"s_add_u32 s{s_bo2}, s{s_bo2}, 32768\n s_add_u32 m0, m0, 4096")
                    p.I(f"buffer_load_dwordx4 v{vB+(m&3)}, s[{S_B}:{S_B+3}], s{s_bo2} offen offset:{1024*(m&3)} lds", tag=('b', s))
            p.I(f"s_cmp_lt_u32 s{s_ci}, 2")
            p.cond(lambda r, it: r['type'] == 'F', "s_cbranch_scc1", lambda: [(prep(s), issue(s), p.wait(vm=[('b', s - 1)]) if 'thr' in OPT else None) for s in range(NEB, NB)])
            for s in range(15):
                if s >= 1 and s + NB - 1 < 15: prep(s + NB - 1)
                p.wait(vm=[('b', s), 'eb'])
                p.I("s_barrier")
                if s >= 1 and s + NB - 1 < 15: issue(s + NB - 1)
            st.n = NST; st.stamp(p, 'fin')
        def consumer():
            cA = V.alloc(); cB = V.alloc(); aA = V.alloc(); aB = V.alloc(); vO = V.alloc(); vXr = V.alloc()
            ACC = V.alloc(16, 4); FA = V.alloc(32, 4); FB = V.alloc(32, 4); XR = V.alloc(8, 2)
            srd(p, S_X, X_P, 2048*1024); srd(p, S_OUT, OUT_P, 2048*1024)
            p.I(f"""s_lshl_b32 s{s_t0}, s{s_rb2}, 1
                    s_and_b32 s{s_t1}, s{s_w}, 1
                    s_add_u32 s{s_t0}, s{s_t0}, s{s_t1}
                    s_lshl_b32 s{s_t0}, s{s_t0}, 15
                    s_lshl_b32 s{s_t2}, s{s_ct2}, 7
                    s_add_u32 s{s_t0}, s{s_t0}, s{s_t2}
                    s_lshr_b32 s{s_t2}, s{s_w}, 1
                    s_lshl_b32 s{s_t3}, s{s_t2}, 6
                    s_add_u32 s{s_t0}, s{s_t0}, s{s_t3}
                    v_and_b32 v{t0}, 31, v{lane}
                    v_lshlrev_b32 v{t0}, 10, v{t0}
                    v_add_u32 v{t0}, s{s_t0}, v{t0}
                    v_lshrrev_b32 v{t1}, 5, v{lane}
                    v_lshl_add_u32 v{vO}, v{t1}, 4, v{t0}
                    v_lshl_add_u32 v{vXr}, v{t1}, 3, v{t0}""")
            for q in range(4):
                p.I(f"buffer_load_dwordx2 {vr(XR+2*q,2)}, v{vXr}, s[{S_X}:{S_X+3}], 0 offen offset:{16*q}")
            p.I(f"""s_lshl_b32 s{s_t1}, s{s_t1}, 13
                    v_add_u32 v{cA}, s{s_t1}, v{l16}
                    v_lshrrev_b32 v{t0}, 5, v{lane}
                    v_bfe_u32 v{t1}, v{lane}, 2, 2
                    v_lshl_add_u32 v{t0}, v{t0}, 2, v{t1}
                    v_lshlrev_b32 v{cB}, 7, v{t0}
                    v_bfe_u32 v{t0}, v{lane}, 4, 1
                    v_bfe_u32 v{t1}, v{lane}, 1, 1
                    v_lshl_add_u32 v{t0}, v{t0}, 1, v{t1}
                    s_lshl_b32 s{s_t2}, s{s_t2}, 2
                    v_add_u32 v{t0}, s{s_t2}, v{t0}
                    v_bfe_u32 v{t1}, v{lane}, 3, 1
                    v_lshlrev_b32 v{t1}, 2, v{t1}
                    v_xor_b32 v{t0}, v{t0}, v{t1}
                    v_lshl_add_u32 v{cB}, v{t0}, 4, v{cB}
                    v_and_b32 v{t0}, 1, v{lane}
                    v_lshl_add_u32 v{cB}, v{t0}, 3, v{cB}
                    v_add_u32 v{cB}, {BBASE}, v{cB}
                    s_mov_b32 s{s_as}, 0
                    s_mov_b32 s{s_bs}, 0
                    s_mov_b32 s{s_it}, 0""")
            for i in range(0, 16, 2): p.I(f"v_mov_b64 {vr(ACC+i,2)}, 0")
            for i in range(16, 32, 2): p.I(f"v_mov_b64 {vr(FA+i,2)}, 0\n v_mov_b64 {vr(FB+i,2)}, 0")
            p.wait(vm_all=True)
            def rd(e):
                p.I(f"ds_read_b128 {vr(FA+4*e,4)}, v{aA} offset:{1024*e}")
                p.I(f"ds_read_b64_tr_b16 {vr(FB+4*e,2)}, v{aB} offset:{e*2048}")
                p.I(f"ds_read_b64_tr_b16 {vr(FB+4*e+2,2)}, v{aB} offset:{e*2048+1024}")
            mf = lambda e: p.I(f"{MF} {vr(ACC,16)}, {vr(FB+4*e,4)}, {vr(FA+4*e,4)}, {vr(ACC,16)}")
            def body():
                p.I(f"v_add_u32 v{aA}, s{s_as}, v{cA}\n v_add_u32 v{aB}, s{s_bs}, v{cB}")
                p.wait(lg_all=True)
                p.I("s_barrier")
                for e in range(4): rd(e)
                mf(4); mf(5)
                p.I(f"s_cmp_eq_u32 s{s_it}, 9")
                p.cond(lambda r, it: it != 9, "s_cbranch_scc1", lambda: (mf(6), mf(7)))
                for e in range(4):
                    rd(4 + e)
                    mf(e)
                p.I(f"""s_add_u32 s{s_as}, s{s_as}, 16384
                        s_cmp_ge_u32 s{s_as}, {NA*16384}
                        s_cselect_b32 s{s_as}, 0, s{s_as}
                        s_add_u32 s{s_bs}, s{s_bs}, 16384
                        s_cmp_ge_u32 s{s_bs}, {NB*16384}
                        s_cselect_b32 s{s_bs}, 0, s{s_bs}
                        s_add_u32 s{s_it}, s{s_it}, 1""")
            p.loop(15, body, f"{name}_cl", f"s_cmp_lt_u32 s{s_it}, 15\n s_cbranch_scc1 {name}_cl")
            for e in range(4, 8): mf(e)
            for i in range(8):
                p.I(f"v_lshlrev_b32 v{FA+2*i}, 16, v{XR+i}")
                p.I(f"v_and_b32 v{FA+2*i+1}, 0xffff0000, v{XR+i}")
            for i in range(0, 16, 2): p.I(pk("v_pk_add_f32", FA+i, FA+i, ACC+i))
            for i in range(8): p.I(f"v_cvt_pk_bf16_f32 v{FB+i}, v{FA+2*i}, v{FA+2*i+1}")
            for h in range(2):
                p.I(f"v_permlane32_swap_b32 v{FB+4*h}, v{FB+4*h+2}")
                p.I(f"v_permlane32_swap_b32 v{FB+4*h+1}, v{FB+4*h+3}")
                p.I(f"buffer_store_dwordx4 {vr(FB+4*h,4)}, v{vO}, s[{S_OUT}:{S_OUT+3}], 0 offen offset:{32*h}")
            st.n = NST; st.stamp(p, 'fin')
        def loaders():
            p.I(f"s_cmp_lt_u32 s{s_w}, 6")
            p.ifelse(lambda r, it: r['w'] < 6, "s_cbranch_scc0", aloader, bloader)
        p.ifelse(lambda r, it: r['w'] < 4, "s_cbranch_scc0", consumer, loaders)
        if stamps: p.I(f'v_writelane_b32 v{vstamp}, s98, 15'); print('sites', nsite)
        st.flush(p, S_WS, t0, s_w)
    pf0, bf0, u0 = ftype(0); pf1, bf1, u1 = ftype(1); pa, ba, ua = atype()
    for pred, items in ((isA, pa), (isF(0), pf0), (isF(1), pf1), (isA, ba), (isF(0), bf0), (isF(1), bf1)):
        p.add(Cond(pred, items))
    st.names = []
    phase2()
    p.label(f"{name}_end")
    p.I("s_endpgm")
    roles = [dict(type=t, g=w >> 2, w=w, **x) for t in 'AF' for w in range(8) for x in ({}, {'slow': True}, {'early': True})] + [dict(type='A', g=0, w=0, wg0=True)]
    lines = finalize(p.cur, roles) + [f'{name}_last:', '  s_endpgm']
    print("kf vgprs", u0, u1, ua)
    def pad(n, extra): return n + ['-'] * (int(os.environ.get('NST', '12')) - len(n)) + extra
    Aw, Fw = info['A0'][0], info['F0'][0]; aldn = info['aldn']
    info = {'Acons': (Aw, [0,1,2,3], pad(info['A0'][2], ['fin'])), 'Aald': (Aw, [4,5], pad(info['A0'][2], aldn)), 'Abld': (Aw, [6,7], pad(info['A0'][2], ['fin'])),
            'Fcons': (Fw, [0,1,2,3], pad(info['F0'][2], ['fin'])), 'Fald': (Fw, [4,5], pad(info['F1'][2], aldn)), 'Fbld': (Fw, [6,7], pad(info['F1'][2], ['fin']))}
    return lines, max(u0, u1, ua), info
```
